```python
import torch

def _softmax(x, axis=-1):
    return torch.softmax(x, dim=axis)
def _gelu(x):
    return torch.nn.functional.gelu(x, approximate="tanh")
def _silu(x):
    return torch.nn.functional.silu(x)
def _sigmoid(x):
    return torch.sigmoid(x)
def _layernorm(x, axis=-1, eps=1e-5):
    m = x.mean(dim=axis, keepdim=True)
    v = x.var(dim=axis, keepdim=True, unbiased=False)
    return (x - m) / torch.sqrt(v + eps)
def _scatter_add(tgt, idx, src, axis=0):
    return tgt.clone().index_add_(axis, idx, src)
def _segment_sum(src, seg, n):
    out = torch.zeros((n,) + src.shape[1:], dtype=src.dtype)
    return out.index_add_(0, seg, src)
def _pad(x, pw):
    flat = tuple(v for pair in reversed(pw) for v in pair)
    return torch.nn.functional.pad(x, flat)

kernel_name = 'gather_scatter__edge_featured_mpnn_egc__graph'

def setup_inputs():

    _w = (lambda a: (lambda t: t.to(torch.bfloat16) if t.is_floating_point() else t)(torch.as_tensor(a)))
    N, deg, D, De = 10000, 16, 128, max(0, 1)
    E = N * deg
    return {
        "x": _w((lambda *s: torch.randn(*s, dtype=torch.bfloat16) * 0.1)(N, D)),
        "e_attr": _w((lambda *s: torch.randn(*s, dtype=torch.bfloat16) * 0.1)(E, De)),
        "src": _w((lambda lo, hi, *s: torch.randint(lo, hi, s))(0, N, E).to(torch.int64)),
        "dst": _w((lambda lo, hi, *s: torch.randint(lo, hi, s))(0, N, E).to(torch.int64)),
        "u_w": _w((lambda *s: torch.randn(*s, dtype=torch.bfloat16) * 0.05)(D, D)),
        "v_w": _w((lambda *s: torch.randn(*s, dtype=torch.bfloat16) * 0.05)(D, D)),
        "g_w": _w((lambda *s: torch.randn(*s, dtype=torch.bfloat16) * 0.1)(2 * D + De, D)),
    }

def reference(x, e_attr, src, dst, u_w, v_w, g_w):
    N, D = x.shape
    g_in = torch.concatenate([x[dst], x[src], e_attr], axis=-1)
    eta = _sigmoid(g_in @ g_w)
    hv = x @ v_w
    msg = eta * hv[src]
    agg = _segment_sum(msg, dst, N)
    return _silu(x @ u_w + agg)
```

```python
import sys,subprocess
mode=sys.argv[1]
nd=sys.argv[2]
base=subprocess.check_output(["python3","naive.py",nd]).decode()
blk=256; lds=0; vg=8
if mode=="empty":
    body="    s_endpgm\n"
elif mode=="karg":
    body="""    s_load_dwordx2 s[4:5], s[0:1], 72
    s_waitcnt lgkmcnt(0)
    s_endpgm
"""
elif mode=="big":
    body="    s_endpgm\n"; blk=1024; lds=131072; vg=128
elif mode=="kload":
    body="""    s_load_dwordx2 s[4:5], s[0:1], 72
    s_waitcnt lgkmcnt(0)
    s_mov_b32 s6, 0x10000000
    s_mov_b32 s7, 0x20000
    s_lshl_b32 s8, s2, 12
    v_lshlrev_b32 v1, 4, v0
    buffer_load_dwordx4 v[4:7], v1, s[4:7], s8 offen
    s_waitcnt vmcnt(0)
    s_endpgm
"""
elif mode=="kstore":
    body="""    s_load_dwordx2 s[4:5], s[0:1], 72
    s_waitcnt lgkmcnt(0)
    s_mov_b32 s6, 0x10000000
    s_mov_b32 s7, 0x20000
    s_mul_i32 s8, s2, 20480
    s_add_u32 s8, s8, 0x4000000
    v_lshlrev_b32 v1, 4, v0
"""
    for i in range(5):
        body+=f"    buffer_store_dwordx4 v[4:7], v1, s[4:7], s8 offen\n    s_add_u32 s8, s8, 4096\n"
    body+="    s_endpgm\n"
elif mode=="kstoresc1":
    body="""    s_load_dwordx2 s[4:5], s[0:1], 72
    s_waitcnt lgkmcnt(0)
    s_mov_b32 s6, 0x10000000
    s_mov_b32 s7, 0x20000
    s_mul_i32 s8, s2, 20480
    s_add_u32 s8, s8, 0x4000000
    v_lshlrev_b32 v1, 4, v0
"""
    for i in range(5):
        body+=f"    buffer_store_dwordx4 v[4:7], v1, s[4:7], s8 offen sc1\n    s_add_u32 s8, s8, 4096\n"
    body+="    s_endpgm\n"
s=base.replace("dummy_kernel:\n    s_endpgm","dummy_kernel:\n"+body)
s=s.replace("kernel=dummy_kernel grid=(256,1,1) block=(256,1,1) lds=0",f"kernel=dummy_kernel grid=(256,1,1) block=({blk},1,1) lds={lds}")
s=s.replace(""".amdhsa_kernel dummy_kernel
  .amdhsa_next_free_vgpr 8
  .amdhsa_next_free_sgpr 96
  .amdhsa_accum_offset 8""",f""".amdhsa_kernel dummy_kernel
  .amdhsa_next_free_vgpr {vg}
  .amdhsa_next_free_sgpr 96
  .amdhsa_accum_offset {vg}""")
print(s)
```

```python
import sys, struct, argparse
ap=argparse.ArgumentParser()
ap.add_argument('--stamps',action='store_true')
ap.add_argument('--opt',default='')
args=ap.parse_args()
OPT=set(args.opt.split(','))
NAME="gather_scatter__edge_featured_mpnn_egc__graph"
out=[]
def e(s):
    for l in s.strip('\n').split('\n'):
        l=l.strip()
        if not l: continue
        out.append(l if l.endswith(':') else '    '+l)
def f2u(x): return struct.unpack('<I',struct.pack('<f',x))[0]
def vr(a,n=1): return f"v{a}" if n==1 else f"v[{a}:{a+n-1}]"
def sr(a,n=1): return f"s{a}" if n==1 else f"s[{a}:{a+n-1}]"

N=10000; E=160000; NB=157; CAP=48; EPW=625
LOG2E=1.4426950408889634
BCNT=0; NCNT=256; GE=896; DONE=1152; FAIL=1156; ORDER=1280; IMG=2048
W1=10240; LISTS=W1+64; W2=43008; XS=59392; NS=100352; NSTR=272; LDS_TOTAL=NS+160*NSTR
FLG=4096; TAB=1<<20; TABQ=N*128; PRI=8<<20; SEC=16<<20; DBG=200<<20
DUMMY=0x3fff
sW=3; pX,pE,pSRC,pDST,pU,pV,pG,pOUT=4,6,8,10,12,14,16,18
SRDX=20; SRDO=24; SRDW=28; SRDT=32; SRDG=36; NONCE=40
sQ=42; sB=43; sN0=44; sNEND=45; sT=46
sTAG24=56; sTAG14=57; sREM=58; sTASK2=59
sM=60
sK40=72; sKE=74; sSPIN=76; sCELL=77; sI=78
sST=80
nstamp=[0]; stampnames=[]
def stamp(name):
    if args.stamps:
        i=nstamp[0]; nstamp[0]+=1; stampnames.append(name); assert i<11
        e(f"s_memrealtime {sr(sST+2*i,2)}")

e(f"""
; @launch grid=(256,1,1) block=(1024,1,1) lds={LDS_TOTAL}
""")
out[:]=[l.strip() for l in out]
out.append('.amdgcn_target "amdgcn-amd-amdhsa--gfx950"')
out.append('.text')
out.append(f'.globl {NAME}_kernel')
out.append('.p2align 8')
out.append(f'.type {NAME}_kernel,@function')
out.append(f'{NAME}_kernel:')

e(f"""
s_load_dwordx16 s[4:19], s[0:1], 0
s_load_dwordx2 {sr(SRDW,2)}, s[0:1], 72
s_cmp_ge_u32 s2, 256
s_cbranch_scc1 L_end
""")
if args.stamps:
    for i in range(11): e(f"s_mov_b32 s{sST+2*i}, 0")
stamp("start")
e(f"""
v_lshrrev_b32 v2, 6, v0
v_and_b32 v1, 63, v0
v_readfirstlane_b32 s{sW}, v2
s_and_b32 s{sQ}, s2, 3
s_lshr_b32 s{sB}, s2, 2
s_mul_i32 s{sN0}, s{sB}, {NB}
s_add_u32 s{sNEND}, s{sN0}, {NB}
s_min_u32 s{sNEND}, s{sNEND}, {N}
s_mul_i32 s{sT}, s2, {EPW*4}
v_lshlrev_b32 v8, 2, v0
v_mov_b32 v9, 0
ds_write_b32 v8, v9
v_add_u32 v3, s{sT}, v8
v_lshrrev_b32 v4, 1, v3
v_lshrrev_b32 v10, 3, v0
v_lshlrev_b32 v5, 8, v10
v_and_b32 v10, 2, v10
v_lshrrev_b32 v11, 4, v0
v_and_or_b32 v10, v11, 4, v10
v_xor_b32 v10, v10, v0
v_and_b32 v10, 7, v10
v_lshl_add_u32 v5, v10, 4, v5
s_lshr_b32 s{sT+1}, s{sQ}, 1
s_lshl_b32 s{sT+1}, s{sT+1}, 7
v_add_u32 v5, s{sT+1}, v5
v_add_u32 v7, 32768, v5
v_xor_b32 v10, v11, v0
v_and_b32 v10, 15, v10
v_lshlrev_b32 v6, 8, v11
v_lshl_add_u32 v6, v10, 4, v6
s_and_b32 s{sT+2}, s{sQ}, 1
s_mul_i32 s{sT+2}, s{sT+2}, 80
s_add_u32 s{sT+3}, s{sT+2}, s{sN0}
s_lshl_b32 s{sT+3}, s{sT+3}, 8
v_add_u32 v6, s{sT+3}, v6
v_add_u32 v9, 16384, v6
; c offset
v_and_b32 v10, 7, v0
v_lshlrev_b32 v10, 3, v10
s_lshl_b32 s{sT+3}, s{sQ}, 6
s_add_u32 s{sT+3}, s{sT+3}, 65536
v_add_u32 v10, s{sT+3}, v10
s_lshl_b32 s{sT+4}, s{sW}, 10
s_add_u32 s{sT+5}, s{sT+4}, {W1}
s_lshl_b32 s{sT+6}, s{sT+2}, 8
s_add_u32 s{sT+6}, s{sT+6}, s{sT+4}
s_add_u32 s{sT+6}, s{sT+6}, {XS}
s_mov_b32 s{SRDX+2}, {N*256}
s_mov_b32 s{SRDX+3}, 0x20000
s_mov_b32 s{SRDW+2}, 0x10000000
s_mov_b32 s{SRDW+3}, 0x20000
v_cmp_gt_u32 vcc, {EPW}, v0
s_cmp_ge_u32 s{sW}, 10
s_waitcnt lgkmcnt(0)
s_load_dwordx2 {sr(NONCE,2)}, {sr(SRDW,2)}, 0
s_cbranch_scc1 L_noedge0
s_mov_b64 exec, vcc
global_load_dword v12, v3, {sr(pDST,2)}
global_load_dword v13, v3, {sr(pSRC,2)}
global_load_ushort v16, v4, {sr(pE,2)}
s_mov_b64 exec, -1
L_noedge0:
s_mov_b32 m0, s{sT+5}
s_mov_b32 s{SRDX}, s{pX}
global_load_lds_dwordx4 v7, {sr(pG,2)}
s_add_u32 m0, s{sT+5}, 16384
s_mov_b32 s{SRDX+1}, s{pX+1}
global_load_lds_dwordx4 v5, {sr(pV,2)}
s_mov_b32 m0, s{sT+6}
s_cmp_ge_u32 s{sW}, 4
buffer_load_dwordx4 v6, {sr(SRDX,4)}, 0 offen lds
global_load_dwordx2 v[116:117], v10, {sr(pG,2)}
s_cbranch_scc1 L_nox1b
s_add_u32 m0, s{sT+6}, 16384
s_nop 0
buffer_load_dwordx4 v9, {sr(SRDX,4)}, 0 offen lds
L_nox1b:
""")
stamp("issued")
e(f"""
s_mov_b32 s{SRDO}, s{pOUT}
s_mov_b32 s{SRDO+1}, s{pOUT+1}
s_lshl_b32 s{SRDO+2}, s{sNEND}, 8
s_mov_b32 s{SRDO+3}, 0x20000
s_mul_i32 s{sT}, s{sQ}, {TABQ}
s_add_u32 s{sT}, s{sT}, {TAB}
s_add_u32 s{SRDG}, s{SRDW}, s{sT}
s_addc_u32 s{SRDG+1}, s{SRDW+1}, 0
s_and_b32 s{SRDG+1}, s{SRDG+1}, 0xffff
s_or_b32 s{SRDG+1}, s{SRDG+1}, 0x800000
s_mov_b32 s{SRDG+2}, {N}
s_mov_b32 s{SRDG+3}, 0x20000
s_and_b32 s{sT}, s{sQ}, 2
s_bfe_u32 s{sT+1}, s{sW}, 0x10001
s_add_u32 s{sT}, s{sT}, s{sT+1}
s_mul_i32 s{sT}, s{sT}, {TABQ}
s_add_u32 s{sT}, s{sT}, {TAB}
s_add_u32 s{SRDT}, s{SRDW}, s{sT}
s_addc_u32 s{SRDT+1}, s{SRDW+1}, 0
s_lshl_b32 s{SRDT+2}, s{sNEND}, 7
s_mov_b32 s{SRDT+3}, 0x20000
s_lshl_b32 s{sCELL}, s{sB}, 15
s_add_u32 s{sCELL}, s{sCELL}, {PRI}
s_mov_b32 s{sK40}, {f2u(2.0**40):#x}
s_mov_b32 s{sKE}, {f2u(-LOG2E*2.0**-40):#x}
s_waitcnt lgkmcnt(0)
s_add_u32 s{NONCE}, s{NONCE}, 0x7f4a7c15
s_addc_u32 s{NONCE+1}, s{NONCE+1}, 0x9e3779b9
s_and_b32 s{sTAG24}, s{NONCE}, 0xffffff00
s_and_b32 s{sTAG14}, s{NONCE+1}, 0xfffc0000
s_barrier
""")
e(f"""
s_cmp_ge_u32 s{sW}, 10
s_cbranch_scc1 L_noedge1
s_mov_b64 exec, vcc
v_mov_b32 v20, 8
s_cmp_ge_u32 s{sW}, 4
s_cbranch_scc1 L_ew0
s_waitcnt vmcnt(5)
s_branch L_ew1
L_ew0:
s_waitcnt vmcnt(4)
L_ew1:
v_mul_u32_u24 v17, 6679, v12
v_lshrrev_b32 v17, 20, v17
v_lshlrev_b32 v18, 2, v17
ds_add_rtn_u32 v19, v18, v20 offset:{BCNT}
v_mul_u32_u24 v15, {NB}, v17
v_sub_u32 v15, v12, v15
v_lshl_or_b32 v14, v16, 16, v13
s_waitcnt lgkmcnt(0)
v_lshl_add_u32 v18, v17, 7, v19
v_cmp_gt_u32 vcc, 128, v19
s_andn2_b64 {sr(sM,2)}, exec, vcc
s_cbranch_scc1 L_secstore
L_secback:
s_mov_b64 exec, vcc
ds_write_b64 v18, v[14:15] offset:{IMG}
s_mov_b64 exec, -1
L_noedge1:
s_waitcnt lgkmcnt(0)
s_barrier
""")
stamp("img")
e(f"""
s_cmp_ge_u32 s{sW}, 8
s_cbranch_scc1 L_hi
""")
def lane_terms():
    e(f"""
    v_and_b32 v11, 15, v1
    v_lshrrev_b32 v12, 4, v1
    v_xor_b32 v8, v11, v12
    v_lshlrev_b32 v8, 4, v8
    v_lshl_add_u32 v8, v11, 8, v8
    v_bfe_u32 v9, v1, 2, 2
    v_lshl_add_u32 v9, v12, 3, v9
    v_and_b32 v10, 3, v1
    v_lshlrev_b32 v10, 3, v10
    """)
WOP=36; XA=68; XB=84; ACC=[8,16,100]; CELL=108; CRAW=116
vWa=2; vXa=3; vSa=7
def gemm(tag,sstr,ustr,mstr,post,skipcond):
    def wreads(s):
        for m in range(2):
            for u in range(2):
                e(f"ds_read_b64_tr_b16 {vr(WOP+16*m+4*s+2*u,2)}, v{vWa} offset:{s*sstr+u*ustr+m*mstr}")
    def xread(buf,t,s): e(f"ds_read_b128 {vr(buf+4*s,4)}, v{vXa+s} offset:{8192*t}")
    def mf(acc,buf,s):
        for m in range(2):
            c = "0" if s==0 else vr(acc+4*m,4)
            e(f"v_mfma_f32_16x16x32_bf16 {vr(acc+4*m,4)}, {vr(WOP+16*m+4*s,4)}, {vr(buf+4*s,4)}, {c}")
    for s in range(3): wreads(s); xread(XA,0,s)
    e("s_waitcnt lgkmcnt(10)"); mf(ACC[0],XA,0)
    wreads(3); xread(XA,0,3)
    e("s_waitcnt lgkmcnt(10)"); mf(ACC[0],XA,1)
    for s in range(4): xread(XB,1,s)
    e("s_waitcnt lgkmcnt(9)"); mf(ACC[0],XA,2)
    e("s_waitcnt lgkmcnt(4)"); mf(ACC[0],XA,3)
    e("s_waitcnt lgkmcnt(0)")
    mf(ACC[1],XB,0)
    for s in range(4): xread(XA,2,s)
    for s in range(1,4): mf(ACC[1],XB,s)
    post(0)
    e(skipcond); e(f"s_cbranch_scc1 L_{tag}_two")
    e("s_waitcnt lgkmcnt(0)")
    for s in range(4): mf(ACC[2],XA,s)
    post(1)
    e("s_nop 3")
    post(2)
    e(f"s_branch L_{tag}_done")
    e(f"L_{tag}_two:")
    post(1)
    e(f"L_{tag}_done:")
def cell_loads():
    e(f"""
    v_lshlrev_b32 v118, 4, v0
    v_add_u32 v119, 16384, v118
    buffer_load_dwordx4 {vr(CELL,4)}, v118, {sr(SRDW,4)}, s{sCELL} offen sc1
    buffer_load_dwordx4 {vr(CELL+4,4)}, v119, {sr(SRDW,4)}, s{sCELL} offen sc1
    """)
def prefill():
    e(f"""
    s_barrier
    v_mov_b32 v120, {DUMMY}
    v_mov_b32 v121, {DUMMY}
    v_mov_b32 v122, {DUMMY}
    v_mov_b32 v123, {DUMMY}
    ds_write_b128 v118, v[120:123] offset:{W1}
    ds_write_b128 v118, v[120:123] offset:{W1+16384}
    s_waitcnt lgkmcnt(0)
    s_barrier
    """)
lane_terms()
KG=2.0**40*(1-0.00135)
e(f"""
s_and_b32 s{sT}, s{sW}, 3
v_bfe_u32 v13, v1, 3, 2
v_xor_b32 v13, s{sT}, v13
v_lshl_add_u32 v13, v13, 5, v10
v_lshl_add_u32 v13, v9, 7, v13
v_add_u32 v{vWa}, {W1}, v13
s_lshr_b32 s{sT+1}, s{sW}, 2
s_lshl_b32 s{sT+1}, s{sT+1}, 4
s_add_u32 s{sT+1}, s{sT+1}, s{sT+2}
s_lshl_b32 s{sT+3}, s{sT+1}, 8
s_add_u32 s{sT+3}, s{sT+3}, {XS}
v_add_u32 v{vXa}, s{sT+3}, v8
v_xor_b32 v{vXa+1}, 64, v{vXa}
v_xor_b32 v{vXa+2}, 128, v{vXa}
v_xor_b32 v{vXa+3}, 192, v{vXa}
s_add_u32 s{sT+1}, s{sT+1}, s{sN0}
s_lshl_b32 s{sT+1}, s{sT+1}, 7
s_and_b32 s{sT}, s{sW}, 1
s_lshl_b32 s{sT}, s{sT}, 6
s_add_u32 s{sT+1}, s{sT+1}, s{sT}
v_lshlrev_b32 v{vSa}, 7, v11
v_lshl_add_u32 v{vSa}, v12, 4, v{vSa}
v_add_u32 v{vSa}, s{sT+1}, v{vSa}
s_mov_b32 s{sT+4}, {f2u(LOG2E):#x}
s_mov_b32 s{sT+5}, {f2u(KG):#x}
s_waitcnt vmcnt(0)
s_barrier
""")
stamp("B1")
PK=[24,28,32]
def post_qh(t):
    a=ACC[t]; p=PK[t]
    for i in range(4): e(f"v_mul_f32 v{a+i}, s{sT+4}, v{a+i}")
    for i in range(4): e(f"v_exp_f32 v{a+i}, v{a+i}")
    for i in range(4): e(f"v_mul_f32 v{a+4+i}, s{sT+5}, v{a+4+i}")
    for i in range(4): e(f"v_mul_f32 v{a+4+i}, v{a+i}, v{a+4+i}")
    for i in range(4): e(f"v_cvt_pk_bf16_f32 v{p+i}, v{a+i}, v{a+4+i}")
    e(f"buffer_store_dwordx4 {vr(p,4)}, v{vSa}, {sr(SRDT,4)}, 0 offen sc1")
    e(f"v_add_u32 v{vSa}, 4096, v{vSa}")
gemm("qh",4096,512,16384,post_qh,f"s_cmp_ge_u32 s{sW}, 4")
stamp("gemm")
cell_loads()
e("s_waitcnt lgkmcnt(0)")
prefill()
e("s_branch L_cells")
e("L_hi:")
e(f"""
v_subrev_u32 v8, 512, v0
v_lshlrev_b32 v9, 4, v8
v_lshrrev_b32 v10, 3, v8
v_lshlrev_b32 v11, 2, v10
ds_read_b128 v[12:15], v9 offset:{IMG}
ds_read_b32 v16, v11 offset:{BCNT}
v_lshlrev_b32 v10, 15, v10
v_and_b32 v9, 0x70, v9
v_add_u32 v10, v10, v9
s_lshl_b32 s{sT}, s2, 7
s_add_u32 s{sT}, s{sT}, {PRI}
v_mov_b32 v17, 0xff
s_sub_u32 s{sT+1}, 80, s{sT+2}
s_sub_u32 s{sT+3}, s{sT+1}, s{sT+2}
s_lshl_b32 s{sT+3}, s{sT+3}, 8
s_sub_u32 s{sT+3}, s{sT+3}, 8192
v_add_u32 v18, s{sT+3}, v6
v_add_u32 v19, 8192, v18
v_add_u32 v20, 16384, v18
s_lshl_b32 s{sT+1}, s{sT+1}, 8
s_add_u32 s{sT+1}, s{sT+1}, s{sT+4}
s_add_u32 s{sT+1}, s{sT+1}, {XS-8192}
v_lshrrev_b32 v21, 2, v8
v_lshlrev_b32 v21, 8, v21
v_lshrrev_b32 v22, 4, v1
v_and_b32 v22, 2, v22
v_xor_b32 v22, v22, v1
v_and_b32 v22, 3, v22
v_lshl_add_u32 v21, v22, 4, v21
s_lshl_b32 s{sT+3}, s{sQ}, 6
v_add_u32 v21, s{sT+3}, v21
s_waitcnt lgkmcnt(0)
v_and_or_b32 v13, v13, v17, s{sTAG24}
v_lshl_or_b32 v16, v16, 5, s{sTAG14}
v_and_or_b32 v15, v15, v17, v16
s_mov_b32 m0, s{sT+1}
buffer_store_dwordx4 v[12:15], v10, {sr(SRDW,4)}, s{sT} offen sc1
buffer_load_dwordx4 v18, {sr(SRDX,4)}, 0 offen lds
s_add_u32 m0, s{sT+1}, 8192
s_add_u32 s{sT+3}, s{sT+4}, {W2-8192}
buffer_load_dwordx4 v19, {sr(SRDX,4)}, 0 offen lds
s_mov_b32 m0, s{sT+3}
s_nop 0
global_load_lds_dwordx4 v21, {sr(pG,2)}
s_add_u32 m0, s{sT+3}, 8192
s_cmp_ge_u32 s{sW}, 12
global_load_lds_dwordx4 v21, {sr(pU,2)}
s_cbranch_scc1 L_nox2c
s_add_u32 m0, s{sT+1}, 16384
s_nop 0
buffer_load_dwordx4 v20, {sr(SRDX,4)}, 0 offen lds
s_waitcnt vmcnt(6)
s_branch L_x2c
L_nox2c:
s_waitcnt vmcnt(5)
L_x2c:
s_barrier
""")
nstamp[0]-=2 if args.stamps else 0
if args.stamps: del stampnames[-2:]
stamp("B1")
cell_loads()
lane_terms()
e(f"""
s_and_b32 s{sT}, s{sW}, 1
v_and_b32 v13, 1, v12
v_xor_b32 v13, s{sT}, v13
v_lshl_add_u32 v13, v13, 5, v10
v_lshl_add_u32 v13, v9, 6, v13
v_add_u32 v{vWa}, {W2}, v13
s_bfe_u32 s{sT+1}, s{sW}, 0x10001
s_mul_i32 s{sT+1}, s{sT+1}, 5
s_bfe_u32 s{sT+3}, s{sW}, 0x10002
s_add_u32 s{sT+1}, s{sT+1}, s{sT+3}
s_lshl_b32 s{sT+3}, s{sT+1}, 12
s_add_u32 s{sT+3}, s{sT+3}, {XS}
v_add_u32 v{vXa}, s{sT+3}, v8
v_xor_b32 v{vXa+1}, 64, v{vXa}
v_xor_b32 v{vXa+2}, 128, v{vXa}
v_xor_b32 v{vXa+3}, 192, v{vXa}
s_mul_i32 s{sT+1}, s{sT+1}, {16*NSTR}
s_lshl_b32 s{sT}, s{sT}, 6
s_add_u32 s{sT+1}, s{sT+1}, s{sT}
s_add_u32 s{sT+1}, s{sT+1}, {NS}
v_mul_u32_u24 v{vSa}, {NSTR}, v11
v_lshl_add_u32 v{vSa}, v12, 4, v{vSa}
v_add_u32 v{vSa}, s{sT+1}, v{vSa}
s_mov_b32 s{sT+4}, {f2u(-LOG2E):#x}
s_waitcnt vmcnt(2)
""")
prefill()
def post_pu(t):
    a=ACC[t]
    for i in range(4): e(f"v_mul_f32 v{a+i}, s{sT+4}, v{a+i}")
    for i in range(4): e(f"v_mul_f32 v{a+4+i}, s{sK40}, v{a+4+i}")
    e(f"ds_write_b128 v{vSa}, {vr(a,4)} offset:{t*32*NSTR}")
    e(f"ds_write_b128 v{vSa}, {vr(a+4,4)} offset:{t*32*NSTR+128}")
gemm("pu",2048,256,8192,post_pu,f"s_cmp_ge_u32 s{sW}, 12")
stamp("gemm")
vN,vM,vU,vP,vE,vC,vA,IA,IB,X,Y,xX,xY=8,12,16,20,24,28,32,36,44,52,68,84,100
vLA,vOA=2,3
e("L_cells:")
e(f"""
s_mov_b32 s{sSPIN}, 0
s_mov_b32 s{sT}, {f2u(-LOG2E):#x}
v_lshlrev_b32 v{vC}, 16, v{CRAW}
v_and_b32 v{vC+1}, 0xffff0000, v{CRAW}
v_lshlrev_b32 v{vC+2}, 16, v{CRAW+1}
v_and_b32 v{vC+3}, 0xffff0000, v{CRAW+1}
""")
for i in range(4): e(f"v_mul_f32 v{vC+i}, s{sT}, v{vC+i}")
e(f"""
v_bfe_u32 v4, v1, 2, 2
v_lshrrev_b32 v5, 4, v1
v_cmp_eq_u32 vcc, v4, v5
v_and_b32 v4, 3, v1
v_mov_b32 v5, 0x3f80
v_cndmask_b32 v4, 4, v4, vcc
""")
for i in range(4):
    e(f"v_cmp_eq_u32 vcc, {i}, v4")
    e(f"v_mov_b32 v{vE+i}, 0")
    if i==0: e("v_and_b32 v6, 7, v1")
    elif i==1: e(f"v_lshlrev_b32 v{IA+1}, 4, v6")
    elif i==2: e(f"v_lshlrev_b32 v7, 1, v6")
    else: e(f"v_mov_b32 v20, 4")
    e(f"v_cndmask_b32 v{vA+i}, 0, v5, vcc")
for r in (IA+3,IA+5,IA+7,IB+1,IB+3,IB+5,IB+7): e(f"v_mov_b32 v{r}, v{IA+1}")
c0=CELL
e(f"""
s_cmp_ge_u32 s{sW}, 8
s_cbranch_scc1 L_cellwait
v_mov_b32 v8, 1
v_mov_b32 v9, 0
v_mov_b32 v10, s{NONCE}
v_mov_b32 v11, s{NONCE+1}
s_lshl_b32 s{sT}, s2, 7
s_add_u32 s{sT}, s{sT}, {FLG}
s_mov_b64 exec, 1
s_waitcnt vmcnt(2)
ds_add_rtn_u32 v8, v9, v8 offset:{DONE}
s_waitcnt lgkmcnt(0)
v_cmp_eq_u32 vcc, 7, v8
s_cbranch_vccz L_nosig
buffer_store_dwordx2 v[10:11], v9, {sr(SRDW,4)}, s{sT} offen sc1
s_mov_b64 exec, -1
""")
stamp("sig")
e(f"""
s_waitcnt vmcnt(1)
s_branch L_cellchk
L_nosig:
s_mov_b64 exec, -1
L_cellwait:
s_waitcnt vmcnt(0)
L_cellchk:
v_xor_b32 v8, s{sTAG24}, v{c0+1}
v_xor_b32 v9, s{sTAG24}, v{c0+5}
v_xor_b32 v10, s{sTAG14}, v{c0+3}
v_xor_b32 v11, s{sTAG14}, v{c0+7}
v_or_b32 v8, v8, v9
v_or_b32 v9, v10, v11
v_lshrrev_b32 v9, 10, v9
v_or_b32 v8, v8, v9
v_cmp_lt_u32 vcc, 255, v8
s_cbranch_vccnz L_cellretry
L_cellok:
v_lshrrev_b32 v10, 8, v10
v_lshrrev_b32 v11, 8, v11
v_max_u32 v21, v10, v11
v_add_u32 v22, 16, v6
v_cmp_gt_u32 vcc, v21, v22
v_add_u32 v9, 1, v7
s_cbranch_vccnz L_secload
L_secnone:
""")
def insert(recs, masks):
    for k,(r0,rl) in enumerate(recs):
        e(f"s_mov_b64 exec, {sr(masks[k],2)}")
        e(f"v_lshlrev_b32_sdwa v{12+k}, 2, v{rl} dst_sel:DWORD dst_unused:UNUSED_PAD src0_sel:DWORD src1_sel:BYTE_0")
        e(f"ds_add_rtn_u32 v{16+k}, v{12+k}, v20 offset:{NCNT}")
    n=len(recs)
    for k,(r0,rl) in enumerate(recs):
        e(f"s_mov_b64 exec, {sr(masks[k],2)}")
        e(f"s_waitcnt lgkmcnt({n-1-k+2*k})")
        e(f"v_min_u32 v{16+k}, {4*(CAP-1)}, v{16+k}")
        e(f"v_mad_u32_u24 v{12+k}, v{12+k}, {CAP}, v{16+k}")
        e(f"ds_add_u32 v{16+k}, v20 offset:{GE}")
        e(f"ds_write_b32 v{12+k}, v{r0} offset:{LISTS}")
    e("s_mov_b64 exec, -1")
e(f"""
v_cmp_gt_u32 {sr(sM,2)}, v10, v7
v_cmp_gt_u32 {sr(sM+2,2)}, v10, v9
v_cmp_gt_u32 {sr(sM+4,2)}, v11, v7
v_cmp_gt_u32 {sr(sM+6,2)}, v11, v9
""")
insert([(c0,c0+1),(c0+2,c0+3),(c0+4,c0+5),(c0+6,c0+7)],[sM,sM+2,sM+4,sM+6])
e(f"""
s_cbranch_vccnz L_secins
L_insdone:
""")
stamp("ins")
PL=X
e(f"""
s_cmp_eq_u32 s{sW}, 15
s_cbranch_scc0 L_nopoll0
v_lshlrev_b32 v118, 9, v1
s_lshr_b32 s{sT+8}, s{sQ}, 1
s_lshl_b32 s{sT+8}, s{sT+8}, 8
s_add_u32 s{sT+8}, s{sT+8}, {FLG}
buffer_load_dwordx2 {vr(PL,2)}, v118, {sr(SRDW,4)}, s{sT+8} offen sc1
buffer_load_dwordx2 {vr(PL+2,2)}, v118, {sr(SRDW,4)}, s{sT+8} offen offset:128 sc1
L_nopoll0:
s_waitcnt lgkmcnt(0)
s_barrier
s_cmp_ge_u32 s{sW}, 3
s_cbranch_scc1 L_noorder
v_cmp_gt_u32 vcc, 160, v0
v_lshlrev_b32 v8, 2, v0
s_mov_b64 exec, vcc
ds_read_b32 v9, v8 offset:{NCNT}
s_waitcnt lgkmcnt(0)
v_cmp_lt_u32 vcc, {4*CAP}, v9
v_min_u32 v9, {4*CAP}, v9
ds_add_rtn_u32 v10, v9, v20 offset:{GE}
v_lshl_or_b32 v11, v9, 14, v0
s_cbranch_vccnz L_overflow
L_ovback:
s_waitcnt lgkmcnt(0)
v_min_u32 v10, 636, v10
ds_write_b32 v10, v11 offset:{ORDER}
s_mov_b64 exec, -1
s_or_b32 s{sT}, s2, s{sW}
s_cbranch_scc1 L_noorder
s_mov_b64 exec, 1
v_mov_b32 v8, s{NONCE}
v_mov_b32 v9, s{NONCE+1}
v_mov_b32 v10, 0
buffer_store_dwordx2 v[8:9], v10, {sr(SRDW,4)}, 0 offen sc1
s_mov_b64 exec, -1
L_noorder:
s_and_b32 s{sT}, s{sW}, 3
s_lshr_b32 s{sT+1}, s{sW}, 2
s_sub_u32 s{sTASK2}, 19, s{sT}
s_sub_u32 s{sI}, 15, s{sT}
s_cmp_eq_u32 s{sT+1}, 0
s_cselect_b32 s{sTASK2}, s{sTASK2}, 0
s_cmp_eq_u32 s{sT+1}, 1
s_cselect_b32 s{sI}, s{sT}, s{sI}
s_sub_u32 s{sT+2}, 7, s{sT}
s_cmp_eq_u32 s{sT+1}, 2
s_cselect_b32 s{sI}, s{sT+2}, s{sI}
s_add_u32 s{sT+2}, 8, s{sT}
s_cmp_eq_u32 s{sT+1}, 3
s_cselect_b32 s{sI}, s{sT+2}, s{sI}
v_lshrrev_b32 v116, 3, v1
v_lshlrev_b32 v116, 2, v116
s_lshl_b32 s{sT}, s{sN0}, 8
s_lshl_b32 s{sT+1}, s{sQ}, 6
s_add_u32 s{sT}, s{sT}, s{sT+1}
v_lshlrev_b32 v117, 3, v6
v_add_u32 v117, s{sT}, v117
v_add_u32 v119, {NS}, v{IA+1}
s_mov_b32 s{sT+9}, 1
s_waitcnt lgkmcnt(0)
s_barrier
""")
stamp("ord")
def idxreads(I,off):
    for k in (3,2,1,0): e(f"ds_read_u16 v{I+2*k}, v{vLA} offset:{off+4*k}")
def ereads(off):
    for k in range(4): e(f"ds_read_u16_d16_hi v{vE+k}, v{vLA} offset:{off+4*k+2}")
def apk(x):
    for k in (3,2,1,0):
        sel = "op_sel_hi:[0,1,1]" if k%2==0 else "op_sel:[1,0,0] op_sel_hi:[1,1,1]"
        for h in range(2):
            e(f"v_pk_fma_f32 {vr(x+4*k+2*h,2)}, {vr(vE+(k&2),2)}, {vr(vC+2*h,2)}, {vr(vP+2*h,2)} {sel}")
def exps(x,k):
    for i in range(4): e(f"v_exp_f32 v{x+4*k+i}, v{x+4*k+i}")
def gath(B,I):
    for k in (3,2,1,0): e(f"buffer_load_dwordx4 {vr(B+4*k,4)}, {vr(I+2*k,2)}, {sr(SRDG,4)}, 0 idxen offen sc1")
def mext(B,x,k): e(f"v_mfma_f32_16x16x32_bf16 {vr(x+4*k,4)}, {vr(vA,4)}, {vr(B+4*k,4)}, {vr(x+4*k,4)}")
def frac(B,x,k):
    for h in range(2): e(f"v_pk_mul_f32 {vr(vU+2*h,2)}, {vr(B+4*k+2*h,2)}, {vr(vM+2*h,2)}")
    for h in range(2):
        e(f"v_pk_fma_f32 {vr(vN+2*h,2)}, {vr(vN+2*h,2)}, {vr(x+4*k+2*h,2)}, {vr(vU+2*h,2)}")
        e(f"v_pk_mul_f32 {vr(vM+2*h,2)}, {vr(vM+2*h,2)}, {vr(x+4*k+2*h,2)}")
e(f"""
L_task:
s_lshl_b32 s{sT}, s{sI}, 5
v_add_u32 v4, s{sT}, v116
ds_read_b32 v4, v4 offset:{ORDER}
v_mov_b32 v{vM}, 1.0
v_mov_b32 v{vM+1}, 1.0
v_mov_b32 v{vM+2}, 1.0
v_mov_b32 v{vM+3}, 1.0
s_waitcnt lgkmcnt(0)
v_readfirstlane_b32 s{sT}, v4
v_and_b32 v4, 0xff, v4
s_movk_i32 s{sT+2}, {NSTR}
v_mad_u32_u24 v5, v4, s{sT+2}, v119
s_lshr_b32 s{sT}, s{sT}, 16
s_add_u32 s{sREM}, s{sT}, 3
s_lshr_b32 s{sREM}, s{sREM}, 2
s_lshl_b32 s{sT+1}, s{sREM}, 4
s_add_u32 s{sT+1}, s{sT+1}, {LISTS-48}
v_mul_u32_u24 v{vLA}, {4*CAP}, v4
v_add_u32 v{vLA}, s{sT+1}, v{vLA}
ds_read_b128 {vr(vP,4)}, v5
""")
ereads(32)
e(f"ds_read_b128 {vr(vN,4)}, v5 offset:128")
idxreads(IA,32)
idxreads(IB,16)
e(f"v_lshl_add_u32 v{vOA}, v4, 8, v117")
e(f"s_and_b32 s{sT+3}, s{sT}, 3")
e("s_waitcnt lgkmcnt(9)")
apk(xX)
ereads(16)
for k in (3,2,1,0): exps(xX,k)
e("s_waitcnt lgkmcnt(0)")
apk(xY)
ereads(0)
e(f"""
s_cmp_eq_u32 s{sT+9}, 0
s_cbranch_scc1 L_go
s_mov_b32 s{sT+9}, 0
s_cmp_eq_u32 s{sW}, 15
s_cbranch_scc0 L_nopoll1
s_mov_b32 s{sSPIN}, 0
L_poll:
s_waitcnt vmcnt(0)
v_cmp_ne_u64 vcc, {sr(NONCE,2)}, {vr(PL,2)}
v_cmp_ne_u64 {sr(sM,2)}, {sr(NONCE,2)}, {vr(PL+2,2)}
s_or_b64 vcc, vcc, {sr(sM,2)}
s_cbranch_scc0 L_nopoll1
s_add_u32 s{sSPIN}, s{sSPIN}, 1
s_cmp_ge_u32 s{sSPIN}, 0x8000
s_cbranch_scc1 L_nopoll1
buffer_load_dwordx2 {vr(PL,2)}, v118, {sr(SRDW,4)}, s{sT+8} offen sc1
buffer_load_dwordx2 {vr(PL+2,2)}, v118, {sr(SRDW,4)}, s{sT+8} offen offset:128 sc1
s_branch L_poll
L_nopoll1:
""")
stamp("pre")
e("s_barrier")
stamp("B3")
e(f"""
L_go:
s_cmp_eq_u32 s{sREM}, 0
s_cbranch_scc1 L_fin
""")
gath(X,IA); gath(Y,IB); idxreads(IA,0)
for k in (3,2,1,0): exps(xY,k)
e("s_waitcnt vmcnt(4)")
for k in (3,2,1,0): mext(X,xX,k)
e(f"""
s_nop 3
s_cmp_eq_u32 s{sT+3}, 1
s_cbranch_scc1 L_fx0
s_cmp_eq_u32 s{sT+3}, 2
s_cbranch_scc1 L_fx1
s_cmp_eq_u32 s{sT+3}, 3
s_cbranch_scc1 L_fx2
""")
def half(tag,B,x,B2,x2,tag2,last):
    for k in (3,2,1,0):
        e(f"L_f{tag}{k}:")
        frac(B,x,k)
    e(f"""
    s_sub_u32 s{sREM}, s{sREM}, 1
    s_cmp_le_u32 s{sREM}, 1
    s_cbranch_scc1 L_tail{tag}
    s_waitcnt lgkmcnt(0)
    """)
    gath(B,IA)
    apk(x)
    e(f"v_subrev_u32 v{vLA}, 16, v{vLA}")
    idxreads(IA,0); ereads(0)
    e("s_waitcnt vmcnt(4)")
    for k in (3,2,1,0):
        mext(B2,x2,k); exps(x,k)
    if last: e(f"s_branch L_f{tag2}3")
def tail(tag,B2,x2,tag2):
    e(f"""
    L_tail{tag}:
    s_cmp_eq_u32 s{sREM}, 0
    s_cbranch_scc1 L_fin
    s_waitcnt vmcnt(0)
    """)
    for k in (3,2,1,0): mext(B2,x2,k)
    e("s_nop 1")
    e(f"s_branch L_f{tag2}3")
half('x',X,xX,Y,xY,'y',False)
half('y',Y,xY,X,xX,'x',True)
tail('x',Y,xY,'y')
tail('y',X,xX,'x')
e("L_fin:")
e("s_waitcnt lgkmcnt(0)")
for i in range(4): e(f"v_rcp_f32 v{vM+i}, v{vM+i}")
for h in range(2): e(f"v_pk_mul_f32 {vr(vN+2*h,2)}, {vr(vN+2*h,2)}, {vr(vM+2*h,2)}")
for h in range(2): e(f"v_pk_mul_f32 {vr(vM+2*h,2)}, {vr(vN+2*h,2)}, {sr(sKE,2)} op_sel_hi:[1,0]")
for i in range(4): e(f"v_exp_f32 v{vM+i}, v{vM+i}")
for h in range(2): e(f"v_pk_fma_f32 {vr(vM+2*h,2)}, {vr(vM+2*h,2)}, {sr(sK40,2)}, {sr(sK40,2)} op_sel_hi:[1,0,0]")
for i in range(4): e(f"v_rcp_f32 v{vM+i}, v{vM+i}")
for h in range(2): e(f"v_pk_mul_f32 {vr(vU+2*h,2)}, {vr(vN+2*h,2)}, {vr(vM+2*h,2)}")
e(f"""
v_cvt_pk_bf16_f32 v{vU}, v{vU}, v{vU+1}
v_cvt_pk_bf16_f32 v{vU+1}, v{vU+2}, v{vU+3}
buffer_store_dwordx2 {vr(vU,2)}, v{vOA}, {sr(SRDO,4)}, 0 offen
s_mov_b32 s{sI}, s{sTASK2}
s_mov_b32 s{sTASK2}, 0
s_cmp_lg_u32 s{sI}, 0
s_cbranch_scc1 L_task
""")
stamp("end")
if args.stamps:
    e(f"""
    s_waitcnt vmcnt(0) lgkmcnt(0)
    s_lshl_b32 s{sT}, s2, 4
    s_add_u32 s{sT}, s{sT}, s{sW}
    s_lshl_b32 s{sT}, s{sT}, 6
    s_add_u32 s{sT}, s{sT}, {DBG}
    v_mov_b32 v4, 0
    """)
    for i in range(nstamp[0]): e(f"v_writelane_b32 v4, s{sST+2*i}, {i}")
    e(f"""
    v_writelane_b32 v4, s{sSPIN}, 15
    v_lshlrev_b32 v5, 2, v1
    s_mov_b64 exec, 0xffff
    buffer_store_dword v4, v5, {sr(SRDW,4)}, s{sT} offen
    """)
e("L_end:")
e("s_endpgm")
e(f"""
L_secstore:
s_mov_b64 exec, {sr(sM,2)}
v_lshlrev_b32 v21, 8, v17
v_add_u32 v21, s2, v21
v_mul_u32_u24 v21, 10240, v21
v_lshl_add_u32 v21, v19, 1, v21
v_mov_b32 v24, v14
v_mov_b32 v25, v15
v_mov_b32 v26, s{NONCE}
v_mov_b32 v27, s{NONCE+1}
s_mov_b32 s{sT+7}, {SEC}
buffer_store_dwordx4 v[24:27], v21, {sr(SRDW,4)}, s{sT+7} offen sc1
s_branch L_secback
L_cellretry:
s_add_u32 s{sSPIN}, s{sSPIN}, 1
s_cmp_ge_u32 s{sSPIN}, 0x8000
s_cbranch_scc1 L_end
s_sleep 2
buffer_load_dwordx4 {vr(CELL,4)}, v118, {sr(SRDW,4)}, s{sCELL} offen sc1
buffer_load_dwordx4 {vr(CELL+4,4)}, v119, {sr(SRDW,4)}, s{sCELL} offen sc1
s_branch L_cellwait
""")
S0,S1=X,X+4
def secissue():
    e(f"""
    v_cmp_gt_u32 {sr(sM+8,2)}, v10, v22
    v_cmp_gt_u32 {sr(sM+10,2)}, v11, v22
    v_lshl_add_u32 v4, v22, 4, v23
    v_add_u32 v5, {128*10240}, v4
    s_mov_b64 exec, {sr(sM+8,2)}
    buffer_load_dwordx4 {vr(S0,4)}, v4, {sr(SRDW,4)}, s{sT+7} offen sc1
    s_mov_b64 exec, {sr(sM+10,2)}
    buffer_load_dwordx4 {vr(S1,4)}, v5, {sr(SRDW,4)}, s{sT+7} offen sc1
    s_mov_b64 exec, -1
    """)
e(f"""
L_secload:
v_lshrrev_b32 v23, 3, v0
v_mul_u32_u24 v23, 10240, v23
s_mul_i32 s{sT+7}, s{sB}, {256*10240}
s_add_u32 s{sT+7}, s{sT+7}, {SEC}
""")
secissue()
e(f"""
s_branch L_secnone
L_secagain:
""")
secissue()
e(f"""
L_secins:
s_waitcnt vmcnt(0)
v_cmp_ne_u64 {sr(sM,2)}, {sr(NONCE,2)}, {vr(S0+2,2)}
v_cmp_ne_u64 {sr(sM+2,2)}, {sr(NONCE,2)}, {vr(S1+2,2)}
s_and_b64 {sr(sM,2)}, {sr(sM,2)}, {sr(sM+8,2)}
s_and_b64 {sr(sM+2,2)}, {sr(sM+2,2)}, {sr(sM+10,2)}
s_or_b64 {sr(sM,2)}, {sr(sM,2)}, {sr(sM+2,2)}
s_cbranch_scc0 L_secok
s_add_u32 s{sSPIN}, s{sSPIN}, 1
s_cmp_ge_u32 s{sSPIN}, 0x8000
s_cbranch_scc1 L_end
s_branch L_secagain
L_secok:
s_waitcnt lgkmcnt(0)
""")
insert([(S0,S0+1),(S1,S1+1)],[sM+8,sM+10])
e(f"""
v_add_u32 v22, 8, v22
v_cmp_gt_u32 vcc, v21, v22
s_cbranch_vccnz L_secagain
s_branch L_insdone
L_overflow:
v_mov_b32 v12, 0
ds_write_b32 v12, v20 offset:{FAIL}
s_branch L_ovback
""")
out.append('.section .rodata,"a"')
out.append('.p2align 6')
out.append(f""".amdhsa_kernel {NAME}_kernel
  .amdhsa_next_free_vgpr 128
  .amdhsa_next_free_sgpr 102
  .amdhsa_accum_offset 128
  .amdhsa_group_segment_fixed_size 0
  .amdhsa_kernarg_size 80
  .amdhsa_user_sgpr_count 2
  .amdhsa_user_sgpr_kernarg_segment_ptr 1
  .amdhsa_system_sgpr_workgroup_id_x 1
.end_amdhsa_kernel""")
if args.stamps: out.insert(0,"; stamps: "+",".join(stampnames))
print("\n".join(out))
```

```python
import sys, struct, argparse
ap=argparse.ArgumentParser()
ap.add_argument('--stamps',action='store_true')
ap.add_argument('--opt',default='')
ap.add_argument('--probe',default='')
args=ap.parse_args()
if args.probe: args.stamps=True
OPT=set(args.opt.split(','))
NAME="gather_scatter__edge_featured_mpnn_egc__graph"
out=[]
def e(s):
    for l in s.strip('\n').split('\n'):
        l=l.strip()
        if not l: continue
        out.append(l if l.endswith(':') else '    '+l)
def f2u(x): return struct.unpack('<I',struct.pack('<f',x))[0]
def vr(a,n=1): return f"v{a}" if n==1 else f"v[{a}:{a+n-1}]"
def sr(a,n=1): return f"s{a}" if n==1 else f"s[{a}:{a+n-1}]"

N=10000; E=160000; NB=157; CAP=48; EPW=625
LOG2E=1.4426950408889634
BCNT=0; NCNT=256; GE=896; DONE=1152; FAIL=1156; ORDER=1280; IMG=2048
W1=10240; LISTS=W1+64; W2=43008; XS=59392; NS=100352; NSTR=272; LDS_TOTAL=NS+160*NSTR
FLG=4096; TAB=1<<20; TABQ=N*128; PRI=8<<20; SEC=16<<20; DBG=200<<20
DUMMY=0x3fff
sW=3; pX,pE,pSRC,pDST,pU,pV,pG,pOUT=4,6,8,10,12,14,16,18
SRDX=20; SRDO=24; SRDW=28; SRDT=32; SRDG=36; NONCE=40
sQ=42; sB=43; sN0=44; sNEND=45; sT=46
sTAG24=56; sTAG14=57; sREM=58; sTASK2=59
sM=60
sK40=72; sKE=74; sSPIN=76; sCELL=77; sI=78
sST=80
nstamp=[0]; stampnames=[]
def stamp(name):
    if args.stamps:
        i=nstamp[0]; nstamp[0]+=1; stampnames.append(name); assert i<11
        e(f"s_memrealtime {sr(sST+2*i,2)}")

e(f"""
; @launch grid=(256,1,1) block=(1024,1,1) lds={LDS_TOTAL}
""")
out[:]=[l.strip() for l in out]
out.append('.amdgcn_target "amdgcn-amd-amdhsa--gfx950"')
out.append('.text')
out.append(f'.globl {NAME}_kernel')
out.append('.p2align 8')
out.append(f'.type {NAME}_kernel,@function')
out.append(f'{NAME}_kernel:')

e(f"""
s_load_dwordx16 s[4:19], s[0:1], 0
s_load_dwordx2 {sr(SRDW,2)}, s[0:1], 72
s_cmp_ge_u32 s2, 256
s_cbranch_scc1 L_end
""")
if args.stamps:
    for i in range(11): e(f"s_mov_b32 s{sST+2*i}, 0")
stamp("start")
e(f"""
v_lshrrev_b32 v2, 6, v0
v_and_b32 v1, 63, v0
v_readfirstlane_b32 s{sW}, v2
s_and_b32 s{sQ}, s2, 3
s_lshr_b32 s{sB}, s2, 2
s_mul_i32 s{sN0}, s{sB}, {NB}
s_add_u32 s{sNEND}, s{sN0}, {NB}
s_min_u32 s{sNEND}, s{sNEND}, {N}
s_mul_i32 s{sT}, s2, {EPW*4}
v_lshlrev_b32 v8, 2, v0
v_mov_b32 v9, 0
ds_write_b32 v8, v9
v_add_u32 v3, s{sT}, v8
v_lshrrev_b32 v4, 1, v3
v_lshrrev_b32 v10, 3, v0
v_lshlrev_b32 v5, 8, v10
v_and_b32 v10, 2, v10
v_lshrrev_b32 v11, 4, v0
v_and_or_b32 v10, v11, 4, v10
v_xor_b32 v10, v10, v0
v_and_b32 v10, 7, v10
v_lshl_add_u32 v5, v10, 4, v5
s_lshr_b32 s{sT+1}, s{sQ}, 1
s_lshl_b32 s{sT+1}, s{sT+1}, 7
v_add_u32 v5, s{sT+1}, v5
v_add_u32 v7, 32768, v5
v_xor_b32 v10, v11, v0
v_and_b32 v10, 15, v10
v_lshlrev_b32 v6, 8, v11
v_lshl_add_u32 v6, v10, 4, v6
s_and_b32 s{sT+2}, s{sQ}, 1
s_mul_i32 s{sT+2}, s{sT+2}, 80
s_add_u32 s{sT+3}, s{sT+2}, s{sN0}
s_lshl_b32 s{sT+3}, s{sT+3}, 8
v_add_u32 v6, s{sT+3}, v6
v_add_u32 v9, 16384, v6
; c offset
v_and_b32 v10, 7, v0
v_lshlrev_b32 v10, 3, v10
s_lshl_b32 s{sT+3}, s{sQ}, 6
s_add_u32 s{sT+3}, s{sT+3}, 65536
v_add_u32 v10, s{sT+3}, v10
s_lshl_b32 s{sT+4}, s{sW}, 10
s_add_u32 s{sT+5}, s{sT+4}, {W1}
s_lshl_b32 s{sT+6}, s{sT+2}, 8
s_add_u32 s{sT+6}, s{sT+6}, s{sT+4}
s_add_u32 s{sT+6}, s{sT+6}, {XS}
s_mov_b32 s{SRDX+2}, {N*256}
s_mov_b32 s{SRDX+3}, 0x20000
s_mov_b32 s{SRDW+2}, 0x10000000
s_mov_b32 s{SRDW+3}, 0x20000
v_cmp_gt_u32 vcc, {EPW}, v0
s_cmp_ge_u32 s{sW}, 10
s_waitcnt lgkmcnt(0)
s_load_dwordx2 {sr(NONCE,2)}, {sr(SRDW,2)}, 0
s_cbranch_scc1 L_noedge0
s_mov_b64 exec, vcc
global_load_dword v12, v3, {sr(pDST,2)}
global_load_dword v13, v3, {sr(pSRC,2)}
global_load_ushort v16, v4, {sr(pE,2)}
s_mov_b64 exec, -1
L_noedge0:
s_mov_b32 m0, s{sT+5}
s_mov_b32 s{SRDX}, s{pX}
global_load_lds_dwordx4 v7, {sr(pG,2)}
s_add_u32 m0, s{sT+5}, 16384
s_mov_b32 s{SRDX+1}, s{pX+1}
global_load_lds_dwordx4 v5, {sr(pV,2)}
s_mov_b32 m0, s{sT+6}
s_cmp_ge_u32 s{sW}, 4
buffer_load_dwordx4 v6, {sr(SRDX,4)}, 0 offen lds
global_load_dwordx2 v[116:117], v10, {sr(pG,2)}
s_cbranch_scc1 L_nox1b
s_add_u32 m0, s{sT+6}, 16384
s_nop 0
buffer_load_dwordx4 v9, {sr(SRDX,4)}, 0 offen lds
L_nox1b:
""")
stamp("issued")
e(f"""
s_mov_b32 s{SRDO}, s{pOUT}
s_mov_b32 s{SRDO+1}, s{pOUT+1}
s_lshl_b32 s{SRDO+2}, s{sNEND}, 8
s_mov_b32 s{SRDO+3}, 0x20000
s_mul_i32 s{sT}, s{sQ}, {TABQ}
s_add_u32 s{sT}, s{sT}, {TAB}
s_add_u32 s{SRDG}, s{SRDW}, s{sT}
s_addc_u32 s{SRDG+1}, s{SRDW+1}, 0
s_and_b32 s{SRDG+1}, s{SRDG+1}, 0xffff
s_or_b32 s{SRDG+1}, s{SRDG+1}, 0x800000
s_mov_b32 s{SRDG+2}, {N}
s_mov_b32 s{SRDG+3}, 0x20000
s_and_b32 s{sT}, s{sQ}, 2
s_bfe_u32 s{sT+1}, s{sW}, 0x10001
s_add_u32 s{sT}, s{sT}, s{sT+1}
s_mul_i32 s{sT}, s{sT}, {TABQ}
s_add_u32 s{sT}, s{sT}, {TAB}
s_add_u32 s{SRDT}, s{SRDW}, s{sT}
s_addc_u32 s{SRDT+1}, s{SRDW+1}, 0
s_lshl_b32 s{SRDT+2}, s{sNEND}, 7
s_mov_b32 s{SRDT+3}, 0x20000
s_lshl_b32 s{sCELL}, s{sB}, 15
s_add_u32 s{sCELL}, s{sCELL}, {PRI}
s_mov_b32 s{sK40}, {f2u(2.0**40):#x}
s_mov_b32 s{sKE}, {f2u(-LOG2E*2.0**-40):#x}
s_waitcnt lgkmcnt(0)
s_add_u32 s{NONCE}, s{NONCE}, 0x7f4a7c15
s_addc_u32 s{NONCE+1}, s{NONCE+1}, 0x9e3779b9
s_and_b32 s{sTAG24}, s{NONCE}, 0xffffff00
s_and_b32 s{sTAG14}, s{NONCE+1}, 0xfffc0000
s_barrier
""")
e(f"""
s_cmp_ge_u32 s{sW}, 10
s_cbranch_scc1 L_noedge1
s_mov_b64 exec, vcc
v_mov_b32 v20, 8
s_cmp_ge_u32 s{sW}, 4
s_cbranch_scc1 L_ew0
s_waitcnt vmcnt(5)
s_branch L_ew1
L_ew0:
s_waitcnt vmcnt(4)
L_ew1:
v_mul_u32_u24 v17, 6679, v12
v_lshrrev_b32 v17, 20, v17
v_lshlrev_b32 v18, 2, v17
ds_add_rtn_u32 v19, v18, v20 offset:{BCNT}
v_mul_u32_u24 v15, {NB}, v17
v_sub_u32 v15, v12, v15
v_lshl_or_b32 v14, v16, 16, v13
s_waitcnt lgkmcnt(0)
v_lshl_add_u32 v18, v17, 7, v19
v_cmp_gt_u32 vcc, 128, v19
s_andn2_b64 {sr(sM,2)}, exec, vcc
s_cbranch_scc1 L_secstore
L_secback:
s_mov_b64 exec, vcc
ds_write_b64 v18, v[14:15] offset:{IMG}
s_mov_b64 exec, -1
L_noedge1:
s_waitcnt lgkmcnt(0)
s_barrier
""")
stamp("img")
e(f"""
s_cmp_ge_u32 s{sW}, 8
s_cbranch_scc1 L_hi
""")
def lane_terms():
    e(f"""
    v_and_b32 v11, 15, v1
    v_lshrrev_b32 v12, 4, v1
    v_xor_b32 v8, v11, v12
    v_lshlrev_b32 v8, 4, v8
    v_lshl_add_u32 v8, v11, 8, v8
    v_bfe_u32 v9, v1, 2, 2
    v_lshl_add_u32 v9, v12, 3, v9
    v_and_b32 v10, 3, v1
    v_lshlrev_b32 v10, 3, v10
    """)
WOP=36; XA=68; XB=84; ACC=[8,16,100]; CELL=108; CRAW=116
vWa=2; vXa=3; vSa=7
def gemm(tag,sstr,ustr,mstr,post,skipcond):
    def wreads(s):
        for m in range(2):
            for u in range(2):
                e(f"ds_read_b64_tr_b16 {vr(WOP+16*m+4*s+2*u,2)}, v{vWa} offset:{s*sstr+u*ustr+m*mstr}")
    def xread(buf,t,s): e(f"ds_read_b128 {vr(buf+4*s,4)}, v{vXa+s} offset:{8192*t}")
    def mf(acc,buf,s):
        for m in range(2):
            c = "0" if s==0 else vr(acc+4*m,4)
            e(f"v_mfma_f32_16x16x32_bf16 {vr(acc+4*m,4)}, {vr(WOP+16*m+4*s,4)}, {vr(buf+4*s,4)}, {c}")
    for s in range(3): wreads(s); xread(XA,0,s)
    e("s_waitcnt lgkmcnt(10)"); mf(ACC[0],XA,0)
    wreads(3); xread(XA,0,3)
    e("s_waitcnt lgkmcnt(10)"); mf(ACC[0],XA,1)
    for s in range(4): xread(XB,1,s)
    e("s_waitcnt lgkmcnt(9)"); mf(ACC[0],XA,2)
    e("s_waitcnt lgkmcnt(4)"); mf(ACC[0],XA,3)
    e("s_waitcnt lgkmcnt(0)")
    mf(ACC[1],XB,0)
    for s in range(4): xread(XA,2,s)
    for s in range(1,4): mf(ACC[1],XB,s)
    post(0)
    e(skipcond); e(f"s_cbranch_scc1 L_{tag}_two")
    e("s_waitcnt lgkmcnt(0)")
    for s in range(4): mf(ACC[2],XA,s)
    post(1)
    e("s_nop 3")
    post(2)
    e(f"s_branch L_{tag}_done")
    e(f"L_{tag}_two:")
    post(1)
    e(f"L_{tag}_done:")
def cell_loads():
    e(f"""
    v_lshlrev_b32 v118, 4, v0
    v_add_u32 v119, 16384, v118
    buffer_load_dwordx4 {vr(CELL,4)}, v118, {sr(SRDW,4)}, s{sCELL} offen sc1
    buffer_load_dwordx4 {vr(CELL+4,4)}, v119, {sr(SRDW,4)}, s{sCELL} offen sc1
    """)
def prefill():
    e(f"""
    s_barrier
    v_mov_b32 v120, {DUMMY}
    v_mov_b32 v121, {DUMMY}
    v_mov_b32 v122, {DUMMY}
    v_mov_b32 v123, {DUMMY}
    ds_write_b128 v118, v[120:123] offset:{W1}
    ds_write_b128 v118, v[120:123] offset:{W1+16384}
    s_waitcnt lgkmcnt(0)
    s_barrier
    """)
lane_terms()
KG=2.0**40*(1-0.00135)
e(f"""
s_and_b32 s{sT}, s{sW}, 3
v_bfe_u32 v13, v1, 3, 2
v_xor_b32 v13, s{sT}, v13
v_lshl_add_u32 v13, v13, 5, v10
v_lshl_add_u32 v13, v9, 7, v13
v_add_u32 v{vWa}, {W1}, v13
s_lshr_b32 s{sT+1}, s{sW}, 2
s_lshl_b32 s{sT+1}, s{sT+1}, 4
s_add_u32 s{sT+1}, s{sT+1}, s{sT+2}
s_lshl_b32 s{sT+3}, s{sT+1}, 8
s_add_u32 s{sT+3}, s{sT+3}, {XS}
v_add_u32 v{vXa}, s{sT+3}, v8
v_xor_b32 v{vXa+1}, 64, v{vXa}
v_xor_b32 v{vXa+2}, 128, v{vXa}
v_xor_b32 v{vXa+3}, 192, v{vXa}
s_add_u32 s{sT+1}, s{sT+1}, s{sN0}
s_lshl_b32 s{sT+1}, s{sT+1}, 7
s_and_b32 s{sT}, s{sW}, 1
s_lshl_b32 s{sT}, s{sT}, 6
s_add_u32 s{sT+1}, s{sT+1}, s{sT}
v_lshlrev_b32 v{vSa}, 7, v11
v_lshl_add_u32 v{vSa}, v12, 4, v{vSa}
v_add_u32 v{vSa}, s{sT+1}, v{vSa}
s_mov_b32 s{sT+4}, {f2u(LOG2E):#x}
s_mov_b32 s{sT+5}, {f2u(KG):#x}
s_waitcnt vmcnt(0)
s_barrier
""")
stamp("B1")
PK=[24,28,32]
def post_qh(t):
    a=ACC[t]; p=PK[t]
    for i in range(4): e(f"v_mul_f32 v{a+i}, s{sT+4}, v{a+i}")
    for i in range(4): e(f"v_exp_f32 v{a+i}, v{a+i}")
    for i in range(4): e(f"v_mul_f32 v{a+4+i}, s{sT+5}, v{a+4+i}")
    for i in range(4): e(f"v_mul_f32 v{a+4+i}, v{a+i}, v{a+4+i}")
    for i in range(4): e(f"v_cvt_pk_bf16_f32 v{p+i}, v{a+i}, v{a+4+i}")
    e(f"buffer_store_dwordx4 {vr(p,4)}, v{vSa}, {sr(SRDT,4)}, 0 offen sc1")
    e(f"v_add_u32 v{vSa}, 4096, v{vSa}")
gemm("qh",4096,512,16384,post_qh,f"s_cmp_ge_u32 s{sW}, 4")
stamp("gemm")
cell_loads()
e("s_waitcnt lgkmcnt(0)")
prefill()
e("s_branch L_cells")
e("L_hi:")
e(f"""
v_subrev_u32 v8, 512, v0
v_lshlrev_b32 v9, 4, v8
v_lshrrev_b32 v10, 3, v8
v_lshlrev_b32 v11, 2, v10
ds_read_b128 v[12:15], v9 offset:{IMG}
ds_read_b32 v16, v11 offset:{BCNT}
v_lshlrev_b32 v10, 15, v10
v_and_b32 v9, 0x70, v9
v_add_u32 v10, v10, v9
s_lshl_b32 s{sT}, s2, 7
s_add_u32 s{sT}, s{sT}, {PRI}
v_mov_b32 v17, 0xff
s_sub_u32 s{sT+1}, 80, s{sT+2}
s_sub_u32 s{sT+3}, s{sT+1}, s{sT+2}
s_lshl_b32 s{sT+3}, s{sT+3}, 8
s_sub_u32 s{sT+3}, s{sT+3}, 8192
v_add_u32 v18, s{sT+3}, v6
v_add_u32 v19, 8192, v18
v_add_u32 v20, 16384, v18
s_lshl_b32 s{sT+1}, s{sT+1}, 8
s_add_u32 s{sT+1}, s{sT+1}, s{sT+4}
s_add_u32 s{sT+1}, s{sT+1}, {XS-8192}
v_lshrrev_b32 v21, 2, v8
v_lshlrev_b32 v21, 8, v21
v_lshrrev_b32 v22, 4, v1
v_and_b32 v22, 2, v22
v_xor_b32 v22, v22, v1
v_and_b32 v22, 3, v22
v_lshl_add_u32 v21, v22, 4, v21
s_lshl_b32 s{sT+3}, s{sQ}, 6
v_add_u32 v21, s{sT+3}, v21
s_waitcnt lgkmcnt(0)
v_and_or_b32 v13, v13, v17, s{sTAG24}
v_lshl_or_b32 v16, v16, 5, s{sTAG14}
v_and_or_b32 v15, v15, v17, v16
s_mov_b32 m0, s{sT+1}
buffer_store_dwordx4 v[12:15], v10, {sr(SRDW,4)}, s{sT} offen sc1
buffer_load_dwordx4 v18, {sr(SRDX,4)}, 0 offen lds
s_add_u32 m0, s{sT+1}, 8192
s_add_u32 s{sT+3}, s{sT+4}, {W2-8192}
buffer_load_dwordx4 v19, {sr(SRDX,4)}, 0 offen lds
s_mov_b32 m0, s{sT+3}
s_nop 0
global_load_lds_dwordx4 v21, {sr(pG,2)}
s_add_u32 m0, s{sT+3}, 8192
s_cmp_ge_u32 s{sW}, 12
global_load_lds_dwordx4 v21, {sr(pU,2)}
s_cbranch_scc1 L_nox2c
s_add_u32 m0, s{sT+1}, 16384
s_nop 0
buffer_load_dwordx4 v20, {sr(SRDX,4)}, 0 offen lds
s_waitcnt vmcnt(6)
s_branch L_x2c
L_nox2c:
s_waitcnt vmcnt(5)
L_x2c:
s_barrier
""")
nstamp[0]-=2 if args.stamps else 0
if args.stamps: del stampnames[-2:]
stamp("B1")
cell_loads()
lane_terms()
e(f"""
s_and_b32 s{sT}, s{sW}, 1
v_and_b32 v13, 1, v12
v_xor_b32 v13, s{sT}, v13
v_lshl_add_u32 v13, v13, 5, v10
v_lshl_add_u32 v13, v9, 6, v13
v_add_u32 v{vWa}, {W2}, v13
s_bfe_u32 s{sT+1}, s{sW}, 0x10001
s_mul_i32 s{sT+1}, s{sT+1}, 5
s_bfe_u32 s{sT+3}, s{sW}, 0x10002
s_add_u32 s{sT+1}, s{sT+1}, s{sT+3}
s_lshl_b32 s{sT+3}, s{sT+1}, 12
s_add_u32 s{sT+3}, s{sT+3}, {XS}
v_add_u32 v{vXa}, s{sT+3}, v8
v_xor_b32 v{vXa+1}, 64, v{vXa}
v_xor_b32 v{vXa+2}, 128, v{vXa}
v_xor_b32 v{vXa+3}, 192, v{vXa}
s_mul_i32 s{sT+1}, s{sT+1}, {16*NSTR}
s_lshl_b32 s{sT}, s{sT}, 6
s_add_u32 s{sT+1}, s{sT+1}, s{sT}
s_add_u32 s{sT+1}, s{sT+1}, {NS}
v_mul_u32_u24 v{vSa}, {NSTR}, v11
v_lshl_add_u32 v{vSa}, v12, 4, v{vSa}
v_add_u32 v{vSa}, s{sT+1}, v{vSa}
s_mov_b32 s{sT+4}, {f2u(-LOG2E):#x}
s_waitcnt vmcnt(2)
""")
prefill()
def post_pu(t):
    a=ACC[t]
    for i in range(4): e(f"v_mul_f32 v{a+i}, s{sT+4}, v{a+i}")
    for i in range(4): e(f"v_mul_f32 v{a+4+i}, s{sK40}, v{a+4+i}")
    e(f"ds_write_b128 v{vSa}, {vr(a,4)} offset:{t*32*NSTR}")
    e(f"ds_write_b128 v{vSa}, {vr(a+4,4)} offset:{t*32*NSTR+128}")
gemm("pu",2048,256,8192,post_pu,f"s_cmp_ge_u32 s{sW}, 12")
stamp("gemm")
vN,vM,vU,vP,vE,vC,vA,IA,IB,X,Y,xX,xY=8,12,16,20,24,28,32,36,44,52,68,84,100
vLA,vOA=2,3
e("L_cells:")
e(f"""
s_mov_b32 s{sSPIN}, 0
s_mov_b32 s{sT}, {f2u(-LOG2E):#x}
v_lshlrev_b32 v{vC}, 16, v{CRAW}
v_and_b32 v{vC+1}, 0xffff0000, v{CRAW}
v_lshlrev_b32 v{vC+2}, 16, v{CRAW+1}
v_and_b32 v{vC+3}, 0xffff0000, v{CRAW+1}
""")
for i in range(4): e(f"v_mul_f32 v{vC+i}, s{sT}, v{vC+i}")
e(f"""
v_bfe_u32 v4, v1, 2, 2
v_lshrrev_b32 v5, 4, v1
v_cmp_eq_u32 vcc, v4, v5
v_and_b32 v4, 3, v1
v_mov_b32 v5, 0x3f80
v_cndmask_b32 v4, 4, v4, vcc
""")
for i in range(4):
    e(f"v_cmp_eq_u32 vcc, {i}, v4")
    e(f"v_mov_b32 v{vE+i}, 0")
    if i==0: e("v_and_b32 v6, 7, v1")
    elif i==1: e(f"v_lshlrev_b32 v{IA+1}, 4, v6")
    elif i==2: e(f"v_lshlrev_b32 v7, 1, v6")
    else: e(f"v_mov_b32 v20, 4")
    e(f"v_cndmask_b32 v{vA+i}, 0, v5, vcc")
for r in (IA+3,IA+5,IA+7,IB+1,IB+3,IB+5,IB+7): e(f"v_mov_b32 v{r}, v{IA+1}")
c0=CELL
e(f"""
s_cmp_ge_u32 s{sW}, 8
s_cbranch_scc1 L_cellwait
v_mov_b32 v8, 1
v_mov_b32 v9, 0
v_mov_b32 v10, s{NONCE}
v_mov_b32 v11, s{NONCE+1}
s_lshl_b32 s{sT}, s2, 7
s_add_u32 s{sT}, s{sT}, {FLG}
s_mov_b64 exec, 1
s_waitcnt vmcnt(2)
ds_add_rtn_u32 v8, v9, v8 offset:{DONE}
s_waitcnt lgkmcnt(0)
v_cmp_eq_u32 vcc, 7, v8
s_cbranch_vccz L_nosig
buffer_store_dwordx2 v[10:11], v9, {sr(SRDW,4)}, s{sT} offen sc1
s_mov_b64 exec, -1
""")
stamp("sig")
e(f"""
s_waitcnt vmcnt(1)
s_branch L_cellchk
L_nosig:
s_mov_b64 exec, -1
L_cellwait:
s_waitcnt vmcnt(0)
L_cellchk:
v_xor_b32 v8, s{sTAG24}, v{c0+1}
v_xor_b32 v9, s{sTAG24}, v{c0+5}
v_xor_b32 v10, s{sTAG14}, v{c0+3}
v_xor_b32 v11, s{sTAG14}, v{c0+7}
v_or_b32 v8, v8, v9
v_or_b32 v9, v10, v11
v_lshrrev_b32 v9, 10, v9
v_or_b32 v8, v8, v9
v_cmp_lt_u32 vcc, 255, v8
s_cbranch_vccnz L_cellretry
L_cellok:
v_lshrrev_b32 v10, 8, v10
v_lshrrev_b32 v11, 8, v11
v_max_u32 v21, v10, v11
v_add_u32 v22, 16, v6
v_cmp_gt_u32 vcc, v21, v22
v_add_u32 v9, 1, v7
s_cbranch_vccnz L_secload
L_secnone:
""")
def insert(recs, masks):
    for k,(r0,rl) in enumerate(recs):
        e(f"s_mov_b64 exec, {sr(masks[k],2)}")
        e(f"v_lshlrev_b32_sdwa v{12+k}, 2, v{rl} dst_sel:DWORD dst_unused:UNUSED_PAD src0_sel:DWORD src1_sel:BYTE_0")
        e(f"ds_add_rtn_u32 v{16+k}, v{12+k}, v20 offset:{NCNT}")
    n=len(recs)
    for k,(r0,rl) in enumerate(recs):
        e(f"s_mov_b64 exec, {sr(masks[k],2)}")
        e(f"s_waitcnt lgkmcnt({n-1-k+2*k})")
        e(f"v_min_u32 v{16+k}, {4*(CAP-1)}, v{16+k}")
        e(f"v_mad_u32_u24 v{12+k}, v{12+k}, {CAP}, v{16+k}")
        e(f"ds_add_u32 v{16+k}, v20 offset:{GE}")
        e(f"ds_write_b32 v{12+k}, v{r0} offset:{LISTS}")
    e("s_mov_b64 exec, -1")
e(f"""
v_cmp_gt_u32 {sr(sM,2)}, v10, v7
v_cmp_gt_u32 {sr(sM+2,2)}, v10, v9
v_cmp_gt_u32 {sr(sM+4,2)}, v11, v7
v_cmp_gt_u32 {sr(sM+6,2)}, v11, v9
""")
insert([(c0,c0+1),(c0+2,c0+3),(c0+4,c0+5),(c0+6,c0+7)],[sM,sM+2,sM+4,sM+6])
e(f"""
s_cbranch_vccnz L_secins
L_insdone:
""")
stamp("ins")
PL=X
e(f"""
s_cmp_eq_u32 s{sW}, 15
s_cbranch_scc0 L_nopoll0
v_lshlrev_b32 v118, 9, v1
s_lshr_b32 s{sT+8}, s{sQ}, 1
s_lshl_b32 s{sT+8}, s{sT+8}, 8
s_add_u32 s{sT+8}, s{sT+8}, {FLG}
buffer_load_dwordx2 {vr(PL,2)}, v118, {sr(SRDW,4)}, s{sT+8} offen sc1
buffer_load_dwordx2 {vr(PL+2,2)}, v118, {sr(SRDW,4)}, s{sT+8} offen offset:128 sc1
L_nopoll0:
s_waitcnt lgkmcnt(0)
s_barrier
s_cmp_ge_u32 s{sW}, 3
s_cbranch_scc1 L_noorder
v_cmp_gt_u32 vcc, 160, v0
v_lshlrev_b32 v8, 2, v0
s_mov_b64 exec, vcc
ds_read_b32 v9, v8 offset:{NCNT}
s_waitcnt lgkmcnt(0)
v_cmp_lt_u32 vcc, {4*CAP}, v9
v_min_u32 v9, {4*CAP}, v9
ds_add_rtn_u32 v10, v9, v20 offset:{GE}
v_lshl_or_b32 v11, v9, 14, v0
s_cbranch_vccnz L_overflow
L_ovback:
s_waitcnt lgkmcnt(0)
v_min_u32 v10, 636, v10
ds_write_b32 v10, v11 offset:{ORDER}
s_mov_b64 exec, -1
s_or_b32 s{sT}, s2, s{sW}
s_cbranch_scc1 L_noorder
s_mov_b64 exec, 1
v_mov_b32 v8, s{NONCE}
v_mov_b32 v9, s{NONCE+1}
v_mov_b32 v10, 0
buffer_store_dwordx2 v[8:9], v10, {sr(SRDW,4)}, 0 offen sc1
s_mov_b64 exec, -1
L_noorder:
s_and_b32 s{sT}, s{sW}, 3
s_lshr_b32 s{sT+1}, s{sW}, 2
s_sub_u32 s{sTASK2}, 19, s{sT}
s_sub_u32 s{sI}, 15, s{sT}
s_cmp_eq_u32 s{sT+1}, 0
s_cselect_b32 s{sTASK2}, s{sTASK2}, 0
s_cmp_eq_u32 s{sT+1}, 1
s_cselect_b32 s{sI}, s{sT}, s{sI}
s_sub_u32 s{sT+2}, 7, s{sT}
s_cmp_eq_u32 s{sT+1}, 2
s_cselect_b32 s{sI}, s{sT+2}, s{sI}
s_add_u32 s{sT+2}, 8, s{sT}
s_cmp_eq_u32 s{sT+1}, 3
s_cselect_b32 s{sI}, s{sT+2}, s{sI}
v_lshrrev_b32 v116, 3, v1
v_lshlrev_b32 v116, 2, v116
s_lshl_b32 s{sT}, s{sN0}, 8
s_lshl_b32 s{sT+1}, s{sQ}, 6
s_add_u32 s{sT}, s{sT}, s{sT+1}
v_lshlrev_b32 v117, 3, v6
v_add_u32 v117, s{sT}, v117
v_add_u32 v119, {NS}, v{IA+1}
s_mov_b32 s{sT+9}, 1
s_waitcnt lgkmcnt(0)
s_barrier
""")
stamp("ord")
def idxreads(I,off):
    for k in (3,2,1,0): e(f"ds_read_u16 v{I+2*k}, v{vLA} offset:{off+4*k}")
def ereads(off):
    for k in range(4): e(f"ds_read_u16_d16_hi v{vE+k}, v{vLA} offset:{off+4*k+2}")
def apk(x):
    for k in (3,2,1,0):
        sel = "op_sel_hi:[0,1,1]" if k%2==0 else "op_sel:[1,0,0] op_sel_hi:[1,1,1]"
        for h in range(2):
            e(f"v_pk_fma_f32 {vr(x+4*k+2*h,2)}, {vr(vE+(k&2),2)}, {vr(vC+2*h,2)}, {vr(vP+2*h,2)} {sel}")
def exps(x,k):
    for i in range(4): e(f"v_exp_f32 v{x+4*k+i}, v{x+4*k+i}")
def gath(B,I):
    for k in (3,2,1,0): e(f"buffer_load_dwordx4 {vr(B+4*k,4)}, {vr(I+2*k,2)}, {sr(SRDG,4)}, 0 idxen offen sc1")
def mext(B,x,k): e(f"v_mfma_f32_16x16x32_bf16 {vr(x+4*k,4)}, {vr(vA,4)}, {vr(B+4*k,4)}, {vr(x+4*k,4)}")
def frac(B,x,k):
    for h in range(2): e(f"v_pk_mul_f32 {vr(vU+2*h,2)}, {vr(B+4*k+2*h,2)}, {vr(vM+2*h,2)}")
    for h in range(2):
        e(f"v_pk_fma_f32 {vr(vN+2*h,2)}, {vr(vN+2*h,2)}, {vr(x+4*k+2*h,2)}, {vr(vU+2*h,2)}")
        e(f"v_pk_mul_f32 {vr(vM+2*h,2)}, {vr(vM+2*h,2)}, {vr(x+4*k+2*h,2)}")
e(f"""
L_task:
s_lshl_b32 s{sT}, s{sI}, 5
v_add_u32 v4, s{sT}, v116
ds_read_b32 v4, v4 offset:{ORDER}
v_mov_b32 v{vM}, 1.0
v_mov_b32 v{vM+1}, 1.0
v_mov_b32 v{vM+2}, 1.0
v_mov_b32 v{vM+3}, 1.0
s_waitcnt lgkmcnt(0)
v_readfirstlane_b32 s{sT}, v4
v_and_b32 v4, 0xff, v4
s_movk_i32 s{sT+2}, {NSTR}
v_mad_u32_u24 v5, v4, s{sT+2}, v119
s_lshr_b32 s{sT}, s{sT}, 16
s_add_u32 s{sREM}, s{sT}, 3
s_lshr_b32 s{sREM}, s{sREM}, 2
s_lshl_b32 s{sT+1}, s{sREM}, 4
s_add_u32 s{sT+1}, s{sT+1}, {LISTS-48}
v_mul_u32_u24 v{vLA}, {4*CAP}, v4
v_add_u32 v{vLA}, s{sT+1}, v{vLA}
ds_read_b128 {vr(vP,4)}, v5
""")
ereads(32)
e(f"ds_read_b128 {vr(vN,4)}, v5 offset:128")
idxreads(IA,32)
idxreads(IB,16)
e(f"v_lshl_add_u32 v{vOA}, v4, 8, v117")
e(f"s_and_b32 s{sT+3}, s{sT}, 3")
e("s_waitcnt lgkmcnt(9)")
apk(xX)
ereads(16)
for k in (3,2,1,0): exps(xX,k)
e("s_waitcnt lgkmcnt(0)")
apk(xY)
ereads(0)
e(f"""
s_cmp_eq_u32 s{sT+9}, 0
s_cbranch_scc1 L_go
s_mov_b32 s{sT+9}, 0
s_cmp_eq_u32 s{sW}, 15
s_cbranch_scc0 L_nopoll1
s_mov_b32 s{sSPIN}, 0
L_poll:
s_waitcnt vmcnt(0)
v_cmp_ne_u64 vcc, {sr(NONCE,2)}, {vr(PL,2)}
v_cmp_ne_u64 {sr(sM,2)}, {sr(NONCE,2)}, {vr(PL+2,2)}
s_or_b64 vcc, vcc, {sr(sM,2)}
s_cbranch_scc0 L_nopoll1
s_add_u32 s{sSPIN}, s{sSPIN}, 1
s_cmp_ge_u32 s{sSPIN}, 0x8000
s_cbranch_scc1 L_nopoll1
buffer_load_dwordx2 {vr(PL,2)}, v118, {sr(SRDW,4)}, s{sT+8} offen sc1
buffer_load_dwordx2 {vr(PL+2,2)}, v118, {sr(SRDW,4)}, s{sT+8} offen offset:128 sc1
s_branch L_poll
L_nopoll1:
""")
stamp("pre")
e("s_barrier")
stamp("B3")
e(f"""
L_go:
s_cmp_eq_u32 s{sREM}, 0
s_cbranch_scc1 L_fin
""")
gath(X,IA); gath(Y,IB); idxreads(IA,0)
for k in (3,2,1,0): exps(xY,k)
e("s_waitcnt vmcnt(4)")
for k in (3,2,1,0): mext(X,xX,k)
e(f"""
s_nop 3
s_cmp_eq_u32 s{sT+3}, 1
s_cbranch_scc1 L_fx0
s_cmp_eq_u32 s{sT+3}, 2
s_cbranch_scc1 L_fx1
s_cmp_eq_u32 s{sT+3}, 3
s_cbranch_scc1 L_fx2
""")
def half(tag,B,x,B2,x2,tag2,last):
    for k in (3,2,1,0):
        e(f"L_f{tag}{k}:")
        frac(B,x,k)
    e(f"""
    s_sub_u32 s{sREM}, s{sREM}, 1
    s_cmp_le_u32 s{sREM}, 1
    s_cbranch_scc1 L_tail{tag}
    s_waitcnt lgkmcnt(0)
    """)
    gath(B,IA)
    apk(x)
    e(f"v_subrev_u32 v{vLA}, 16, v{vLA}")
    idxreads(IA,0); ereads(0)
    e("s_waitcnt vmcnt(4)")
    for k in (3,2,1,0):
        mext(B2,x2,k); exps(x,k)
    if last: e(f"s_branch L_f{tag2}3")
def tail(tag,B2,x2,tag2):
    e(f"""
    L_tail{tag}:
    s_cmp_eq_u32 s{sREM}, 0
    s_cbranch_scc1 L_fin
    s_waitcnt vmcnt(0)
    """)
    for k in (3,2,1,0): mext(B2,x2,k)
    e("s_nop 1")
    e(f"s_branch L_f{tag2}3")
half('x',X,xX,Y,xY,'y',False)
half('y',Y,xY,X,xX,'x',True)
tail('x',Y,xY,'y')
tail('y',X,xX,'x')
e("L_fin:")
e("s_waitcnt lgkmcnt(0)")
for i in range(4): e(f"v_rcp_f32 v{vM+i}, v{vM+i}")
for h in range(2): e(f"v_pk_mul_f32 {vr(vN+2*h,2)}, {vr(vN+2*h,2)}, {vr(vM+2*h,2)}")
for h in range(2): e(f"v_pk_mul_f32 {vr(vM+2*h,2)}, {vr(vN+2*h,2)}, {sr(sKE,2)} op_sel_hi:[1,0]")
for i in range(4): e(f"v_exp_f32 v{vM+i}, v{vM+i}")
for h in range(2): e(f"v_pk_fma_f32 {vr(vM+2*h,2)}, {vr(vM+2*h,2)}, {sr(sK40,2)}, {sr(sK40,2)} op_sel_hi:[1,0,0]")
for i in range(4): e(f"v_rcp_f32 v{vM+i}, v{vM+i}")
for h in range(2): e(f"v_pk_mul_f32 {vr(vU+2*h,2)}, {vr(vN+2*h,2)}, {vr(vM+2*h,2)}")
e(f"""
v_cvt_pk_bf16_f32 v{vU}, v{vU}, v{vU+1}
v_cvt_pk_bf16_f32 v{vU+1}, v{vU+2}, v{vU+3}
buffer_store_dwordx2 {vr(vU,2)}, v{vOA}, {sr(SRDO,4)}, 0 offen
s_mov_b32 s{sI}, s{sTASK2}
s_mov_b32 s{sTASK2}, 0
s_cmp_lg_u32 s{sI}, 0
s_cbranch_scc1 L_task
""")
stamp("end")
if args.stamps:
    e(f"""
    s_waitcnt vmcnt(0) lgkmcnt(0)
    s_lshl_b32 s{sT}, s2, 4
    s_add_u32 s{sT}, s{sT}, s{sW}
    s_lshl_b32 s{sT}, s{sT}, 6
    s_add_u32 s{sT}, s{sT}, {DBG}
    v_mov_b32 v4, 0
    """)
    for i in range(nstamp[0]): e(f"v_writelane_b32 v4, s{sST+2*i}, {i}")
    e(f"""
    v_writelane_b32 v4, s{sSPIN}, 15
    v_lshlrev_b32 v5, 2, v1
    s_mov_b64 exec, 0xffff
    buffer_store_dword v4, v5, {sr(SRDW,4)}, s{sT} offen
    """)
if args.probe:
    pn,pwg,pw=args.probe.split(',')
    pi=stampnames.index(pn)
    e(f"""
    s_cmp_eq_u32 s2, {pwg}
    s_cbranch_scc0 L_end
    s_cmp_eq_u32 s{sW}, {pw}
    s_cbranch_scc0 L_end
    s_add_u32 s{sT}, s{sST+2*pi}, 4000
    L_probe:
    s_memrealtime {sr(sT+2,2)}
    s_waitcnt lgkmcnt(0)
    s_sub_u32 s{sT+1}, s{sT+2}, s{sT}
    s_cmp_lt_i32 s{sT+1}, 0
    s_cbranch_scc1 L_probe
    """)
e("L_end:")
e("s_endpgm")
e(f"""
L_secstore:
s_mov_b64 exec, {sr(sM,2)}
v_lshlrev_b32 v21, 8, v17
v_add_u32 v21, s2, v21
v_mul_u32_u24 v21, 10240, v21
v_lshl_add_u32 v21, v19, 1, v21
v_mov_b32 v24, v14
v_mov_b32 v25, v15
v_mov_b32 v26, s{NONCE}
v_mov_b32 v27, s{NONCE+1}
s_mov_b32 s{sT+7}, {SEC}
buffer_store_dwordx4 v[24:27], v21, {sr(SRDW,4)}, s{sT+7} offen sc1
s_branch L_secback
L_cellretry:
s_add_u32 s{sSPIN}, s{sSPIN}, 1
s_cmp_ge_u32 s{sSPIN}, 0x8000
s_cbranch_scc1 L_end
s_sleep 2
buffer_load_dwordx4 {vr(CELL,4)}, v118, {sr(SRDW,4)}, s{sCELL} offen sc1
buffer_load_dwordx4 {vr(CELL+4,4)}, v119, {sr(SRDW,4)}, s{sCELL} offen sc1
s_branch L_cellwait
""")
S0,S1=X,X+4
def secissue():
    e(f"""
    v_cmp_gt_u32 {sr(sM+8,2)}, v10, v22
    v_cmp_gt_u32 {sr(sM+10,2)}, v11, v22
    v_lshl_add_u32 v4, v22, 4, v23
    v_add_u32 v5, {128*10240}, v4
    s_mov_b64 exec, {sr(sM+8,2)}
    buffer_load_dwordx4 {vr(S0,4)}, v4, {sr(SRDW,4)}, s{sT+7} offen sc1
    s_mov_b64 exec, {sr(sM+10,2)}
    buffer_load_dwordx4 {vr(S1,4)}, v5, {sr(SRDW,4)}, s{sT+7} offen sc1
    s_mov_b64 exec, -1
    """)
e(f"""
L_secload:
v_lshrrev_b32 v23, 3, v0
v_mul_u32_u24 v23, 10240, v23
s_mul_i32 s{sT+7}, s{sB}, {256*10240}
s_add_u32 s{sT+7}, s{sT+7}, {SEC}
""")
secissue()
e(f"""
s_branch L_secnone
L_secagain:
""")
secissue()
e(f"""
L_secins:
s_waitcnt vmcnt(0)
v_cmp_ne_u64 {sr(sM,2)}, {sr(NONCE,2)}, {vr(S0+2,2)}
v_cmp_ne_u64 {sr(sM+2,2)}, {sr(NONCE,2)}, {vr(S1+2,2)}
s_and_b64 {sr(sM,2)}, {sr(sM,2)}, {sr(sM+8,2)}
s_and_b64 {sr(sM+2,2)}, {sr(sM+2,2)}, {sr(sM+10,2)}
s_or_b64 {sr(sM,2)}, {sr(sM,2)}, {sr(sM+2,2)}
s_cbranch_scc0 L_secok
s_add_u32 s{sSPIN}, s{sSPIN}, 1
s_cmp_ge_u32 s{sSPIN}, 0x8000
s_cbranch_scc1 L_end
s_branch L_secagain
L_secok:
s_waitcnt lgkmcnt(0)
""")
insert([(S0,S0+1),(S1,S1+1)],[sM+8,sM+10])
e(f"""
v_add_u32 v22, 8, v22
v_cmp_gt_u32 vcc, v21, v22
s_cbranch_vccnz L_secagain
s_branch L_insdone
L_overflow:
v_mov_b32 v12, 0
ds_write_b32 v12, v20 offset:{FAIL}
s_branch L_ovback
""")
out.append('.section .rodata,"a"')
out.append('.p2align 6')
out.append(f""".amdhsa_kernel {NAME}_kernel
  .amdhsa_next_free_vgpr 128
  .amdhsa_next_free_sgpr 102
  .amdhsa_accum_offset 128
  .amdhsa_group_segment_fixed_size 0
  .amdhsa_kernarg_size 80
  .amdhsa_user_sgpr_count 2
  .amdhsa_user_sgpr_kernarg_segment_ptr 1
  .amdhsa_system_sgpr_workgroup_id_x 1
.end_amdhsa_kernel""")
if args.stamps: out.insert(0,"; stamps: "+",".join(stampnames))
print("\n".join(out))
```

```python
import sys, struct, argparse
ap=argparse.ArgumentParser()
ap.add_argument('--stamps',action='store_true')
ap.add_argument('--opt',default='')
ap.add_argument('--base',type=int,default=1)
ap.add_argument('--skip',default='x1,edge,issued')
ap.add_argument('--probe',default='')
args=ap.parse_args()
if args.probe: args.stamps=True
OPT=set(args.opt.split(','))
NAME="gather_scatter__edge_featured_mpnn_egc__graph"
out=[]
def e(s):
    for l in s.strip('\n').split('\n'):
        l=l.strip()
        if not l: continue
        out.append(l if l.endswith(':') else '    '+l)
def f2u(x): return struct.unpack('<I',struct.pack('<f',x))[0]
def vr(a,n=1): return f"v{a}" if n==1 else f"v[{a}:{a+n-1}]"
def sr(a,n=1): return f"s{a}" if n==1 else f"s[{a}:{a+n-1}]"

N=10000; E=160000; NB=157; CAP=40; EPW=625
LOG2E=1.4426950408889634
BCNT=0; NCNT=256; TIE=896; DONE=1152; FAIL=1156; ORDER=1280; GE=2048; LSTR=CAP+1; PAD=3392; LISTS=PAD+64; IMG=4096
W1=29696; assert LISTS+160*LSTR*4<=W1 and GE+(CAP+1)*32<=PAD; W2=W1+32768; XS=W2+16384; NS=XS+40960; NSTR=272; LDS_TOTAL=NS+160*NSTR
TAB=args.base<<20; TABQ=N*128; PRI=TAB+(6<<20); FLG=TAB+(9<<20); SEC=(1<<20) if args.base>=170 else TAB+(10<<20); DBG=200<<20
assert SEC+16384*10240<=(256<<20) and FLG+32768<=(256<<20)
DUMMY=0x3fff
sW=3; pX,pE,pSRC,pDST,pU,pV,pG,pOUT=4,6,8,10,12,14,16,18
SRDX=20; SRDO=24; SRDW=28; SRDT=32; SRDG=36; NONCE=40
sQ=42; sB=43; sN0=44; sNEND=45; sT=46
sTAG24=56; sTAG14=57; sREM=58; sTASK2=59
sM=60
sK40=72; sKE=74; sSPIN=76; sCELL=77; sI=78
sST=80
nstamp=[0]; stampnames=[]
SKIP=set(args.skip.split(','))
def stamp(name):
    if args.stamps and name not in SKIP:
        if name not in stampnames: stampnames.append(name); nstamp[0]+=1
        i=stampnames.index(name); assert i<11
        e(f"{'s_memtime' if 'cyc' in OPT else 's_memrealtime'} {sr(sST+2*i,2)}")

e(f"""
; @launch grid=(256,1,1) block=(1024,1,1) lds={LDS_TOTAL}
""")
out[:]=[l.strip() for l in out]
out.append('.amdgcn_target "amdgcn-amd-amdhsa--gfx950"')
out.append('.text')
out.append(f'.globl {NAME}_kernel')
out.append('.p2align 8')
out.append(f'.type {NAME}_kernel,@function')
out.append(f'{NAME}_kernel:')

e(f"""
s_load_dwordx16 s[4:19], s[0:1], 0
s_load_dwordx2 {sr(SRDW,2)}, s[0:1], 72
s_cmp_ge_u32 s2, 256
s_cbranch_scc1 L_end
""")
if args.stamps:
    for i in range(11): e(f"s_mov_b32 s{sST+2*i}, 0")
stamp("start")
e(f"""
v_lshrrev_b32 v2, 6, v0
v_and_b32 v1, 63, v0
v_readfirstlane_b32 s{sW}, v2
s_mov_b32 s79, s2
""")
if 'map2' in OPT: e(f"""
s_and_b32 s2, s79, 0xf2
s_bfe_u32 s{sT}, s79, 0x10003
s_or_b32 s2, s2, s{sT}
s_and_b32 s{sT}, s79, 1
s_lshl_b32 s{sT}, s{sT}, 2
s_or_b32 s2, s2, s{sT}
s_and_b32 s{sT}, s79, 4
s_lshl_b32 s{sT}, s{sT}, 1
s_or_b32 s2, s2, s{sT}
""")
e(f"""
s_and_b32 s{sQ}, s2, 3
s_lshr_b32 s{sB}, s2, 2
s_mul_i32 s{sN0}, s{sB}, {NB}
s_add_u32 s{sNEND}, s{sN0}, {NB}
s_min_u32 s{sNEND}, s{sNEND}, {N}
s_mul_i32 s{sT}, s2, {EPW*4}
v_lshlrev_b32 v8, 2, v0
v_mov_b32 v120, {DUMMY}
v_cmp_le_u32 vcc, {PAD}, v8
v_mov_b32 v121, {DUMMY}
v_mov_b32 v122, {DUMMY}
v_cndmask_b32 v9, 0, v120, vcc
ds_write_b32 v8, v9
v_mov_b32 v123, {DUMMY}
v_lshlrev_b32 v118, 4, v0
v_add_u32 v3, s{sT}, v8
v_lshrrev_b32 v4, 1, v3
v_lshrrev_b32 v10, 3, v0
v_lshlrev_b32 v5, 8, v10
v_and_b32 v10, 2, v10
v_lshrrev_b32 v11, 4, v0
v_and_or_b32 v10, v11, 4, v10
v_xor_b32 v10, v10, v0
v_and_b32 v10, 7, v10
v_lshl_add_u32 v5, v10, 4, v5
s_lshr_b32 s{sT+1}, s{sQ}, 1
s_lshl_b32 s{sT+1}, s{sT+1}, 7
v_add_u32 v5, s{sT+1}, v5
v_add_u32 v7, 32768, v5
v_xor_b32 v10, v11, v0
v_and_b32 v10, 15, v10
v_lshlrev_b32 v6, 8, v11
v_lshl_add_u32 v6, v10, 4, v6
s_and_b32 s{sT+2}, s{sQ}, 1
s_mul_i32 s{sT+2}, s{sT+2}, 80
s_add_u32 s{sT+3}, s{sT+2}, s{sN0}
s_lshl_b32 s{sT+3}, s{sT+3}, 8
v_add_u32 v6, s{sT+3}, v6
v_add_u32 v9, 4096, v6
; c offset
v_and_b32 v10, 7, v0
v_lshlrev_b32 v10, 3, v10
s_lshl_b32 s{sT+3}, s{sQ}, 6
s_add_u32 s{sT+3}, s{sT+3}, 65536
v_add_u32 v116, s{sT+3}, v10
s_bfe_u32 s{sT+3}, s79, 0x40003
s_lshl_b32 s{sT+3}, s{sT+3}, 12
s_add_u32 s{sT+3}, s{sT+3}, s{sT+1}
v_lshlrev_b32 v10, 8, v1
v_add_u32 v10, s{sT+3}, v10
s_lshl_b32 s{sT+4}, s{sW}, 10
s_add_u32 s{sT+5}, s{sT+4}, {W1}
s_lshl_b32 s{sT+6}, s{sT+2}, 8
s_add_u32 s{sT+6}, s{sT+6}, s{sT+4}
s_add_u32 s{sT+6}, s{sT+6}, {XS}
s_mov_b32 s{SRDX+2}, {N*256}
s_mov_b32 s{SRDX+3}, 0x20000
s_mov_b32 s{SRDW+2}, 0x10000000
s_mov_b32 s{SRDW+3}, 0x20000
v_cmp_gt_u32 vcc, {EPW}, v0
s_cmp_ge_u32 s{sW}, 10
s_waitcnt lgkmcnt(0)
s_load_dwordx2 {sr(NONCE,2)}, {sr(SRDW,2)}, 0
s_cbranch_scc1 L_noedge0
s_mov_b64 exec, vcc
global_load_dword v12, v3, {sr(pDST,2)}
global_load_dword v13, v3, {sr(pSRC,2)}
global_load_ushort v16, v4, {sr(pE,2)}
s_mov_b64 exec, -1
L_noedge0:
s_mov_b32 s{SRDX}, s{pX}
s_mov_b32 s{SRDX+1}, s{pX+1}
s_mov_b32 m0, s{sT+6}
s_cmp_eq_u32 s{sW}, 10
s_cbranch_scc0 L_nopf
s_bitcmp1_b32 s79, 7
s_cbranch_scc1 L_pfuv
s_mov_b64 exec, 0xffff
global_load_dword v127, v10, {sr(pG,2)}
s_mov_b64 exec, -1
s_branch L_nopf
L_pfuv:
s_bitcmp1_b32 s79, 6
s_cselect_b64 {sr(sM,2)}, {sr(pU,2)}, {sr(pV,2)}
v_and_b32 v10, 0x7fff, v10
s_mov_b64 exec, 0xffff
global_load_dword v127, v10, {sr(sM,2)}
s_mov_b64 exec, -1
L_nopf:
s_barrier
s_cmp_lt_u32 s{sW}, 12
buffer_load_dwordx4 v6, {sr(SRDX,4)}, 0 offen lds
s_cbranch_scc1 L_nox1b
s_add_u32 m0, s{sT+6}, 4096
s_nop 0
buffer_load_dwordx4 v9, {sr(SRDX,4)}, 0 offen lds
L_nox1b:
ds_write_b128 v118, v[120:123] offset:{W1-16384}
ds_write_b32 v8, v120 offset:{IMG+8192}
""")
stamp("issued")
e(f"""
s_mov_b32 s{SRDO}, s{pOUT}
s_mov_b32 s{SRDO+1}, s{pOUT+1}
s_lshl_b32 s{SRDO+2}, s{sNEND}, 8
s_mov_b32 s{SRDO+3}, 0x20000
s_mul_i32 s{sT}, s{sQ}, {TABQ}
s_add_u32 s{sT}, s{sT}, {TAB}
s_add_u32 s{SRDG}, s{SRDW}, s{sT}
s_addc_u32 s{SRDG+1}, s{SRDW+1}, 0
s_and_b32 s{SRDG+1}, s{SRDG+1}, 0xffff
s_or_b32 s{SRDG+1}, s{SRDG+1}, 0x800000
s_mov_b32 s{SRDG+2}, {0 if 'nogather' in OPT else N}
s_mov_b32 s{SRDG+3}, 0x20000
s_and_b32 s{sT}, s{sQ}, 2
s_bfe_u32 s{sT+1}, s{sW}, 0x10001
s_add_u32 s{sT}, s{sT}, s{sT+1}
s_mul_i32 s{sT}, s{sT}, {TABQ}
s_add_u32 s{sT}, s{sT}, {TAB}
s_add_u32 s{SRDT}, s{SRDW}, s{sT}
s_addc_u32 s{SRDT+1}, s{SRDW+1}, 0
s_lshl_b32 s{SRDT+2}, s{sNEND}, 7
s_mov_b32 s{SRDT+3}, 0x20000
s_lshl_b32 s{sCELL}, s{sB}, 15
s_add_u32 s{sCELL}, s{sCELL}, {PRI}
s_mov_b32 s{sK40}, {f2u(2.0**40):#x}
s_mov_b32 s{sKE}, {f2u(-LOG2E*2.0**-40):#x}
s_waitcnt lgkmcnt(0)
s_add_u32 s{NONCE}, s{NONCE}, 0x7f4a7c15
s_addc_u32 s{NONCE+1}, s{NONCE+1}, 0x9e3779b9
s_and_b32 s{sTAG24}, s{NONCE}, 0xffffff00
s_and_b32 s{sTAG14}, s{NONCE+1}, 0xfffc0000
""")
e(f"""
s_cmp_ge_u32 s{sW}, 10
s_cbranch_scc1 L_noedge1
s_mov_b64 exec, vcc
v_mov_b32 v20, 8
s_waitcnt vmcnt(1)
""")
stamp("edge")
e(f"""
v_mul_u32_u24 v17, 6679, v12
v_lshrrev_b32 v17, 20, v17
v_lshlrev_b32 v18, 2, v17
ds_add_rtn_u32 v19, v18, v20 offset:{BCNT}
v_mul_u32_u24 v15, {NB}, v17
v_sub_u32 v15, v12, v15
v_lshl_or_b32 v14, v16, 16, v13
s_waitcnt lgkmcnt(0)
v_lshl_add_u32 v18, v17, 7, v19
v_cmp_gt_u32 vcc, 128, v19
s_andn2_b64 {sr(sM,2)}, exec, vcc
s_cbranch_scc1 L_secstore
L_secback:
s_mov_b64 exec, vcc
ds_write_b64 v18, v[14:15] offset:{IMG}
s_mov_b64 exec, -1
L_noedge1:
s_waitcnt lgkmcnt(0)
s_barrier
""")
stamp("img")
e(f"""
s_cmp_ge_u32 s{sW}, 8
s_cbranch_scc1 L_hi
""")
def w1_loads():
    e(f"""
    s_mov_b32 m0, s{sT+5}
    s_nop 0
    global_load_lds_dwordx4 v7, {sr(pG,2)}
    s_add_u32 m0, s{sT+5}, 16384
    s_nop 0
    global_load_lds_dwordx4 v5, {sr(pV,2)}
    """)
def lane_terms():
    e(f"""
    v_and_b32 v11, 15, v1
    v_lshrrev_b32 v12, 4, v1
    v_xor_b32 v8, v11, v12
    v_lshlrev_b32 v8, 4, v8
    v_lshl_add_u32 v8, v11, 8, v8
    v_bfe_u32 v9, v1, 2, 2
    v_lshl_add_u32 v9, v12, 3, v9
    v_and_b32 v10, 3, v1
    v_lshlrev_b32 v10, 3, v10
    """)
WOP=36; XA=68; XB=84; ACC=[8,16,100]; CELL=108; CRAW=116
vWa=2; vXa=3; vSa=7
def gemm(tag,sstr,ustr,mstr,post,skipcond):
    def wreads(s):
        for m in range(2):
            for u in range(2):
                e(f"ds_read_b64_tr_b16 {vr(WOP+16*m+4*s+2*u,2)}, v{vWa} offset:{s*sstr+u*ustr+m*mstr}")
    def xread(buf,t,s): e(f"ds_read_b128 {vr(buf+4*s,4)}, v{vXa+s} offset:{8192*t}")
    def mf(acc,buf,s):
        for m in range(2):
            c = "0" if s==0 else vr(acc+4*m,4)
            e(f"v_mfma_f32_16x16x32_bf16 {vr(acc+4*m,4)}, {vr(WOP+16*m+4*s,4)}, {vr(buf+4*s,4)}, {c}")
    for s in range(3): wreads(s); xread(XA,0,s)
    e("s_waitcnt lgkmcnt(10)"); mf(ACC[0],XA,0)
    wreads(3); xread(XA,0,3)
    e("s_waitcnt lgkmcnt(10)"); mf(ACC[0],XA,1)
    for s in range(4): xread(XB,1,s)
    e("s_waitcnt lgkmcnt(9)"); mf(ACC[0],XA,2)
    e("s_waitcnt lgkmcnt(4)"); mf(ACC[0],XA,3)
    e("s_waitcnt lgkmcnt(0)")
    mf(ACC[1],XB,0)
    for s in range(4): xread(XA,2,s)
    for s in range(1,4): mf(ACC[1],XB,s)
    post(0)
    e(skipcond); e(f"s_cbranch_scc1 L_{tag}_two")
    e("s_waitcnt lgkmcnt(0)")
    for s in range(4): mf(ACC[2],XA,s)
    post(1)
    e("s_nop 3")
    post(2)
    e(f"s_branch L_{tag}_done")
    e(f"L_{tag}_two:")
    post(1)
    e(f"L_{tag}_done:")
def cell_loads():
    e(f"""
    v_add_u32 v119, 16384, v118
    global_load_dwordx2 v[116:117], v116, {sr(pG,2)}
    buffer_load_dwordx4 {vr(CELL,4)}, v118, {sr(SRDW,4)}, s{sCELL} offen sc1
    buffer_load_dwordx4 {vr(CELL+4,4)}, v119, {sr(SRDW,4)}, s{sCELL} offen sc1
    """)
w1_loads()
lane_terms()
KG=2.0**40*(1-0.00135)
e(f"""
s_and_b32 s{sT}, s{sW}, 3
v_bfe_u32 v13, v1, 3, 2
v_xor_b32 v13, s{sT}, v13
v_lshl_add_u32 v13, v13, 5, v10
v_lshl_add_u32 v13, v9, 7, v13
v_add_u32 v{vWa}, {W1}, v13
s_lshr_b32 s{sT+1}, s{sW}, 2
s_lshl_b32 s{sT+1}, s{sT+1}, 4
s_add_u32 s{sT+1}, s{sT+1}, s{sT+2}
s_lshl_b32 s{sT+3}, s{sT+1}, 8
s_add_u32 s{sT+3}, s{sT+3}, {XS}
v_add_u32 v{vXa}, s{sT+3}, v8
v_xor_b32 v{vXa+1}, 64, v{vXa}
v_xor_b32 v{vXa+2}, 128, v{vXa}
v_xor_b32 v{vXa+3}, 192, v{vXa}
s_add_u32 s{sT+1}, s{sT+1}, s{sN0}
s_lshl_b32 s{sT+1}, s{sT+1}, 7
s_and_b32 s{sT}, s{sW}, 1
s_lshl_b32 s{sT}, s{sT}, 6
s_add_u32 s{sT+1}, s{sT+1}, s{sT}
v_lshlrev_b32 v{vSa}, 7, v11
v_lshl_add_u32 v{vSa}, v12, 4, v{vSa}
v_add_u32 v{vSa}, s{sT+1}, v{vSa}
s_mov_b32 s{sT+4}, {f2u(LOG2E):#x}
s_mov_b32 s{sT+5}, {f2u(KG):#x}
""")
if args.stamps and 'x1' not in SKIP: e("s_waitcnt vmcnt(2)"); stamp("x1")
e("s_waitcnt vmcnt(0)")
e("s_barrier")
stamp("B1")
PK=[24,28,32]
def post_qh(t):
    a=ACC[t]; p=PK[t]
    for i in range(4): e(f"v_mul_f32 v{a+i}, s{sT+4}, v{a+i}")
    for i in range(4): e(f"v_exp_f32 v{a+i}, v{a+i}")
    for i in range(4): e(f"v_mul_f32 v{a+4+i}, s{sT+5}, v{a+4+i}")
    for i in range(4): e(f"v_mul_f32 v{a+4+i}, v{a+i}, v{a+4+i}")
    for i in range(4): e(f"v_cvt_pk_bf16_f32 v{p+i}, v{a+i}, v{a+4+i}")
    e(f"buffer_store_dwordx4 {vr(p,4)}, v{vSa}, {sr(SRDT,4)}, 0 offen sc1")
    e(f"v_add_u32 v{vSa}, 4096, v{vSa}")
gemm("qh",4096,512,16384,post_qh,f"s_cmp_ge_u32 s{sW}, 4")
stamp("gemm")
cell_loads()
e("s_barrier")
e("s_branch L_cells")
e("L_hi:")
e(f"""
v_subrev_u32 v8, 512, v0
v_lshlrev_b32 v9, 4, v8
v_lshrrev_b32 v10, 3, v8
v_lshlrev_b32 v11, 2, v10
ds_read_b128 v[12:15], v9 offset:{IMG}
ds_read_b32 v16, v11 offset:{BCNT}
""")
w1_loads()
e(f"""
v_lshlrev_b32 v10, 15, v10
ds_write_b128 v9, v[120:123] offset:{IMG}
v_and_b32 v9, 0x70, v9
v_add_u32 v10, v10, v9
s_lshl_b32 s{sT}, s2, 7
s_add_u32 s{sT}, s{sT}, {PRI}
v_mov_b32 v17, 0xff
s_sub_u32 s{sT+1}, 80, s{sT+2}
s_sub_u32 s{sT+3}, s{sT+1}, s{sT+2}
s_lshl_b32 s{sT+3}, s{sT+3}, 8
s_sub_u32 s{sT+3}, s{sT+3}, 8192
v_add_u32 v18, s{sT+3}, v6
v_add_u32 v19, 8192, v18
v_add_u32 v20, 16384, v18
s_lshl_b32 s{sT+1}, s{sT+1}, 8
s_add_u32 s{sT+1}, s{sT+1}, s{sT+4}
s_add_u32 s{sT+1}, s{sT+1}, {XS-8192}
v_lshrrev_b32 v21, 2, v8
v_lshlrev_b32 v21, 8, v21
v_lshrrev_b32 v22, 4, v1
v_and_b32 v22, 2, v22
v_xor_b32 v22, v22, v1
v_and_b32 v22, 3, v22
v_lshl_add_u32 v21, v22, 4, v21
s_lshl_b32 s{sT+3}, s{sQ}, 6
v_add_u32 v21, s{sT+3}, v21
s_waitcnt lgkmcnt(1)
v_and_or_b32 v13, v13, v17, s{sTAG24}
v_lshl_or_b32 v16, v16, 5, s{sTAG14}
v_and_or_b32 v15, v15, v17, v16
s_add_u32 s{sT+8}, s{sT+4}, {W2-8192}
s_mov_b32 s{sT+9}, s{sT+1}
buffer_store_dwordx4 v[12:15], v10, {sr(SRDW,4)}, s{sT} offen sc1
""")
def w2_loads():
    e(f"""
    s_mov_b32 m0, s{sT+8}
    s_nop 0
    global_load_lds_dwordx4 v21, {sr(pG,2)}
    s_add_u32 m0, s{sT+8}, 8192
    s_nop 0
    global_load_lds_dwordx4 v21, {sr(pU,2)}
    """)
def x2_loads(after):
    e(f"""
    s_mov_b32 m0, s{sT+9}
    s_nop 0
    buffer_load_dwordx4 v18, {sr(SRDX,4)}, 0 offen lds
    s_add_u32 m0, s{sT+9}, 8192
    s_cmp_ge_u32 s{sW}, 12
    buffer_load_dwordx4 v19, {sr(SRDX,4)}, 0 offen lds
    s_cbranch_scc1 L_nox2c
    s_add_u32 m0, s{sT+9}, 16384
    s_nop 0
    buffer_load_dwordx4 v20, {sr(SRDX,4)}, 0 offen lds
    """)
    if after is not None:
        e(f"""
        s_waitcnt vmcnt({after+3})
        s_branch L_x2c
        L_nox2c:
        s_waitcnt vmcnt({after+2})
        L_x2c:
        """)
    else: e("L_nox2c:")
e("s_waitcnt lgkmcnt(0)")
if 'ordA' in OPT:
    x2_loads(1); e("s_barrier"); w2_loads()
elif 'ordC' in OPT:
    e("s_waitcnt vmcnt(1)"); e("s_barrier"); w2_loads(); x2_loads(None)
else:
    w2_loads(); e("s_waitcnt vmcnt(3)"); e("s_barrier"); x2_loads(None)
stamp("B1")
lane_terms()
e(f"""
s_and_b32 s{sT}, s{sW}, 1
v_and_b32 v13, 1, v12
v_xor_b32 v13, s{sT}, v13
v_lshl_add_u32 v13, v13, 5, v10
v_lshl_add_u32 v13, v9, 6, v13
v_add_u32 v{vWa}, {W2}, v13
s_bfe_u32 s{sT+1}, s{sW}, 0x10001
s_mul_i32 s{sT+1}, s{sT+1}, 5
s_bfe_u32 s{sT+3}, s{sW}, 0x10002
s_add_u32 s{sT+1}, s{sT+1}, s{sT+3}
s_lshl_b32 s{sT+3}, s{sT+1}, 12
s_add_u32 s{sT+3}, s{sT+3}, {XS}
v_add_u32 v{vXa}, s{sT+3}, v8
v_xor_b32 v{vXa+1}, 64, v{vXa}
v_xor_b32 v{vXa+2}, 128, v{vXa}
v_xor_b32 v{vXa+3}, 192, v{vXa}
s_mul_i32 s{sT+1}, s{sT+1}, {16*NSTR}
s_lshl_b32 s{sT}, s{sT}, 6
s_add_u32 s{sT+1}, s{sT+1}, s{sT}
s_add_u32 s{sT+1}, s{sT+1}, {NS}
v_mul_u32_u24 v{vSa}, {NSTR}, v11
v_lshl_add_u32 v{vSa}, v12, 4, v{vSa}
v_add_u32 v{vSa}, s{sT+1}, v{vSa}
s_mov_b32 s{sT+4}, {f2u(-LOG2E):#x}
""")
e("s_waitcnt vmcnt(0)")
e("s_barrier")
stamp("B1b")
cell_loads()
def post_pu(t):
    a=ACC[t]
    for i in range(4): e(f"v_mul_f32 v{a+i}, s{sT+4}, v{a+i}")
    for i in range(4): e(f"v_mul_f32 v{a+4+i}, s{sK40}, v{a+4+i}")
    e(f"ds_write_b128 v{vSa}, {vr(a,4)} offset:{t*32*NSTR}")
    e(f"ds_write_b128 v{vSa}, {vr(a+4,4)} offset:{t*32*NSTR+128}")
gemm("pu",2048,256,8192,post_pu,f"s_cmp_ge_u32 s{sW}, 12")
stamp("gemm")
vN,vM,vU,vP,vE,vC,vA,IA,IB,X,Y,xX,xY=8,12,16,20,24,28,32,36,44,52,68,84,100
vLA,vOA=2,3
e("L_cells:")
e(f"""
s_mov_b32 s{sSPIN}, 0
v_bfe_u32 v4, v1, 2, 2
v_lshrrev_b32 v5, 4, v1
v_cmp_eq_u32 vcc, v4, v5
v_and_b32 v4, 3, v1
v_mov_b32 v5, 0x3f80
v_cndmask_b32 v4, 4, v4, vcc
""")
for i in range(4):
    e(f"v_cmp_eq_u32 vcc, {i}, v4")
    e(f"v_mov_b32 v{vE+i}, 0")
    if i==0: e("v_and_b32 v6, 7, v1")
    elif i==1: e(f"v_lshlrev_b32 v{IA+1}, 4, v6")
    elif i==2: e(f"v_lshlrev_b32 v7, 1, v6")
    else: e(f"v_mov_b32 v20, 4")
    e(f"v_cndmask_b32 v{vA+i}, 0, v5, vcc")
for r in (IA+3,IA+5,IA+7,IB+1,IB+3,IB+5,IB+7): e(f"v_mov_b32 v{r}, v{IA+1}")
c0=CELL
e(f"""
v_lshlrev_b32 v124, 2, v6
v_mov_b32 v125, 0x3f80
s_cmp_ge_u32 s{sW}, 8
s_cbranch_scc1 L_cellwait
v_mov_b32 v8, 1
v_mov_b32 v9, 0
v_mov_b32 v10, s{NONCE}
v_mov_b32 v11, s{NONCE+1}
s_lshl_b32 s{sT}, s2, 7
s_add_u32 s{sT}, s{sT}, {FLG}
s_mov_b64 exec, 1
s_waitcnt vmcnt(3)
ds_add_rtn_u32 v8, v9, v8 offset:{DONE}
s_waitcnt lgkmcnt(0)
v_cmp_eq_u32 vcc, 7, v8
s_cbranch_vccz L_nosig
buffer_store_dwordx2 v[10:11], v9, {sr(SRDW,4)}, s{sT} offen sc1
s_mov_b64 exec, -1
""")
stamp("sig")
e(f"""
s_waitcnt vmcnt(1)
s_branch L_cellchk
L_nosig:
s_mov_b64 exec, -1
L_cellwait:
s_waitcnt vmcnt(0)
L_cellchk:
v_xor_b32 v8, s{sTAG24}, v{c0+1}
v_xor_b32 v9, s{sTAG24}, v{c0+5}
v_xor_b32 v10, s{sTAG14}, v{c0+3}
v_xor_b32 v11, s{sTAG14}, v{c0+7}
v_or_b32 v8, v8, v9
v_or_b32 v9, v10, v11
v_lshrrev_b32 v9, 10, v9
v_or_b32 v8, v8, v9
v_cmp_lt_u32 vcc, 255, v8
s_cbranch_vccnz L_cellretry
L_cellok:
v_lshrrev_b32 v10, 8, v10
v_lshrrev_b32 v11, 8, v11
v_max_u32 v21, v10, v11
v_add_u32 v22, 16, v6
v_cmp_gt_u32 vcc, v21, v22
v_add_u32 v9, 1, v7
s_cbranch_vccnz L_secload
L_secnone:
""")
def insert(recs, masks):
    for k,(r0,rl) in enumerate(recs):
        e(f"s_mov_b64 exec, {sr(masks[k],2)}")
        e(f"v_lshlrev_b32_sdwa v{12+k}, 2, v{rl} dst_sel:DWORD dst_unused:UNUSED_PAD src0_sel:DWORD src1_sel:BYTE_0")
        e(f"ds_add_rtn_u32 v{16+k}, v{12+k}, v20 offset:{NCNT}")
    n=len(recs)
    for k,(r0,rl) in enumerate(recs):
        e(f"s_mov_b64 exec, {sr(masks[k],2)}")
        e(f"s_waitcnt lgkmcnt({n-1-k+2*k})")
        e(f"v_min_u32 v{16+k}, {4*(CAP-1)}, v{16+k}")
        e(f"v_mad_u32_u24 v{12+k}, v{12+k}, {LSTR}, v{16+k}")
        e(f"v_lshl_add_u32 v{16+k}, v{16+k}, 3, v124")
        e(f"ds_add_u32 v{16+k}, v20 offset:{GE}")
        e(f"ds_write_b32 v{12+k}, v{r0} offset:{LISTS}")
    e("s_mov_b64 exec, -1")
e(f"""
v_cmp_gt_u32 {sr(sM,2)}, v10, v7
v_cmp_gt_u32 {sr(sM+2,2)}, v10, v9
v_cmp_gt_u32 {sr(sM+4,2)}, v11, v7
v_cmp_gt_u32 {sr(sM+6,2)}, v11, v9
""")
insert([(c0,c0+1),(c0+2,c0+3),(c0+4,c0+5),(c0+6,c0+7)],[sM,sM+2,sM+4,sM+6])
e(f"""
s_cbranch_vccnz L_secins
L_insdone:
s_mov_b32 s{sT}, {f2u(-LOG2E):#x}
v_lshlrev_b32 v{vC}, 16, v{CRAW}
v_and_b32 v{vC+1}, 0xffff0000, v{CRAW}
v_lshlrev_b32 v{vC+2}, 16, v{CRAW+1}
v_and_b32 v{vC+3}, 0xffff0000, v{CRAW+1}
""")
for i in range(4): e(f"v_mul_f32 v{vC+i}, s{sT}, v{vC+i}")
stamp("ins")
PL=X
e(f"""
s_cmp_eq_u32 s{sW}, 15
s_cbranch_scc0 L_nopoll0
v_lshlrev_b32 v118, 9, v1
s_lshr_b32 s{sT+8}, s{sQ}, 1
s_lshl_b32 s{sT+8}, s{sT+8}, 8
s_add_u32 s{sT+8}, s{sT+8}, {FLG}
buffer_load_dwordx2 {vr(PL,2)}, v118, {sr(SRDW,4)}, s{sT+8} offen sc1
buffer_load_dwordx2 {vr(PL+2,2)}, v118, {sr(SRDW,4)}, s{sT+8} offen offset:128 sc1
L_nopoll0:
s_waitcnt lgkmcnt(0)
s_barrier
s_cmp_ge_u32 s{sW}, 3
s_cbranch_scc1 L_noorder
v_cmp_gt_u32 vcc, 160, v0
v_lshlrev_b32 v8, 2, v0
s_mov_b64 exec, vcc
ds_read_b32 v9, v8 offset:{NCNT}
s_waitcnt lgkmcnt(0)
v_cmp_lt_u32 vcc, {4*CAP}, v9
v_min_u32 v9, {4*CAP}, v9
ds_add_rtn_u32 v10, v9, v20 offset:{TIE}
v_lshlrev_b32 v8, 3, v9
ds_read_b128 v[12:15], v8 offset:{GE}
ds_read_b128 v[16:19], v8 offset:{GE+16}
v_lshl_or_b32 v11, v9, 14, v0
s_cbranch_vccnz L_overflow
L_ovback:
s_waitcnt lgkmcnt(1)
v_add3_u32 v10, v10, v12, v13
v_add3_u32 v10, v10, v14, v15
s_waitcnt lgkmcnt(0)
v_add3_u32 v10, v10, v16, v17
v_add3_u32 v10, v10, v18, v19
v_min_u32 v10, 636, v10
ds_write_b32 v10, v11 offset:{ORDER}
s_mov_b64 exec, -1
s_or_b32 s{sT}, s2, s{sW}
s_cbranch_scc1 L_noorder
s_mov_b64 exec, 1
v_mov_b32 v8, s{NONCE}
v_mov_b32 v9, s{NONCE+1}
v_mov_b32 v10, 0
buffer_store_dwordx2 v[8:9], v10, {sr(SRDW,4)}, 0 offen sc1
s_mov_b64 exec, -1
L_noorder:
s_and_b32 s{sT}, s{sW}, 3
s_lshr_b32 s{sT+1}, s{sW}, 2
s_sub_u32 s{sTASK2}, 19, s{sT}
s_sub_u32 s{sI}, 15, s{sT}
s_cmp_eq_u32 s{sT+1}, 0
s_cselect_b32 s{sTASK2}, s{sTASK2}, 0
s_cmp_eq_u32 s{sT+1}, 1
s_cselect_b32 s{sI}, s{sT}, s{sI}
s_sub_u32 s{sT+2}, 7, s{sT}
s_cmp_eq_u32 s{sT+1}, 2
s_cselect_b32 s{sI}, s{sT+2}, s{sI}
s_add_u32 s{sT+2}, 8, s{sT}
s_cmp_eq_u32 s{sT+1}, 3
s_cselect_b32 s{sI}, s{sT+2}, s{sI}
v_lshrrev_b32 v116, 3, v1
v_lshlrev_b32 v116, 2, v116
s_lshl_b32 s{sT}, s{sN0}, 8
s_lshl_b32 s{sT+1}, s{sQ}, 6
s_add_u32 s{sT}, s{sT}, s{sT+1}
v_lshlrev_b32 v117, 3, v6
v_add_u32 v117, s{sT}, v117
v_add_u32 v119, {NS}, v{IA+1}
s_mov_b32 s{sT+9}, 1
s_waitcnt lgkmcnt(0)
s_barrier
""")
stamp("ord")
def idxreads(I,off):
    for k in (3,2,1,0): e(f"ds_read_u16 v{I+2*k}, v{vLA} offset:{off+4*k}")
def ereads(off):
    for k in range(4): e(f"ds_read_u16_d16_hi v{vE+k}, v{vLA} offset:{off+4*k+2}")
def apk(x):
    for k in (3,2,1,0):
        sel = "op_sel_hi:[0,1,1]" if k%2==0 else "op_sel:[1,0,0] op_sel_hi:[1,1,1]"
        for h in range(2):
            e(f"v_pk_fma_f32 {vr(x+4*k+2*h,2)}, {vr(vE+(k&2),2)}, {vr(vC+2*h,2)}, {vr(vP+2*h,2)} {sel}")
def exps(x,k):
    if 'novalu' in OPT: return
    for i in range(4): e(f"v_exp_f32 v{x+4*k+i}, v{x+4*k+i}")
def gath(B,I):
    for k in (3,2,1,0): e(f"buffer_load_dwordx4 {vr(B+4*k,4)}, {vr(I+2*k,2)}, {sr(SRDG,4)}, 0 idxen offen{'' if 'nosc1' in OPT else ' sc1'}")
def mext(B,x,k):
    if 'dot' in OPT:
        for i in range(4): e(f"v_dot2c_f32_bf16 v{x+4*k+i}, v125, v{B+4*k+i}")
    else: e(f"v_mfma_f32_16x16x32_bf16 {vr(x+4*k,4)}, {vr(vA,4)}, {vr(B+4*k,4)}, {vr(x+4*k,4)}")
def frac(B,x,k):
    if 'novalu' in OPT: e("s_nop 7"); return
    for h in range(2): e(f"v_pk_mul_f32 {vr(vU+2*h,2)}, {vr(B+4*k+2*h,2)}, {vr(vM+2*h,2)}")
    for h in range(2):
        e(f"v_pk_fma_f32 {vr(vN+2*h,2)}, {vr(vN+2*h,2)}, {vr(x+4*k+2*h,2)}, {vr(vU+2*h,2)}")
        e(f"v_pk_mul_f32 {vr(vM+2*h,2)}, {vr(vM+2*h,2)}, {vr(x+4*k+2*h,2)}")
e(f"""
L_task:
s_lshl_b32 s{sT}, s{sI}, 5
v_add_u32 v4, s{sT}, v116
ds_read_b32 v4, v4 offset:{ORDER}
v_mov_b32 v{vM}, 1.0
v_mov_b32 v{vM+1}, 1.0
v_mov_b32 v{vM+2}, 1.0
v_mov_b32 v{vM+3}, 1.0
s_waitcnt lgkmcnt(0)
v_readfirstlane_b32 s{sT}, v4
v_and_b32 v4, 0xff, v4
s_movk_i32 s{sT+2}, {NSTR}
v_mad_u32_u24 v5, v4, s{sT+2}, v119
s_lshr_b32 s{sT}, s{sT}, 16
s_add_u32 s{sREM}, s{sT}, 3
s_lshr_b32 s{sREM}, s{sREM}, 2
s_lshl_b32 s{sT+1}, s{sREM}, 4
s_add_u32 s{sT+1}, s{sT+1}, {LISTS-48}
v_mul_u32_u24 v{vLA}, {4*LSTR}, v4
v_add_u32 v{vLA}, s{sT+1}, v{vLA}
ds_read_b128 {vr(vP,4)}, v5
""")
ereads(32)
e(f"ds_read_b128 {vr(vN,4)}, v5 offset:128")
idxreads(IA,32)
idxreads(IB,16)
e(f"v_lshl_add_u32 v{vOA}, v4, 8, v117")
e(f"s_and_b32 s{sT+3}, s{sT}, 3")
e("s_waitcnt lgkmcnt(9)")
apk(xX)
ereads(16)
for k in (3,2,1,0): exps(xX,k)
e("s_waitcnt lgkmcnt(0)")
apk(xY)
ereads(0)
e(f"""
s_cmp_eq_u32 s{sT+9}, 0
s_cbranch_scc1 L_go
s_mov_b32 s{sT+9}, 0
s_cmp_eq_u32 s{sW}, 15
s_cbranch_scc0 L_nopoll1
s_mov_b32 s{sSPIN}, 0
L_poll:
s_waitcnt vmcnt(0)
v_cmp_ne_u64 vcc, {sr(NONCE,2)}, {vr(PL,2)}
v_cmp_ne_u64 {sr(sM,2)}, {sr(NONCE,2)}, {vr(PL+2,2)}
s_or_b64 vcc, vcc, {sr(sM,2)}
s_cbranch_scc0 L_nopoll1
s_add_u32 s{sSPIN}, s{sSPIN}, 1
s_cmp_ge_u32 s{sSPIN}, 0x8000
s_cbranch_scc1 L_nopoll1
buffer_load_dwordx2 {vr(PL,2)}, v118, {sr(SRDW,4)}, s{sT+8} offen sc1
buffer_load_dwordx2 {vr(PL+2,2)}, v118, {sr(SRDW,4)}, s{sT+8} offen offset:128 sc1
s_branch L_poll
L_nopoll1:
""")
stamp("pre")
e("s_barrier")
stamp("B3")
e(f"""
L_go:
s_cmp_eq_u32 s{sREM}, 0
s_cbranch_scc1 L_fin
""")
gath(X,IA); gath(Y,IB); idxreads(IA,0)
for k in (3,2,1,0): exps(xY,k)
e("s_waitcnt vmcnt(4)")
for k in (3,2,1,0): mext(X,xX,k)
e(f"""
s_nop 3
s_cmp_eq_u32 s{sT+3}, 1
s_cbranch_scc1 L_fx0
s_cmp_eq_u32 s{sT+3}, 2
s_cbranch_scc1 L_fx1
s_cmp_eq_u32 s{sT+3}, 3
s_cbranch_scc1 L_fx2
""")
def half(tag,B,x,B2,x2,tag2,last):
    for k in (3,2,1,0):
        e(f"L_f{tag}{k}:")
        frac(B,x,k)
    e(f"""
    s_sub_u32 s{sREM}, s{sREM}, 1
    s_cmp_le_u32 s{sREM}, 1
    s_cbranch_scc1 L_tail{tag}
    s_waitcnt lgkmcnt(0)
    """)
    gath(B,IA)
    apk(x)
    e(f"v_subrev_u32 v{vLA}, 16, v{vLA}")
    idxreads(IA,0); ereads(0)
    e("s_waitcnt vmcnt(4)")
    for k in (3,2,1,0):
        mext(B2,x2,k); exps(x,k)
    if last: e(f"s_branch L_f{tag2}3")
def tail(tag,B2,x2,tag2):
    e(f"""
    L_tail{tag}:
    s_cmp_eq_u32 s{sREM}, 0
    s_cbranch_scc1 L_fin
    s_waitcnt vmcnt(0)
    """)
    for k in (3,2,1,0): mext(B2,x2,k)
    e("s_nop 1")
    e(f"s_branch L_f{tag2}3")
half('x',X,xX,Y,xY,'y',False)
half('y',Y,xY,X,xX,'x',True)
tail('x',Y,xY,'y')
tail('y',X,xX,'x')
e("L_fin:")
e("s_waitcnt lgkmcnt(0)")
for i in range(4): e(f"v_rcp_f32 v{vM+i}, v{vM+i}")
for h in range(2): e(f"v_pk_mul_f32 {vr(vN+2*h,2)}, {vr(vN+2*h,2)}, {vr(vM+2*h,2)}")
for h in range(2): e(f"v_pk_mul_f32 {vr(vM+2*h,2)}, {vr(vN+2*h,2)}, {sr(sKE,2)} op_sel_hi:[1,0]")
for i in range(4): e(f"v_exp_f32 v{vM+i}, v{vM+i}")
for h in range(2): e(f"v_pk_fma_f32 {vr(vM+2*h,2)}, {vr(vM+2*h,2)}, {sr(sK40,2)}, {sr(sK40,2)} op_sel_hi:[1,0,0]")
for i in range(4): e(f"v_rcp_f32 v{vM+i}, v{vM+i}")
for h in range(2): e(f"v_pk_mul_f32 {vr(vU+2*h,2)}, {vr(vN+2*h,2)}, {vr(vM+2*h,2)}")
e(f"""
v_cvt_pk_bf16_f32 v{vU}, v{vU}, v{vU+1}
v_cvt_pk_bf16_f32 v{vU+1}, v{vU+2}, v{vU+3}
buffer_store_dwordx2 {vr(vU,2)}, v{vOA}, {sr(SRDO,4)}, 0 offen{' sc1' if 'osc1' in OPT else ' nt' if 'ont' in OPT else ''}
s_mov_b32 s{sI}, s{sTASK2}
s_mov_b32 s{sTASK2}, 0
s_cmp_lg_u32 s{sI}, 0
s_cbranch_scc1 L_task
""")
stamp("end")
if args.stamps:
    e(f"""
    s_waitcnt vmcnt(0) lgkmcnt(0)
    s_lshl_b32 s{sT}, s2, 4
    s_add_u32 s{sT}, s{sT}, s{sW}
    s_lshl_b32 s{sT}, s{sT}, 6
    s_add_u32 s{sT}, s{sT}, {DBG}
    v_mov_b32 v4, 0
    """)
    for i in range(nstamp[0]): e(f"v_writelane_b32 v4, s{sST+2*i}, {i}")
    e(f"""
    v_writelane_b32 v4, s{sSPIN}, 15
    v_lshlrev_b32 v5, 2, v1
    s_mov_b64 exec, 0xffff
    buffer_store_dword v4, v5, {sr(SRDW,4)}, s{sT} offen
    """)
if args.probe:
    pn,pwg,pw=args.probe.split(',')
    pi=stampnames.index(pn)
    e(f"""
    s_cmp_eq_u32 s2, {pwg}
    s_cbranch_scc0 L_end
    s_cmp_eq_u32 s{sW}, {pw}
    s_cbranch_scc0 L_end
    s_add_u32 s{sT}, s{sST+2*pi}, 4000
    L_probe:
    s_memrealtime {sr(sT+2,2)}
    s_waitcnt lgkmcnt(0)
    s_sub_u32 s{sT+1}, s{sT+2}, s{sT}
    s_cmp_lt_i32 s{sT+1}, 0
    s_cbranch_scc1 L_probe
    """)
e("L_end:")
e("s_endpgm")
e(f"""
L_secstore:
s_mov_b64 exec, {sr(sM,2)}
v_lshlrev_b32 v21, 8, v17
v_add_u32 v21, s2, v21
v_mul_u32_u24 v21, 10240, v21
v_lshl_add_u32 v21, v19, 1, v21
v_mov_b32 v24, v14
v_mov_b32 v25, v15
v_mov_b32 v26, s{NONCE}
v_mov_b32 v27, s{NONCE+1}
s_mov_b32 s{sT+7}, {SEC}
buffer_store_dwordx4 v[24:27], v21, {sr(SRDW,4)}, s{sT+7} offen sc1
s_branch L_secback
L_cellretry:
s_add_u32 s{sSPIN}, s{sSPIN}, 1
s_cmp_ge_u32 s{sSPIN}, 0x8000
s_cbranch_scc1 L_end
s_sleep 2
buffer_load_dwordx4 {vr(CELL,4)}, v118, {sr(SRDW,4)}, s{sCELL} offen sc1
buffer_load_dwordx4 {vr(CELL+4,4)}, v119, {sr(SRDW,4)}, s{sCELL} offen sc1
s_branch L_cellwait
""")
S0,S1=X,X+4
def secissue():
    e(f"""
    v_cmp_gt_u32 {sr(sM+8,2)}, v10, v22
    v_cmp_gt_u32 {sr(sM+10,2)}, v11, v22
    v_lshl_add_u32 v4, v22, 4, v23
    v_add_u32 v5, {128*10240}, v4
    s_mov_b64 exec, {sr(sM+8,2)}
    buffer_load_dwordx4 {vr(S0,4)}, v4, {sr(SRDW,4)}, s{sT+7} offen sc1
    s_mov_b64 exec, {sr(sM+10,2)}
    buffer_load_dwordx4 {vr(S1,4)}, v5, {sr(SRDW,4)}, s{sT+7} offen sc1
    s_mov_b64 exec, -1
    """)
e(f"""
L_secload:
v_lshrrev_b32 v23, 3, v0
v_mul_u32_u24 v23, 10240, v23
s_mul_i32 s{sT+7}, s{sB}, {256*10240}
s_add_u32 s{sT+7}, s{sT+7}, {SEC}
""")
secissue()
e(f"""
s_branch L_secnone
L_secagain:
""")
secissue()
e(f"""
L_secins:
s_waitcnt vmcnt(0)
v_cmp_ne_u64 {sr(sM,2)}, {sr(NONCE,2)}, {vr(S0+2,2)}
v_cmp_ne_u64 {sr(sM+2,2)}, {sr(NONCE,2)}, {vr(S1+2,2)}
s_and_b64 {sr(sM,2)}, {sr(sM,2)}, {sr(sM+8,2)}
s_and_b64 {sr(sM+2,2)}, {sr(sM+2,2)}, {sr(sM+10,2)}
s_or_b64 {sr(sM,2)}, {sr(sM,2)}, {sr(sM+2,2)}
s_cbranch_scc0 L_secok
s_add_u32 s{sSPIN}, s{sSPIN}, 1
s_cmp_ge_u32 s{sSPIN}, 0x8000
s_cbranch_scc1 L_end
s_branch L_secagain
L_secok:
s_waitcnt lgkmcnt(0)
""")
insert([(S0,S0+1),(S1,S1+1)],[sM+8,sM+10])
e(f"""
v_add_u32 v22, 8, v22
v_cmp_gt_u32 vcc, v21, v22
s_cbranch_vccnz L_secagain
s_branch L_insdone
L_overflow:
v_mov_b32 v8, 0
ds_write_b32 v8, v20 offset:{FAIL}
s_branch L_ovback
""")
out.append('.section .rodata,"a"')
out.append('.p2align 6')
out.append(f""".amdhsa_kernel {NAME}_kernel
  .amdhsa_next_free_vgpr 128
  .amdhsa_next_free_sgpr 102
  .amdhsa_accum_offset 128
  .amdhsa_group_segment_fixed_size 0
  .amdhsa_kernarg_size 80
  .amdhsa_user_sgpr_count 2
  .amdhsa_user_sgpr_kernarg_segment_ptr 1
  .amdhsa_system_sgpr_workgroup_id_x 1
.end_amdhsa_kernel""")
if args.stamps: out.insert(0,"; stamps: "+",".join(stampnames))
print("\n".join(out))
```

```python
import sys, struct, argparse
ap=argparse.ArgumentParser()
ap.add_argument('--stamps',action='store_true')
ap.add_argument('--opt',default='')
ap.add_argument('--wstep',type=int,default=480)
ap.add_argument('--wfirst',type=int,default=896)
ap.add_argument('--base',type=int,default=1)
ap.add_argument('--skip',default='x1,edge,issued')
ap.add_argument('--probe',default='')
args=ap.parse_args()
if args.probe: args.stamps=True
OPT=set(args.opt.split(','))
NAME="gather_scatter__edge_featured_mpnn_egc__graph"
out=[]
def e(s):
    for l in s.strip('\n').split('\n'):
        l=l.strip()
        if not l: continue
        out.append(l if l.endswith(':') else '    '+l)
def f2u(x): return struct.unpack('<I',struct.pack('<f',x))[0]
def vr(a,n=1): return f"v{a}" if n==1 else f"v[{a}:{a+n-1}]"
def sr(a,n=1): return f"s{a}" if n==1 else f"s[{a}:{a+n-1}]"

N=10000; E=160000; NB=157; CAP=40; EPW=625
LOG2E=1.4426950408889634
BCNT=0; NCNT=256; TIE=896; DONE=1152; FAIL=1156; ORDER=1280; GE=2048; LSTR=CAP+1; PAD=3392; LISTS=PAD+64; IMG=4096
W1=29696; assert LISTS+160*LSTR*4<=W1 and GE+(CAP+1)*32<=PAD; W2=W1+32768; XS=W2+16384; NS=XS+40960; NSTR=272; LDS_TOTAL=NS+160*NSTR
TAB=args.base<<20; TABQ=N*128; PRI=TAB+(6<<20); FLG=TAB+(9<<20); SEC=(1<<20) if args.base>=170 else TAB+(10<<20); DBG=200<<20
assert SEC+16384*10240<=(256<<20) and FLG+32768<=(256<<20)
DUMMY=0x3fff
sW=3; pX,pE,pSRC,pDST,pU,pV,pG,pOUT=4,6,8,10,12,14,16,18
SRDX=20; SRDO=24; SRDW=28; SRDT=32; SRDG=36; NONCE=40
sQ=42; sB=43; sN0=44; sNEND=45; sT=46
sTAG24=56; sTAG14=57; sREM=58; sTASK2=59
sM=60
sK40=72; sKE=74; sSPIN=76; sCELL=77; sI=78
sST=80
nstamp=[0]; stampnames=[]
SKIP=set(args.skip.split(','))
def stamp(name):
    if args.stamps and name not in SKIP:
        if name not in stampnames: stampnames.append(name); nstamp[0]+=1
        i=stampnames.index(name); assert i<11
        e(f"{'s_memtime' if 'cyc' in OPT else 's_memrealtime'} {sr(sST+2*i,2)}")

e(f"""
; @launch grid=(256,1,1) block=(1024,1,1) lds={LDS_TOTAL}
""")
out[:]=[l.strip() for l in out]
out.append('.amdgcn_target "amdgcn-amd-amdhsa--gfx950"')
out.append('.text')
out.append(f'.globl {NAME}_kernel')
out.append('.p2align 8')
out.append(f'.type {NAME}_kernel,@function')
out.append(f'{NAME}_kernel:')

e(f"""
s_load_dwordx16 s[4:19], s[0:1], 0
s_load_dwordx2 {sr(SRDW,2)}, s[0:1], 72
s_cmp_ge_u32 s2, 256
s_cbranch_scc1 L_end
""")
if args.stamps:
    for i in range(11): e(f"s_mov_b32 s{sST+2*i}, 0")
stamp("start")
e(f"""
v_lshrrev_b32 v2, 6, v0
v_and_b32 v1, 63, v0
v_readfirstlane_b32 s{sW}, v2
s_mov_b32 s79, s2
""")
if 'map2' in OPT: e(f"""
s_and_b32 s2, s79, 0xf2
s_bfe_u32 s{sT}, s79, 0x10003
s_or_b32 s2, s2, s{sT}
s_and_b32 s{sT}, s79, 1
s_lshl_b32 s{sT}, s{sT}, 2
s_or_b32 s2, s2, s{sT}
s_and_b32 s{sT}, s79, 4
s_lshl_b32 s{sT}, s{sT}, 1
s_or_b32 s2, s2, s{sT}
""")
e(f"""
s_and_b32 s{sQ}, s2, 3
s_lshr_b32 s{sB}, s2, 2
s_mul_i32 s{sN0}, s{sB}, {NB}
s_add_u32 s{sNEND}, s{sN0}, {NB}
s_min_u32 s{sNEND}, s{sNEND}, {N}
s_mul_i32 s{sT}, s2, {EPW*4}
v_lshlrev_b32 v8, 2, v0
v_mov_b32 v120, {DUMMY}
v_cmp_le_u32 vcc, {PAD}, v8
v_mov_b32 v121, {DUMMY}
v_mov_b32 v122, {DUMMY}
v_cndmask_b32 v9, 0, v120, vcc
ds_write_b32 v8, v9
v_mov_b32 v123, {DUMMY}
v_lshlrev_b32 v118, 4, v0
v_add_u32 v3, s{sT}, v8
v_lshrrev_b32 v4, 1, v3
v_lshrrev_b32 v10, 3, v0
v_lshlrev_b32 v5, 8, v10
v_and_b32 v10, 2, v10
v_lshrrev_b32 v11, 4, v0
v_and_or_b32 v10, v11, 4, v10
v_xor_b32 v10, v10, v0
v_and_b32 v10, 7, v10
v_lshl_add_u32 v5, v10, 4, v5
s_lshr_b32 s{sT+1}, s{sQ}, 1
s_lshl_b32 s{sT+1}, s{sT+1}, 7
v_add_u32 v5, s{sT+1}, v5
v_add_u32 v7, 32768, v5
v_xor_b32 v10, v11, v0
v_and_b32 v10, 15, v10
v_lshlrev_b32 v6, 8, v11
v_lshl_add_u32 v6, v10, 4, v6
s_and_b32 s{sT+2}, s{sQ}, 1
s_mul_i32 s{sT+2}, s{sT+2}, 80
s_add_u32 s{sT+3}, s{sT+2}, s{sN0}
s_lshl_b32 s{sT+3}, s{sT+3}, 8
v_add_u32 v6, s{sT+3}, v6
v_add_u32 v9, 4096, v6
; c offset
v_and_b32 v10, 7, v0
v_lshlrev_b32 v10, 3, v10
s_lshl_b32 s{sT+3}, s{sQ}, 6
s_add_u32 s{sT+3}, s{sT+3}, 65536
v_add_u32 v116, s{sT+3}, v10
s_bfe_u32 s{sT+3}, s79, 0x40003
s_lshl_b32 s{sT+3}, s{sT+3}, 12
s_add_u32 s{sT+3}, s{sT+3}, s{sT+1}
v_lshlrev_b32 v10, 8, v1
v_add_u32 v10, s{sT+3}, v10
s_lshl_b32 s{sT+4}, s{sW}, 10
s_add_u32 s{sT+5}, s{sT+4}, {W1}
s_lshl_b32 s{sT+6}, s{sT+2}, 8
s_add_u32 s{sT+6}, s{sT+6}, s{sT+4}
s_add_u32 s{sT+6}, s{sT+6}, {XS}
s_mov_b32 s{SRDX+2}, {N*256}
s_mov_b32 s{SRDX+3}, 0x20000
s_mov_b32 s{SRDW+2}, 0x10000000
s_mov_b32 s{SRDW+3}, 0x20000
v_cmp_gt_u32 vcc, {EPW}, v0
s_cmp_ge_u32 s{sW}, 10
s_waitcnt lgkmcnt(0)
s_load_dwordx2 {sr(NONCE,2)}, {sr(SRDW,2)}, 0
s_cbranch_scc1 L_noedge0
s_mov_b64 exec, vcc
global_load_dword v12, v3, {sr(pDST,2)}
global_load_dword v13, v3, {sr(pSRC,2)}
global_load_ushort v16, v4, {sr(pE,2)}
s_mov_b64 exec, -1
L_noedge0:
s_mov_b32 s{SRDX}, s{pX}
s_mov_b32 s{SRDX+1}, s{pX+1}
s_mov_b32 m0, s{sT+6}
s_cmp_eq_u32 s{sW}, 10
s_cbranch_scc0 L_nopf
s_bitcmp1_b32 s79, 7
s_cbranch_scc1 L_pfuv
s_mov_b64 exec, 0xffff
global_load_dword v127, v10, {sr(pG,2)}
s_mov_b64 exec, -1
s_branch L_nopf
L_pfuv:
s_bitcmp1_b32 s79, 6
s_cselect_b64 {sr(sM,2)}, {sr(pU,2)}, {sr(pV,2)}
v_and_b32 v10, 0x7fff, v10
s_mov_b64 exec, 0xffff
global_load_dword v127, v10, {sr(sM,2)}
s_mov_b64 exec, -1
L_nopf:
s_barrier
s_cmp_lt_u32 s{sW}, 12
buffer_load_dwordx4 v6, {sr(SRDX,4)}, 0 offen lds
s_cbranch_scc1 L_nox1b
s_add_u32 m0, s{sT+6}, 4096
s_nop 0
buffer_load_dwordx4 v9, {sr(SRDX,4)}, 0 offen lds
L_nox1b:
ds_write_b128 v118, v[120:123] offset:{W1-16384}
ds_write_b32 v8, v120 offset:{IMG+8192}
""")
e("; WARM")
stamp("issued")
e(f"""
s_mov_b32 s{SRDO}, s{pOUT}
s_mov_b32 s{SRDO+1}, s{pOUT+1}
s_lshl_b32 s{SRDO+2}, s{sNEND}, 8
s_mov_b32 s{SRDO+3}, 0x20000
s_mul_i32 s{sT}, s{sQ}, {TABQ}
s_add_u32 s{sT}, s{sT}, {TAB}
s_add_u32 s{SRDG}, s{SRDW}, s{sT}
s_addc_u32 s{SRDG+1}, s{SRDW+1}, 0
s_and_b32 s{SRDG+1}, s{SRDG+1}, 0xffff
s_or_b32 s{SRDG+1}, s{SRDG+1}, 0x800000
s_mov_b32 s{SRDG+2}, {0 if 'nogather' in OPT else N}
s_mov_b32 s{SRDG+3}, 0x20000
s_and_b32 s{sT}, s{sQ}, 2
s_bfe_u32 s{sT+1}, s{sW}, 0x10001
s_add_u32 s{sT}, s{sT}, s{sT+1}
s_mul_i32 s{sT}, s{sT}, {TABQ}
s_add_u32 s{sT}, s{sT}, {TAB}
s_add_u32 s{SRDT}, s{SRDW}, s{sT}
s_addc_u32 s{SRDT+1}, s{SRDW+1}, 0
s_lshl_b32 s{SRDT+2}, s{sNEND}, 7
s_mov_b32 s{SRDT+3}, 0x20000
s_lshl_b32 s{sCELL}, s{sB}, 15
s_add_u32 s{sCELL}, s{sCELL}, {PRI}
s_mov_b32 s{sK40}, {f2u(2.0**40):#x}
s_mov_b32 s{sKE}, {f2u(-LOG2E*2.0**-40):#x}
s_waitcnt lgkmcnt(0)
s_add_u32 s{NONCE}, s{NONCE}, 0x7f4a7c15
s_addc_u32 s{NONCE+1}, s{NONCE+1}, 0x9e3779b9
s_and_b32 s{sTAG24}, s{NONCE}, 0xffffff00
s_and_b32 s{sTAG14}, s{NONCE+1}, 0xfffc0000
""")
e(f"""
s_cmp_ge_u32 s{sW}, 10
s_cbranch_scc1 L_noedge1
s_mov_b64 exec, vcc
v_mov_b32 v20, 8
s_waitcnt vmcnt(1)
""")
stamp("edge")
e(f"""
v_mul_u32_u24 v17, 6679, v12
v_lshrrev_b32 v17, 20, v17
v_lshlrev_b32 v18, 2, v17
ds_add_rtn_u32 v19, v18, v20 offset:{BCNT}
v_mul_u32_u24 v15, {NB}, v17
v_sub_u32 v15, v12, v15
v_lshl_or_b32 v14, v16, 16, v13
s_waitcnt lgkmcnt(0)
v_lshl_add_u32 v18, v17, 7, v19
v_cmp_gt_u32 vcc, 128, v19
s_andn2_b64 {sr(sM,2)}, exec, vcc
s_cbranch_scc1 L_secstore
L_secback:
s_mov_b64 exec, vcc
ds_write_b64 v18, v[14:15] offset:{IMG}
s_mov_b64 exec, -1
L_noedge1:
s_waitcnt lgkmcnt(0)
s_barrier
""")
stamp("img")
e(f"""
s_cmp_ge_u32 s{sW}, 8
s_cbranch_scc1 L_hi
""")
def w1_loads():
    e(f"""
    s_mov_b32 m0, s{sT+5}
    s_nop 0
    global_load_lds_dwordx4 v7, {sr(pG,2)}
    s_add_u32 m0, s{sT+5}, 16384
    s_nop 0
    global_load_lds_dwordx4 v5, {sr(pV,2)}
    """)
def lane_terms():
    e(f"""
    v_and_b32 v11, 15, v1
    v_lshrrev_b32 v12, 4, v1
    v_xor_b32 v8, v11, v12
    v_lshlrev_b32 v8, 4, v8
    v_lshl_add_u32 v8, v11, 8, v8
    v_bfe_u32 v9, v1, 2, 2
    v_lshl_add_u32 v9, v12, 3, v9
    v_and_b32 v10, 3, v1
    v_lshlrev_b32 v10, 3, v10
    """)
WOP=36; XA=68; XB=84; ACC=[8,16,100]; CELL=108; CRAW=116
vWa=2; vXa=3; vSa=7
def gemm(tag,sstr,ustr,mstr,post,skipcond):
    def wreads(s):
        for m in range(2):
            for u in range(2):
                e(f"ds_read_b64_tr_b16 {vr(WOP+16*m+4*s+2*u,2)}, v{vWa} offset:{s*sstr+u*ustr+m*mstr}")
    def xread(buf,t,s): e(f"ds_read_b128 {vr(buf+4*s,4)}, v{vXa+s} offset:{8192*t}")
    def mf(acc,buf,s):
        for m in range(2):
            c = "0" if s==0 else vr(acc+4*m,4)
            e(f"v_mfma_f32_16x16x32_bf16 {vr(acc+4*m,4)}, {vr(WOP+16*m+4*s,4)}, {vr(buf+4*s,4)}, {c}")
    for s in range(3): wreads(s); xread(XA,0,s)
    e("s_waitcnt lgkmcnt(10)"); mf(ACC[0],XA,0)
    wreads(3); xread(XA,0,3)
    e("s_waitcnt lgkmcnt(10)"); mf(ACC[0],XA,1)
    for s in range(4): xread(XB,1,s)
    e("s_waitcnt lgkmcnt(9)"); mf(ACC[0],XA,2)
    e("s_waitcnt lgkmcnt(4)"); mf(ACC[0],XA,3)
    e("s_waitcnt lgkmcnt(0)")
    mf(ACC[1],XB,0)
    for s in range(4): xread(XA,2,s)
    for s in range(1,4): mf(ACC[1],XB,s)
    post(0)
    e(skipcond); e(f"s_cbranch_scc1 L_{tag}_two")
    e("s_waitcnt lgkmcnt(0)")
    for s in range(4): mf(ACC[2],XA,s)
    post(1)
    e("s_nop 3")
    post(2)
    e(f"s_branch L_{tag}_done")
    e(f"L_{tag}_two:")
    post(1)
    e(f"L_{tag}_done:")
def cell_loads():
    e(f"""
    v_add_u32 v119, 16384, v118
    global_load_dwordx2 v[116:117], v116, {sr(pG,2)}
    buffer_load_dwordx4 {vr(CELL,4)}, v118, {sr(SRDW,4)}, s{sCELL} offen sc1
    buffer_load_dwordx4 {vr(CELL+4,4)}, v119, {sr(SRDW,4)}, s{sCELL} offen sc1
    """)
w1_loads()
lane_terms()
KG=2.0**40*(1-0.00135)
e(f"""
s_and_b32 s{sT}, s{sW}, 3
v_bfe_u32 v13, v1, 3, 2
v_xor_b32 v13, s{sT}, v13
v_lshl_add_u32 v13, v13, 5, v10
v_lshl_add_u32 v13, v9, 7, v13
v_add_u32 v{vWa}, {W1}, v13
s_lshr_b32 s{sT+1}, s{sW}, 2
s_lshl_b32 s{sT+1}, s{sT+1}, 4
s_add_u32 s{sT+1}, s{sT+1}, s{sT+2}
s_lshl_b32 s{sT+3}, s{sT+1}, 8
s_add_u32 s{sT+3}, s{sT+3}, {XS}
v_add_u32 v{vXa}, s{sT+3}, v8
v_xor_b32 v{vXa+1}, 64, v{vXa}
v_xor_b32 v{vXa+2}, 128, v{vXa}
v_xor_b32 v{vXa+3}, 192, v{vXa}
s_add_u32 s{sT+1}, s{sT+1}, s{sN0}
s_lshl_b32 s{sT+1}, s{sT+1}, 7
s_and_b32 s{sT}, s{sW}, 1
s_lshl_b32 s{sT}, s{sT}, 6
s_add_u32 s{sT+1}, s{sT+1}, s{sT}
v_lshlrev_b32 v{vSa}, 7, v11
v_lshl_add_u32 v{vSa}, v12, 4, v{vSa}
v_add_u32 v{vSa}, s{sT+1}, v{vSa}
s_mov_b32 s{sT+4}, {f2u(LOG2E):#x}
s_mov_b32 s{sT+5}, {f2u(KG):#x}
""")
if args.stamps and 'x1' not in SKIP: e("s_waitcnt vmcnt(2)"); stamp("x1")
e("s_waitcnt vmcnt(0)")
e("s_barrier")
stamp("B1")
PK=[24,28,32]
def post_qh(t):
    a=ACC[t]; p=PK[t]
    for i in range(4): e(f"v_mul_f32 v{a+i}, s{sT+4}, v{a+i}")
    for i in range(4): e(f"v_exp_f32 v{a+i}, v{a+i}")
    for i in range(4): e(f"v_mul_f32 v{a+4+i}, s{sT+5}, v{a+4+i}")
    for i in range(4): e(f"v_mul_f32 v{a+4+i}, v{a+i}, v{a+4+i}")
    for i in range(4): e(f"v_cvt_pk_bf16_f32 v{p+i}, v{a+i}, v{a+4+i}")
    e(f"buffer_store_dwordx4 {vr(p,4)}, v{vSa}, {sr(SRDT,4)}, 0 offen sc1")
    e(f"v_add_u32 v{vSa}, 4096, v{vSa}")
gemm("qh",4096,512,16384,post_qh,f"s_cmp_ge_u32 s{sW}, 4")
stamp("gemm")
cell_loads()
e("s_barrier")
e("s_branch L_cells")
e("L_hi:")
e(f"""
v_subrev_u32 v8, 512, v0
v_lshlrev_b32 v9, 4, v8
v_lshrrev_b32 v10, 3, v8
v_lshlrev_b32 v11, 2, v10
ds_read_b128 v[12:15], v9 offset:{IMG}
ds_read_b32 v16, v11 offset:{BCNT}
""")
w1_loads()
e(f"""
v_lshlrev_b32 v10, 15, v10
ds_write_b128 v9, v[120:123] offset:{IMG}
v_and_b32 v9, 0x70, v9
v_add_u32 v10, v10, v9
s_lshl_b32 s{sT}, s2, 7
s_add_u32 s{sT}, s{sT}, {PRI}
v_mov_b32 v17, 0xff
s_sub_u32 s{sT+1}, 80, s{sT+2}
s_sub_u32 s{sT+3}, s{sT+1}, s{sT+2}
s_lshl_b32 s{sT+3}, s{sT+3}, 8
s_sub_u32 s{sT+3}, s{sT+3}, 8192
v_add_u32 v18, s{sT+3}, v6
v_add_u32 v19, 8192, v18
v_add_u32 v20, 16384, v18
s_lshl_b32 s{sT+1}, s{sT+1}, 8
s_add_u32 s{sT+1}, s{sT+1}, s{sT+4}
s_add_u32 s{sT+1}, s{sT+1}, {XS-8192}
v_lshrrev_b32 v21, 2, v8
v_lshlrev_b32 v21, 8, v21
v_lshrrev_b32 v22, 4, v1
v_and_b32 v22, 2, v22
v_xor_b32 v22, v22, v1
v_and_b32 v22, 3, v22
v_lshl_add_u32 v21, v22, 4, v21
s_lshl_b32 s{sT+3}, s{sQ}, 6
v_add_u32 v21, s{sT+3}, v21
s_waitcnt lgkmcnt(1)
v_and_or_b32 v13, v13, v17, s{sTAG24}
v_lshl_or_b32 v16, v16, 5, s{sTAG14}
v_and_or_b32 v15, v15, v17, v16
s_add_u32 s{sT+8}, s{sT+4}, {W2-8192}
s_mov_b32 s{sT+9}, s{sT+1}
buffer_store_dwordx4 v[12:15], v10, {sr(SRDW,4)}, s{sT} offen sc1
""")
def w2_loads():
    e(f"""
    s_mov_b32 m0, s{sT+8}
    s_nop 0
    global_load_lds_dwordx4 v21, {sr(pG,2)}
    s_add_u32 m0, s{sT+8}, 8192
    s_nop 0
    global_load_lds_dwordx4 v21, {sr(pU,2)}
    """)
def x2_loads(after):
    e(f"""
    s_mov_b32 m0, s{sT+9}
    s_nop 0
    buffer_load_dwordx4 v18, {sr(SRDX,4)}, 0 offen lds
    s_add_u32 m0, s{sT+9}, 8192
    s_cmp_ge_u32 s{sW}, 12
    buffer_load_dwordx4 v19, {sr(SRDX,4)}, 0 offen lds
    s_cbranch_scc1 L_nox2c
    s_add_u32 m0, s{sT+9}, 16384
    s_nop 0
    buffer_load_dwordx4 v20, {sr(SRDX,4)}, 0 offen lds
    """)
    if after is not None:
        e(f"""
        s_waitcnt vmcnt({after+3})
        s_branch L_x2c
        L_nox2c:
        s_waitcnt vmcnt({after+2})
        L_x2c:
        """)
    else: e("L_nox2c:")
e("s_waitcnt lgkmcnt(0)")
if 'ordA' in OPT:
    x2_loads(1); e("s_barrier"); w2_loads()
elif 'ordC' in OPT:
    e("s_waitcnt vmcnt(1)"); e("s_barrier"); w2_loads(); x2_loads(None)
else:
    w2_loads(); e("s_waitcnt vmcnt(3)"); e("s_barrier"); x2_loads(None)
stamp("B1")
lane_terms()
e(f"""
s_and_b32 s{sT}, s{sW}, 1
v_and_b32 v13, 1, v12
v_xor_b32 v13, s{sT}, v13
v_lshl_add_u32 v13, v13, 5, v10
v_lshl_add_u32 v13, v9, 6, v13
v_add_u32 v{vWa}, {W2}, v13
s_bfe_u32 s{sT+1}, s{sW}, 0x10001
s_mul_i32 s{sT+1}, s{sT+1}, 5
s_bfe_u32 s{sT+3}, s{sW}, 0x10002
s_add_u32 s{sT+1}, s{sT+1}, s{sT+3}
s_lshl_b32 s{sT+3}, s{sT+1}, 12
s_add_u32 s{sT+3}, s{sT+3}, {XS}
v_add_u32 v{vXa}, s{sT+3}, v8
v_xor_b32 v{vXa+1}, 64, v{vXa}
v_xor_b32 v{vXa+2}, 128, v{vXa}
v_xor_b32 v{vXa+3}, 192, v{vXa}
s_mul_i32 s{sT+1}, s{sT+1}, {16*NSTR}
s_lshl_b32 s{sT}, s{sT}, 6
s_add_u32 s{sT+1}, s{sT+1}, s{sT}
s_add_u32 s{sT+1}, s{sT+1}, {NS}
v_mul_u32_u24 v{vSa}, {NSTR}, v11
v_lshl_add_u32 v{vSa}, v12, 4, v{vSa}
v_add_u32 v{vSa}, s{sT+1}, v{vSa}
s_mov_b32 s{sT+4}, {f2u(-LOG2E):#x}
""")
e("s_waitcnt vmcnt(0)")
e("s_barrier")
stamp("B1b")
cell_loads()
def post_pu(t):
    a=ACC[t]
    for i in range(4): e(f"v_mul_f32 v{a+i}, s{sT+4}, v{a+i}")
    for i in range(4): e(f"v_mul_f32 v{a+4+i}, s{sK40}, v{a+4+i}")
    e(f"ds_write_b128 v{vSa}, {vr(a,4)} offset:{t*32*NSTR}")
    e(f"ds_write_b128 v{vSa}, {vr(a+4,4)} offset:{t*32*NSTR+128}")
gemm("pu",2048,256,8192,post_pu,f"s_cmp_ge_u32 s{sW}, 12")
stamp("gemm")
vN,vM,vU,vP,vE,vC,vA,IA,IB,X,Y,xX,xY=8,12,16,20,24,28,32,36,44,52,68,84,100
vLA,vOA=2,3
e("L_cells:")
e(f"""
s_mov_b32 s{sSPIN}, 0
v_bfe_u32 v4, v1, 2, 2
v_lshrrev_b32 v5, 4, v1
v_cmp_eq_u32 vcc, v4, v5
v_and_b32 v4, 3, v1
v_mov_b32 v5, 0x3f80
v_cndmask_b32 v4, 4, v4, vcc
""")
for i in range(4):
    e(f"v_cmp_eq_u32 vcc, {i}, v4")
    e(f"v_mov_b32 v{vE+i}, 0")
    if i==0: e("v_and_b32 v6, 7, v1")
    elif i==1: e(f"v_lshlrev_b32 v{IA+1}, 4, v6")
    elif i==2: e(f"v_lshlrev_b32 v7, 1, v6")
    else: e(f"v_mov_b32 v20, 4")
    e(f"v_cndmask_b32 v{vA+i}, 0, v5, vcc")
for r in (IA+3,IA+5,IA+7,IB+1,IB+3,IB+5,IB+7): e(f"v_mov_b32 v{r}, v{IA+1}")
c0=CELL
e(f"""
v_lshlrev_b32 v124, 2, v6
v_mov_b32 v125, 0x3f80
s_cmp_ge_u32 s{sW}, 8
s_cbranch_scc1 L_cellwait
v_mov_b32 v8, 1
v_mov_b32 v9, 0
v_mov_b32 v10, s{NONCE}
v_mov_b32 v11, s{NONCE+1}
s_lshl_b32 s{sT}, s2, 7
s_add_u32 s{sT}, s{sT}, {FLG}
s_mov_b64 exec, 1
s_waitcnt vmcnt(3)
ds_add_rtn_u32 v8, v9, v8 offset:{DONE}
s_waitcnt lgkmcnt(0)
v_cmp_eq_u32 vcc, 7, v8
s_cbranch_vccz L_nosig
buffer_store_dwordx2 v[10:11], v9, {sr(SRDW,4)}, s{sT} offen sc1
s_mov_b64 exec, -1
""")
stamp("sig")
e(f"""
s_waitcnt vmcnt(1)
s_branch L_cellchk
L_nosig:
s_mov_b64 exec, -1
L_cellwait:
s_waitcnt vmcnt(0)
L_cellchk:
v_xor_b32 v8, s{sTAG24}, v{c0+1}
v_xor_b32 v9, s{sTAG24}, v{c0+5}
v_xor_b32 v10, s{sTAG14}, v{c0+3}
v_xor_b32 v11, s{sTAG14}, v{c0+7}
v_or_b32 v8, v8, v9
v_or_b32 v9, v10, v11
v_lshrrev_b32 v9, 10, v9
v_or_b32 v8, v8, v9
v_cmp_lt_u32 vcc, 255, v8
s_cbranch_vccnz L_cellretry
L_cellok:
v_lshrrev_b32 v10, 8, v10
v_lshrrev_b32 v11, 8, v11
v_max_u32 v21, v10, v11
v_add_u32 v22, 16, v6
v_cmp_gt_u32 vcc, v21, v22
v_add_u32 v9, 1, v7
s_cbranch_vccnz L_secload
L_secnone:
""")
def insert(recs, masks):
    for k,(r0,rl) in enumerate(recs):
        e(f"s_mov_b64 exec, {sr(masks[k],2)}")
        e(f"v_lshlrev_b32_sdwa v{12+k}, 2, v{rl} dst_sel:DWORD dst_unused:UNUSED_PAD src0_sel:DWORD src1_sel:BYTE_0")
        e(f"ds_add_rtn_u32 v{16+k}, v{12+k}, v20 offset:{NCNT}")
    n=len(recs)
    for k,(r0,rl) in enumerate(recs):
        e(f"s_mov_b64 exec, {sr(masks[k],2)}")
        e(f"s_waitcnt lgkmcnt({n-1-k+2*k})")
        e(f"v_min_u32 v{16+k}, {4*(CAP-1)}, v{16+k}")
        e(f"v_mad_u32_u24 v{12+k}, v{12+k}, {LSTR}, v{16+k}")
        e(f"v_lshl_add_u32 v{16+k}, v{16+k}, 3, v124")
        e(f"ds_add_u32 v{16+k}, v20 offset:{GE}")
        e(f"ds_write_b32 v{12+k}, v{r0} offset:{LISTS}")
    e("s_mov_b64 exec, -1")
e(f"""
v_cmp_gt_u32 {sr(sM,2)}, v10, v7
v_cmp_gt_u32 {sr(sM+2,2)}, v10, v9
v_cmp_gt_u32 {sr(sM+4,2)}, v11, v7
v_cmp_gt_u32 {sr(sM+6,2)}, v11, v9
""")
insert([(c0,c0+1),(c0+2,c0+3),(c0+4,c0+5),(c0+6,c0+7)],[sM,sM+2,sM+4,sM+6])
e(f"""
s_cbranch_vccnz L_secins
L_insdone:
s_mov_b32 s{sT}, {f2u(-LOG2E):#x}
v_lshlrev_b32 v{vC}, 16, v{CRAW}
v_and_b32 v{vC+1}, 0xffff0000, v{CRAW}
v_lshlrev_b32 v{vC+2}, 16, v{CRAW+1}
v_and_b32 v{vC+3}, 0xffff0000, v{CRAW+1}
""")
for i in range(4): e(f"v_mul_f32 v{vC+i}, s{sT}, v{vC+i}")
stamp("ins")
PL=X
e(f"""
s_cmp_eq_u32 s{sW}, 15
s_cbranch_scc0 L_nopoll0
v_lshlrev_b32 v118, 9, v1
s_lshr_b32 s{sT+8}, s{sQ}, 1
s_lshl_b32 s{sT+8}, s{sT+8}, 8
s_add_u32 s{sT+8}, s{sT+8}, {FLG}
buffer_load_dwordx2 {vr(PL,2)}, v118, {sr(SRDW,4)}, s{sT+8} offen sc1
buffer_load_dwordx2 {vr(PL+2,2)}, v118, {sr(SRDW,4)}, s{sT+8} offen offset:128 sc1
L_nopoll0:
s_waitcnt lgkmcnt(0)
s_barrier
s_cmp_ge_u32 s{sW}, 3
s_cbranch_scc1 L_noorder
v_cmp_gt_u32 vcc, 160, v0
v_lshlrev_b32 v8, 2, v0
s_mov_b64 exec, vcc
ds_read_b32 v9, v8 offset:{NCNT}
s_waitcnt lgkmcnt(0)
v_cmp_lt_u32 vcc, {4*CAP}, v9
v_min_u32 v9, {4*CAP}, v9
ds_add_rtn_u32 v10, v9, v20 offset:{TIE}
v_lshlrev_b32 v8, 3, v9
ds_read_b128 v[12:15], v8 offset:{GE}
ds_read_b128 v[16:19], v8 offset:{GE+16}
v_lshl_or_b32 v11, v9, 14, v0
s_cbranch_vccnz L_overflow
L_ovback:
s_waitcnt lgkmcnt(1)
v_add3_u32 v10, v10, v12, v13
v_add3_u32 v10, v10, v14, v15
s_waitcnt lgkmcnt(0)
v_add3_u32 v10, v10, v16, v17
v_add3_u32 v10, v10, v18, v19
v_min_u32 v10, 636, v10
ds_write_b32 v10, v11 offset:{ORDER}
s_mov_b64 exec, -1
s_or_b32 s{sT}, s2, s{sW}
s_cbranch_scc1 L_noorder
s_mov_b64 exec, 1
v_mov_b32 v8, s{NONCE}
v_mov_b32 v9, s{NONCE+1}
v_mov_b32 v10, 0
buffer_store_dwordx2 v[8:9], v10, {sr(SRDW,4)}, 0 offen sc1
s_mov_b64 exec, -1
L_noorder:
s_and_b32 s{sT}, s{sW}, 3
s_lshr_b32 s{sT+1}, s{sW}, 2
s_sub_u32 s{sTASK2}, 19, s{sT}
s_sub_u32 s{sI}, 15, s{sT}
s_cmp_eq_u32 s{sT+1}, 0
s_cselect_b32 s{sTASK2}, s{sTASK2}, 0
s_cmp_eq_u32 s{sT+1}, 1
s_cselect_b32 s{sI}, s{sT}, s{sI}
s_sub_u32 s{sT+2}, 7, s{sT}
s_cmp_eq_u32 s{sT+1}, 2
s_cselect_b32 s{sI}, s{sT+2}, s{sI}
s_add_u32 s{sT+2}, 8, s{sT}
s_cmp_eq_u32 s{sT+1}, 3
s_cselect_b32 s{sI}, s{sT+2}, s{sI}
v_lshrrev_b32 v116, 3, v1
v_lshlrev_b32 v116, 2, v116
s_lshl_b32 s{sT}, s{sN0}, 8
s_lshl_b32 s{sT+1}, s{sQ}, 6
s_add_u32 s{sT}, s{sT}, s{sT+1}
v_lshlrev_b32 v117, 3, v6
v_add_u32 v117, s{sT}, v117
v_add_u32 v119, {NS}, v{IA+1}
s_mov_b32 s{sT+9}, 1
s_waitcnt lgkmcnt(0)
s_barrier
""")
stamp("ord")
def idxreads(I,off):
    for k in (3,2,1,0): e(f"ds_read_u16 v{I+2*k}, v{vLA} offset:{off+4*k}")
def ereads(off):
    for k in range(4): e(f"ds_read_u16_d16_hi v{vE+k}, v{vLA} offset:{off+4*k+2}")
def apk(x):
    for k in (3,2,1,0):
        sel = "op_sel_hi:[0,1,1]" if k%2==0 else "op_sel:[1,0,0] op_sel_hi:[1,1,1]"
        for h in range(2):
            e(f"v_pk_fma_f32 {vr(x+4*k+2*h,2)}, {vr(vE+(k&2),2)}, {vr(vC+2*h,2)}, {vr(vP+2*h,2)} {sel}")
def exps(x,k):
    if 'novalu' in OPT: return
    for i in range(4): e(f"v_exp_f32 v{x+4*k+i}, v{x+4*k+i}")
def gath(B,I):
    for k in (3,2,1,0): e(f"buffer_load_dwordx4 {vr(B+4*k,4)}, {vr(I+2*k,2)}, {sr(SRDG,4)}, 0 idxen offen{'' if 'nosc1' in OPT else ' sc1'}")
def mext(B,x,k):
    if 'dot' in OPT:
        for i in range(4): e(f"v_dot2c_f32_bf16 v{x+4*k+i}, v125, v{B+4*k+i}")
    else: e(f"v_mfma_f32_16x16x32_bf16 {vr(x+4*k,4)}, {vr(vA,4)}, {vr(B+4*k,4)}, {vr(x+4*k,4)}")
def frac(B,x,k):
    if 'novalu' in OPT: e("s_nop 7"); return
    for h in range(2): e(f"v_pk_mul_f32 {vr(vU+2*h,2)}, {vr(B+4*k+2*h,2)}, {vr(vM+2*h,2)}")
    for h in range(2):
        e(f"v_pk_fma_f32 {vr(vN+2*h,2)}, {vr(vN+2*h,2)}, {vr(x+4*k+2*h,2)}, {vr(vU+2*h,2)}")
        e(f"v_pk_mul_f32 {vr(vM+2*h,2)}, {vr(vM+2*h,2)}, {vr(x+4*k+2*h,2)}")
e(f"""
L_task:
s_lshl_b32 s{sT}, s{sI}, 5
v_add_u32 v4, s{sT}, v116
ds_read_b32 v4, v4 offset:{ORDER}
v_mov_b32 v{vM}, 1.0
v_mov_b32 v{vM+1}, 1.0
v_mov_b32 v{vM+2}, 1.0
v_mov_b32 v{vM+3}, 1.0
s_waitcnt lgkmcnt(0)
v_readfirstlane_b32 s{sT}, v4
v_and_b32 v4, 0xff, v4
s_movk_i32 s{sT+2}, {NSTR}
v_mad_u32_u24 v5, v4, s{sT+2}, v119
s_lshr_b32 s{sT}, s{sT}, 16
s_add_u32 s{sREM}, s{sT}, 3
s_lshr_b32 s{sREM}, s{sREM}, 2
s_lshl_b32 s{sT+1}, s{sREM}, 4
s_add_u32 s{sT+1}, s{sT+1}, {LISTS-48}
v_mul_u32_u24 v{vLA}, {4*LSTR}, v4
v_add_u32 v{vLA}, s{sT+1}, v{vLA}
ds_read_b128 {vr(vP,4)}, v5
""")
ereads(32)
e(f"ds_read_b128 {vr(vN,4)}, v5 offset:128")
idxreads(IA,32)
idxreads(IB,16)
e(f"v_lshl_add_u32 v{vOA}, v4, 8, v117")
e(f"s_and_b32 s{sT+3}, s{sT}, 3")
e("s_waitcnt lgkmcnt(9)")
apk(xX)
ereads(16)
for k in (3,2,1,0): exps(xX,k)
e("s_waitcnt lgkmcnt(0)")
apk(xY)
ereads(0)
e(f"""
s_cmp_eq_u32 s{sT+9}, 0
s_cbranch_scc1 L_go
s_mov_b32 s{sT+9}, 0
s_cmp_eq_u32 s{sW}, 15
s_cbranch_scc0 L_nopoll1
s_mov_b32 s{sSPIN}, 0
L_poll:
s_waitcnt vmcnt(0)
v_cmp_ne_u64 vcc, {sr(NONCE,2)}, {vr(PL,2)}
v_cmp_ne_u64 {sr(sM,2)}, {sr(NONCE,2)}, {vr(PL+2,2)}
s_or_b64 vcc, vcc, {sr(sM,2)}
s_cbranch_scc0 L_nopoll1
s_add_u32 s{sSPIN}, s{sSPIN}, 1
s_cmp_ge_u32 s{sSPIN}, 0x8000
s_cbranch_scc1 L_nopoll1
buffer_load_dwordx2 {vr(PL,2)}, v118, {sr(SRDW,4)}, s{sT+8} offen sc1
buffer_load_dwordx2 {vr(PL+2,2)}, v118, {sr(SRDW,4)}, s{sT+8} offen offset:128 sc1
s_branch L_poll
L_nopoll1:
""")
stamp("pre")
e("s_barrier")
stamp("B3")
e(f"""
L_go:
s_cmp_eq_u32 s{sREM}, 0
s_cbranch_scc1 L_fin
""")
gath(X,IA); gath(Y,IB); idxreads(IA,0)
for k in (3,2,1,0): exps(xY,k)
e("s_waitcnt vmcnt(4)")
for k in (3,2,1,0): mext(X,xX,k)
e(f"""
s_nop 3
s_cmp_eq_u32 s{sT+3}, 1
s_cbranch_scc1 L_fx0
s_cmp_eq_u32 s{sT+3}, 2
s_cbranch_scc1 L_fx1
s_cmp_eq_u32 s{sT+3}, 3
s_cbranch_scc1 L_fx2
""")
def half(tag,B,x,B2,x2,tag2,last):
    for k in (3,2,1,0):
        e(f"L_f{tag}{k}:")
        frac(B,x,k)
    e(f"""
    s_sub_u32 s{sREM}, s{sREM}, 1
    s_cmp_le_u32 s{sREM}, 1
    s_cbranch_scc1 L_tail{tag}
    s_waitcnt lgkmcnt(0)
    """)
    gath(B,IA)
    apk(x)
    e(f"v_subrev_u32 v{vLA}, 16, v{vLA}")
    idxreads(IA,0); ereads(0)
    e("s_waitcnt vmcnt(4)")
    for k in (3,2,1,0):
        mext(B2,x2,k); exps(x,k)
    if last: e(f"s_branch L_f{tag2}3")
def tail(tag,B2,x2,tag2):
    e(f"""
    L_tail{tag}:
    s_cmp_eq_u32 s{sREM}, 0
    s_cbranch_scc1 L_fin
    s_waitcnt vmcnt(0)
    """)
    for k in (3,2,1,0): mext(B2,x2,k)
    e("s_nop 1")
    e(f"s_branch L_f{tag2}3")
half('x',X,xX,Y,xY,'y',False)
half('y',Y,xY,X,xX,'x',True)
tail('x',Y,xY,'y')
tail('y',X,xX,'x')
e("L_fin:")
e("s_waitcnt lgkmcnt(0)")
for i in range(4): e(f"v_rcp_f32 v{vM+i}, v{vM+i}")
for h in range(2): e(f"v_pk_mul_f32 {vr(vN+2*h,2)}, {vr(vN+2*h,2)}, {vr(vM+2*h,2)}")
for h in range(2): e(f"v_pk_mul_f32 {vr(vM+2*h,2)}, {vr(vN+2*h,2)}, {sr(sKE,2)} op_sel_hi:[1,0]")
for i in range(4): e(f"v_exp_f32 v{vM+i}, v{vM+i}")
for h in range(2): e(f"v_pk_fma_f32 {vr(vM+2*h,2)}, {vr(vM+2*h,2)}, {sr(sK40,2)}, {sr(sK40,2)} op_sel_hi:[1,0,0]")
for i in range(4): e(f"v_rcp_f32 v{vM+i}, v{vM+i}")
for h in range(2): e(f"v_pk_mul_f32 {vr(vU+2*h,2)}, {vr(vN+2*h,2)}, {vr(vM+2*h,2)}")
e(f"""
v_cvt_pk_bf16_f32 v{vU}, v{vU}, v{vU+1}
v_cvt_pk_bf16_f32 v{vU+1}, v{vU+2}, v{vU+3}
buffer_store_dwordx2 {vr(vU,2)}, v{vOA}, {sr(SRDO,4)}, 0 offen{' sc1' if 'osc1' in OPT else ' nt' if 'ont' in OPT else ''}
s_mov_b32 s{sI}, s{sTASK2}
s_mov_b32 s{sTASK2}, 0
s_cmp_lg_u32 s{sI}, 0
s_cbranch_scc1 L_task
""")
stamp("end")
if args.stamps:
    e(f"""
    s_waitcnt vmcnt(0) lgkmcnt(0)
    s_lshl_b32 s{sT}, s2, 4
    s_add_u32 s{sT}, s{sT}, s{sW}
    s_lshl_b32 s{sT}, s{sT}, 6
    s_add_u32 s{sT}, s{sT}, {DBG}
    v_mov_b32 v4, 0
    """)
    for i in range(nstamp[0]): e(f"v_writelane_b32 v4, s{sST+2*i}, {i}")
    e(f"""
    v_writelane_b32 v4, s{sSPIN}, 15
    v_lshlrev_b32 v5, 2, v1
    s_mov_b64 exec, 0xffff
    buffer_store_dword v4, v5, {sr(SRDW,4)}, s{sT} offen
    """)
if args.probe:
    pn,pwg,pw=args.probe.split(',')
    pi=stampnames.index(pn)
    e(f"""
    s_cmp_eq_u32 s2, {pwg}
    s_cbranch_scc0 L_end
    s_cmp_eq_u32 s{sW}, {pw}
    s_cbranch_scc0 L_end
    s_add_u32 s{sT}, s{sST+2*pi}, 4000
    L_probe:
    s_memrealtime {sr(sT+2,2)}
    s_waitcnt lgkmcnt(0)
    s_sub_u32 s{sT+1}, s{sT+2}, s{sT}
    s_cmp_lt_i32 s{sT+1}, 0
    s_cbranch_scc1 L_probe
    """)
e("L_end:")
e("s_endpgm")
e(f"""
L_secstore:
s_mov_b64 exec, {sr(sM,2)}
v_lshlrev_b32 v21, 8, v17
v_add_u32 v21, s2, v21
v_mul_u32_u24 v21, 10240, v21
v_lshl_add_u32 v21, v19, 1, v21
v_mov_b32 v24, v14
v_mov_b32 v25, v15
v_mov_b32 v26, s{NONCE}
v_mov_b32 v27, s{NONCE+1}
s_mov_b32 s{sT+7}, {SEC}
buffer_store_dwordx4 v[24:27], v21, {sr(SRDW,4)}, s{sT+7} offen sc1
s_branch L_secback
L_cellretry:
s_add_u32 s{sSPIN}, s{sSPIN}, 1
s_cmp_ge_u32 s{sSPIN}, 0x8000
s_cbranch_scc1 L_end
s_sleep 2
buffer_load_dwordx4 {vr(CELL,4)}, v118, {sr(SRDW,4)}, s{sCELL} offen sc1
buffer_load_dwordx4 {vr(CELL+4,4)}, v119, {sr(SRDW,4)}, s{sCELL} offen sc1
s_branch L_cellwait
""")
S0,S1=X,X+4
def secissue():
    e(f"""
    v_cmp_gt_u32 {sr(sM+8,2)}, v10, v22
    v_cmp_gt_u32 {sr(sM+10,2)}, v11, v22
    v_lshl_add_u32 v4, v22, 4, v23
    v_add_u32 v5, {128*10240}, v4
    s_mov_b64 exec, {sr(sM+8,2)}
    buffer_load_dwordx4 {vr(S0,4)}, v4, {sr(SRDW,4)}, s{sT+7} offen sc1
    s_mov_b64 exec, {sr(sM+10,2)}
    buffer_load_dwordx4 {vr(S1,4)}, v5, {sr(SRDW,4)}, s{sT+7} offen sc1
    s_mov_b64 exec, -1
    """)
e(f"""
L_secload:
v_lshrrev_b32 v23, 3, v0
v_mul_u32_u24 v23, 10240, v23
s_mul_i32 s{sT+7}, s{sB}, {256*10240}
s_add_u32 s{sT+7}, s{sT+7}, {SEC}
""")
secissue()
e(f"""
s_branch L_secnone
L_secagain:
""")
secissue()
e(f"""
L_secins:
s_waitcnt vmcnt(0)
v_cmp_ne_u64 {sr(sM,2)}, {sr(NONCE,2)}, {vr(S0+2,2)}
v_cmp_ne_u64 {sr(sM+2,2)}, {sr(NONCE,2)}, {vr(S1+2,2)}
s_and_b64 {sr(sM,2)}, {sr(sM,2)}, {sr(sM+8,2)}
s_and_b64 {sr(sM+2,2)}, {sr(sM+2,2)}, {sr(sM+10,2)}
s_or_b64 {sr(sM,2)}, {sr(sM,2)}, {sr(sM+2,2)}
s_cbranch_scc0 L_secok
s_add_u32 s{sSPIN}, s{sSPIN}, 1
s_cmp_ge_u32 s{sSPIN}, 0x8000
s_cbranch_scc1 L_end
s_branch L_secagain
L_secok:
s_waitcnt lgkmcnt(0)
""")
insert([(S0,S0+1),(S1,S1+1)],[sM+8,sM+10])
e(f"""
v_add_u32 v22, 8, v22
v_cmp_gt_u32 vcc, v21, v22
s_cbranch_vccnz L_secagain
s_branch L_insdone
L_overflow:
v_mov_b32 v8, 0
ds_write_b32 v8, v20 offset:{FAIL}
s_branch L_ovback
""")
out.append('.section .rodata,"a"')
out.append('.p2align 6')
out.append(f""".amdhsa_kernel {NAME}_kernel
  .amdhsa_next_free_vgpr 128
  .amdhsa_next_free_sgpr 102
  .amdhsa_accum_offset 128
  .amdhsa_group_segment_fixed_size 0
  .amdhsa_kernarg_size 80
  .amdhsa_user_sgpr_count 2
  .amdhsa_user_sgpr_kernarg_segment_ptr 1
  .amdhsa_system_sgpr_workgroup_id_x 1
.end_amdhsa_kernel""")
def offsets(lines):
    import subprocess,re,tempfile,os
    d=tempfile.mkdtemp()
    txt=[]
    for i,l in enumerate(lines):
        t=l.strip()
        if l.startswith('    ') and not t.startswith(';'): txt.append(f"Z_{i}:")
        txt.append(l)
    open(d+"/a.s","w").write("\n".join(txt)+"\n")
    subprocess.check_call(["clang","-x","assembler","-target","amdgcn-amd-amdhsa","-mcpu=gfx950","-c",d+"/a.s","-o",d+"/a.o"])
    o=subprocess.check_output(["llvm-readelf","-s",d+"/a.o"]).decode()
    return {int(m.group(2)):int(m.group(1),16) for m in re.finditer(r"^\s*\d+: ([0-9a-f]+) .* Z_(\d+)$",o,re.M)}
if 'nowarm' not in OPT:
    step=args.wstep
    off=offsets(out); iw=out.index('    ; WARM')
    idx=sorted(off); end=off[idx[-1]]
    nat=[i for k,i in enumerate(idx[:-1]) if out[i].split()[0] in ('s_branch','s_endpgm')]
    spots=[]; cur=args.wfirst
    while cur<end-128:
        cand=[i for i in nat if cur-160<=off[i]<=cur and i>iw and i not in [x for x,_ in spots]]
        if cand: i=max(cand,key=lambda i:off[i]); spots.append((i,True))
        else:
            i=max([i for i in idx if off[i]<=cur],key=lambda i:off[i]); spots.append((i,False))
        cur=off[i]+step
    assert len(spots)<=16, len(spots)
    for k,(i,isnat) in reversed(list(enumerate(spots))):
        ins=[f"L_stub{k}:","    s_branch L_warmret"]
        if not isnat: ins=[f"    s_branch L_skip{k}"]+ins+[f"L_skip{k}:"]
        out[i+1:i+1]=ins
    lad=[]
    for k in range(len(spots)): lad+=[f"    s_cmp_eq_u32 s{sW}, {15-k}",f"    s_cbranch_scc1 L_stub{k}"]
    out[iw+1:iw+1]=lad+["L_warmret:"]
if args.stamps: out.insert(0,"; stamps: "+",".join(stampnames))
print("\n".join(out))
```

```python
import sys, struct, argparse
ap=argparse.ArgumentParser()
ap.add_argument('--stamps',action='store_true')
ap.add_argument('--opt',default='')
ap.add_argument('--wstep',type=int,default=480)
ap.add_argument('--wfirst',type=int,default=896)
ap.add_argument('--base',type=int,default=1)
ap.add_argument('--skip',default='x1,edge,issued')
ap.add_argument('--probe',default='')
args=ap.parse_args()
if args.probe: args.stamps=True
OPT=set(args.opt.split(','))
NAME="gather_scatter__edge_featured_mpnn_egc__graph"
out=[]
def e(s):
    for l in s.strip('\n').split('\n'):
        l=l.strip()
        if not l: continue
        out.append(l if l.endswith(':') else '    '+l)
def f2u(x): return struct.unpack('<I',struct.pack('<f',x))[0]
def vr(a,n=1): return f"v{a}" if n==1 else f"v[{a}:{a+n-1}]"
def sr(a,n=1): return f"s{a}" if n==1 else f"s[{a}:{a+n-1}]"

N=10000; E=160000; NB=157; CAP=40; EPW=625
LOG2E=1.4426950408889634
BCNT=0; NCNT=256; TIE=896; DONE=1152; FAIL=1156; ORDER=1280; GE=2048; LSTR=CAP+1; PAD=3392; LISTS=PAD+64; IMG=4096
W1=29696; assert LISTS+160*LSTR*4<=W1 and GE+(CAP+1)*32<=PAD; W2=W1+32768; XS=W2+16384; NS=XS+40960; NSTR=272; LDS_TOTAL=NS+160*NSTR
TAB=args.base<<20; TABQ=N*128; PRI=TAB+(6<<20); FLG=TAB+(9<<20); SEC=(1<<20) if args.base>=170 else TAB+(10<<20); DBG=200<<20
assert SEC+16384*10240<=(256<<20) and FLG+32768<=(256<<20)
DUMMY=0x3fff
sW=3; pX,pE,pSRC,pDST,pU,pV,pG,pOUT=4,6,8,10,12,14,16,18
SRDX=20; SRDO=24; SRDW=28; SRDT=32; SRDG=36; NONCE=40
sQ=42; sB=43; sN0=44; sNEND=45; sT=46
sTAG24=56; sTAG14=57; sREM=58; sTASK2=59
sM=60
sK40=72; sKE=74; sSPIN=76; sCELL=77; sI=78
sST=80
nstamp=[0]; stampnames=[]
SKIP=set(args.skip.split(','))
def stamp(name):
    if args.stamps and name not in SKIP:
        if name not in stampnames: stampnames.append(name); nstamp[0]+=1
        i=stampnames.index(name); assert i<11
        e(f"{'s_memtime' if 'cyc' in OPT else 's_memrealtime'} {sr(sST+2*i,2)}")

e(f"""
; @launch grid=(256,1,1) block=(1024,1,1) lds={LDS_TOTAL}
""")
out[:]=[l.strip() for l in out]
out.append('.amdgcn_target "amdgcn-amd-amdhsa--gfx950"')
out.append('.text')
out.append(f'.globl {NAME}_kernel')
out.append('.p2align 8')
out.append(f'.type {NAME}_kernel,@function')
out.append(f'{NAME}_kernel:')

e(f"""
s_load_dwordx16 s[4:19], s[0:1], 0
s_load_dwordx2 {sr(SRDW,2)}, s[0:1], 72
s_cmp_ge_u32 s2, 256
s_cbranch_scc1 L_end
""")
if args.stamps:
    for i in range(11): e(f"s_mov_b32 s{sST+2*i}, 0")
stamp("start")
e(f"""
v_lshrrev_b32 v2, 6, v0
v_and_b32 v1, 63, v0
v_readfirstlane_b32 s{sW}, v2
s_mov_b32 s79, s2
""")
if 'map2' in OPT: e(f"""
s_and_b32 s2, s79, 0xf2
s_bfe_u32 s{sT}, s79, 0x10003
s_or_b32 s2, s2, s{sT}
s_and_b32 s{sT}, s79, 1
s_lshl_b32 s{sT}, s{sT}, 2
s_or_b32 s2, s2, s{sT}
s_and_b32 s{sT}, s79, 4
s_lshl_b32 s{sT}, s{sT}, 1
s_or_b32 s2, s2, s{sT}
""")
e(f"""
s_and_b32 s{sQ}, s2, 3
s_lshr_b32 s{sB}, s2, 2
s_mul_i32 s{sN0}, s{sB}, {NB}
s_add_u32 s{sNEND}, s{sN0}, {NB}
s_min_u32 s{sNEND}, s{sNEND}, {N}
s_mul_i32 s{sT}, s2, {EPW*4}
v_lshlrev_b32 v8, 2, v0
v_mov_b32 v120, {DUMMY}
v_cmp_le_u32 vcc, {PAD}, v8
v_mov_b32 v121, {DUMMY}
v_mov_b32 v122, {DUMMY}
v_cndmask_b32 v9, 0, v120, vcc
ds_write_b32 v8, v9
v_mov_b32 v123, {DUMMY}
v_lshlrev_b32 v118, 4, v0
v_add_u32 v3, s{sT}, v8
v_lshrrev_b32 v4, 1, v3
v_lshrrev_b32 v10, 3, v0
v_lshlrev_b32 v5, 8, v10
v_and_b32 v10, 2, v10
v_lshrrev_b32 v11, 4, v0
v_and_or_b32 v10, v11, 4, v10
v_xor_b32 v10, v10, v0
v_and_b32 v10, 7, v10
v_lshl_add_u32 v5, v10, 4, v5
s_lshr_b32 s{sT+1}, s{sQ}, 1
s_lshl_b32 s{sT+1}, s{sT+1}, 7
v_add_u32 v5, s{sT+1}, v5
v_add_u32 v7, 32768, v5
v_xor_b32 v10, v11, v0
v_and_b32 v10, 15, v10
v_lshlrev_b32 v6, 8, v11
v_lshl_add_u32 v6, v10, 4, v6
s_and_b32 s{sT+2}, s{sQ}, 1
s_mul_i32 s{sT+2}, s{sT+2}, 80
s_add_u32 s{sT+3}, s{sT+2}, s{sN0}
s_lshl_b32 s{sT+3}, s{sT+3}, 8
v_add_u32 v6, s{sT+3}, v6
v_add_u32 v9, 4096, v6
; c offset
v_and_b32 v10, 7, v0
v_lshlrev_b32 v10, 3, v10
s_lshl_b32 s{sT+3}, s{sQ}, 6
s_add_u32 s{sT+3}, s{sT+3}, 65536
v_add_u32 v116, s{sT+3}, v10
s_bfe_u32 s{sT+3}, s79, 0x40003
s_lshl_b32 s{sT+3}, s{sT+3}, 12
s_add_u32 s{sT+3}, s{sT+3}, s{sT+1}
v_lshlrev_b32 v10, 8, v1
v_add_u32 v10, s{sT+3}, v10
s_lshl_b32 s{sT+4}, s{sW}, 10
s_add_u32 s{sT+5}, s{sT+4}, {W1}
s_lshl_b32 s{sT+6}, s{sT+2}, 8
s_add_u32 s{sT+6}, s{sT+6}, s{sT+4}
s_add_u32 s{sT+6}, s{sT+6}, {XS}
s_mov_b32 s{SRDX+2}, {N*256}
s_mov_b32 s{SRDX+3}, 0x20000
s_mov_b32 s{SRDW+2}, 0x10000000
s_mov_b32 s{SRDW+3}, 0x20000
v_cmp_gt_u32 vcc, {EPW}, v0
s_cmp_ge_u32 s{sW}, 10
s_waitcnt lgkmcnt(0)
""")
if OPT&{'diagA','diagB','diagC','diagD'}:
    base={'diagA':TAB,'diagB':220<<20,'diagC':PRI,'diagD':0}[(OPT&{'diagA','diagB','diagC','diagD'}).pop()]
    per=8192 if 'diagC' in OPT else 10000 if 'diagD' in OPT else 16384
    srd=SRDW
    if 'diagD' in OPT:
        srd=SRDO
        e(f"""
        s_mov_b32 s{SRDO}, s{pOUT}
        s_mov_b32 s{SRDO+1}, s{pOUT+1}
        s_mov_b32 s{SRDO+2}, {N*256}
        s_mov_b32 s{SRDO+3}, 0x20000
        """)
    e("s_barrier")
    stamp("d0")
    e(f"""
    s_mul_i32 s{sT+7}, s2, {per}
    s_add_u32 s{sT+7}, s{sT+7}, {base}
    v_mov_b32 v127, {per}
    v_cmp_gt_u32 {sr(sM,2)}, v127, v118
    s_mov_b64 exec, {sr(sM,2)}
    s_cbranch_execz L_dskip
    buffer_store_dwordx4 v[120:123], v118, {sr(srd,4)}, s{sT+7} offen sc1
    L_dskip:
    s_mov_b64 exec, -1
    s_waitcnt vmcnt(0)
    s_barrier
    """)
    stamp("d1")
    e(f"s_cmp_ge_u32 s{sW}, 10")
e(f"""
s_load_dwordx2 {sr(NONCE,2)}, {sr(SRDW,2)}, 0
s_cbranch_scc1 L_noedge0
s_mov_b64 exec, vcc
global_load_dword v12, v3, {sr(pDST,2)}
global_load_dword v13, v3, {sr(pSRC,2)}
global_load_ushort v16, v4, {sr(pE,2)}
s_mov_b64 exec, -1
L_noedge0:
s_mov_b32 s{SRDX}, s{pX}
s_mov_b32 s{SRDX+1}, s{pX+1}
s_mov_b32 m0, s{sT+6}
s_cmp_eq_u32 s{sW}, 10
s_cbranch_scc0 L_nopf
s_bitcmp1_b32 s79, 7
s_cbranch_scc1 L_pfuv
s_mov_b64 exec, 0xffff
global_load_dword v127, v10, {sr(pG,2)}
s_mov_b64 exec, -1
s_branch L_nopf
L_pfuv:
s_bitcmp1_b32 s79, 6
s_cselect_b64 {sr(sM,2)}, {sr(pU,2)}, {sr(pV,2)}
v_and_b32 v10, 0x7fff, v10
s_mov_b64 exec, 0xffff
global_load_dword v127, v10, {sr(sM,2)}
s_mov_b64 exec, -1
L_nopf:
s_barrier
s_cmp_lt_u32 s{sW}, 12
buffer_load_dwordx4 v6, {sr(SRDX,4)}, 0 offen lds
s_cbranch_scc1 L_nox1b
s_add_u32 m0, s{sT+6}, 4096
s_nop 0
buffer_load_dwordx4 v9, {sr(SRDX,4)}, 0 offen lds
L_nox1b:
ds_write_b128 v118, v[120:123] offset:{W1-16384}
ds_write_b32 v8, v120 offset:{IMG+8192}
""")
e("; WARM")
stamp("issued")
e(f"""
s_mov_b32 s{SRDO}, s{pOUT}
s_mov_b32 s{SRDO+1}, s{pOUT+1}
s_lshl_b32 s{SRDO+2}, s{sNEND}, 8
s_mov_b32 s{SRDO+3}, 0x20000
s_mul_i32 s{sT}, s{sQ}, {TABQ}
s_add_u32 s{sT}, s{sT}, {TAB}
s_add_u32 s{SRDG}, s{SRDW}, s{sT}
s_addc_u32 s{SRDG+1}, s{SRDW+1}, 0
s_and_b32 s{SRDG+1}, s{SRDG+1}, 0xffff
s_or_b32 s{SRDG+1}, s{SRDG+1}, 0x800000
s_mov_b32 s{SRDG+2}, {0 if 'nogather' in OPT else N}
s_mov_b32 s{SRDG+3}, 0x20000
s_and_b32 s{sT}, s{sQ}, 2
s_bfe_u32 s{sT+1}, s{sW}, 0x10001
s_add_u32 s{sT}, s{sT}, s{sT+1}
s_mul_i32 s{sT}, s{sT}, {TABQ}
s_add_u32 s{sT}, s{sT}, {TAB}
s_add_u32 s{SRDT}, s{SRDW}, s{sT}
s_addc_u32 s{SRDT+1}, s{SRDW+1}, 0
s_lshl_b32 s{SRDT+2}, s{sNEND}, 7
s_mov_b32 s{SRDT+3}, 0x20000
s_lshl_b32 s{sCELL}, s{sB}, 15
s_add_u32 s{sCELL}, s{sCELL}, {PRI}
s_mov_b32 s{sK40}, {f2u(2.0**40):#x}
s_mov_b32 s{sKE}, {f2u(-LOG2E*2.0**-40):#x}
s_waitcnt lgkmcnt(0)
s_add_u32 s{NONCE}, s{NONCE}, 0x7f4a7c15
s_addc_u32 s{NONCE+1}, s{NONCE+1}, 0x9e3779b9
s_and_b32 s{sTAG24}, s{NONCE}, 0xffffff00
s_and_b32 s{sTAG14}, s{NONCE+1}, 0xfffc0000
""")
e(f"""
s_cmp_ge_u32 s{sW}, 10
s_cbranch_scc1 L_noedge1
s_mov_b64 exec, vcc
v_mov_b32 v20, 8
s_waitcnt vmcnt(1)
""")
stamp("edge")
e(f"""
v_mul_u32_u24 v17, 6679, v12
v_lshrrev_b32 v17, 20, v17
v_lshlrev_b32 v18, 2, v17
ds_add_rtn_u32 v19, v18, v20 offset:{BCNT}
v_mul_u32_u24 v15, {NB}, v17
v_sub_u32 v15, v12, v15
v_lshl_or_b32 v14, v16, 16, v13
s_waitcnt lgkmcnt(0)
v_lshl_add_u32 v18, v17, 7, v19
v_cmp_gt_u32 vcc, 128, v19
s_andn2_b64 {sr(sM,2)}, exec, vcc
s_cbranch_scc1 L_secstore
L_secback:
s_mov_b64 exec, vcc
ds_write_b64 v18, v[14:15] offset:{IMG}
s_mov_b64 exec, -1
L_noedge1:
s_waitcnt lgkmcnt(0)
s_barrier
""")
stamp("img")
e(f"""
s_cmp_ge_u32 s{sW}, 8
s_cbranch_scc1 L_hi
""")
def w1_loads():
    e(f"""
    s_mov_b32 m0, s{sT+5}
    s_nop 0
    global_load_lds_dwordx4 v7, {sr(pG,2)}
    s_add_u32 m0, s{sT+5}, 16384
    s_nop 0
    global_load_lds_dwordx4 v5, {sr(pV,2)}
    """)
def lane_terms():
    e(f"""
    v_and_b32 v11, 15, v1
    v_lshrrev_b32 v12, 4, v1
    v_xor_b32 v8, v11, v12
    v_lshlrev_b32 v8, 4, v8
    v_lshl_add_u32 v8, v11, 8, v8
    v_bfe_u32 v9, v1, 2, 2
    v_lshl_add_u32 v9, v12, 3, v9
    v_and_b32 v10, 3, v1
    v_lshlrev_b32 v10, 3, v10
    """)
WOP=36; XA=68; XB=84; ACC=[8,16,100]; CELL=108; CRAW=116
vWa=2; vXa=3; vSa=7
def gemm(tag,sstr,ustr,mstr,post,skipcond):
    def wreads(s):
        for m in range(2):
            for u in range(2):
                e(f"ds_read_b64_tr_b16 {vr(WOP+16*m+4*s+2*u,2)}, v{vWa} offset:{s*sstr+u*ustr+m*mstr}")
    def xread(buf,t,s): e(f"ds_read_b128 {vr(buf+4*s,4)}, v{vXa+s} offset:{8192*t}")
    def mf(acc,buf,s):
        for m in range(2):
            c = "0" if s==0 else vr(acc+4*m,4)
            e(f"v_mfma_f32_16x16x32_bf16 {vr(acc+4*m,4)}, {vr(WOP+16*m+4*s,4)}, {vr(buf+4*s,4)}, {c}")
    for s in range(3): wreads(s); xread(XA,0,s)
    e("s_waitcnt lgkmcnt(10)"); mf(ACC[0],XA,0)
    wreads(3); xread(XA,0,3)
    e("s_waitcnt lgkmcnt(10)"); mf(ACC[0],XA,1)
    for s in range(4): xread(XB,1,s)
    e("s_waitcnt lgkmcnt(9)"); mf(ACC[0],XA,2)
    e("s_waitcnt lgkmcnt(4)"); mf(ACC[0],XA,3)
    e("s_waitcnt lgkmcnt(0)")
    mf(ACC[1],XB,0)
    for s in range(4): xread(XA,2,s)
    for s in range(1,4): mf(ACC[1],XB,s)
    post(0)
    e(skipcond); e(f"s_cbranch_scc1 L_{tag}_two")
    e("s_waitcnt lgkmcnt(0)")
    for s in range(4): mf(ACC[2],XA,s)
    post(1)
    e("s_nop 3")
    post(2)
    e(f"s_branch L_{tag}_done")
    e(f"L_{tag}_two:")
    post(1)
    e(f"L_{tag}_done:")
def cell_loads():
    e(f"""
    v_add_u32 v119, 16384, v118
    global_load_dwordx2 v[116:117], v116, {sr(pG,2)}
    buffer_load_dwordx4 {vr(CELL,4)}, v118, {sr(SRDW,4)}, s{sCELL} offen sc1
    buffer_load_dwordx4 {vr(CELL+4,4)}, v119, {sr(SRDW,4)}, s{sCELL} offen sc1
    """)
w1_loads()
lane_terms()
KG=2.0**40*(1-0.00135)
e(f"""
s_and_b32 s{sT}, s{sW}, 3
v_bfe_u32 v13, v1, 3, 2
v_xor_b32 v13, s{sT}, v13
v_lshl_add_u32 v13, v13, 5, v10
v_lshl_add_u32 v13, v9, 7, v13
v_add_u32 v{vWa}, {W1}, v13
s_lshr_b32 s{sT+1}, s{sW}, 2
s_lshl_b32 s{sT+1}, s{sT+1}, 4
s_add_u32 s{sT+1}, s{sT+1}, s{sT+2}
s_lshl_b32 s{sT+3}, s{sT+1}, 8
s_add_u32 s{sT+3}, s{sT+3}, {XS}
v_add_u32 v{vXa}, s{sT+3}, v8
v_xor_b32 v{vXa+1}, 64, v{vXa}
v_xor_b32 v{vXa+2}, 128, v{vXa}
v_xor_b32 v{vXa+3}, 192, v{vXa}
s_add_u32 s{sT+1}, s{sT+1}, s{sN0}
s_lshl_b32 s{sT+1}, s{sT+1}, 7
s_and_b32 s{sT}, s{sW}, 1
s_lshl_b32 s{sT}, s{sT}, 6
s_add_u32 s{sT+1}, s{sT+1}, s{sT}
v_lshlrev_b32 v{vSa}, 7, v11
v_lshl_add_u32 v{vSa}, v12, 4, v{vSa}
v_add_u32 v{vSa}, s{sT+1}, v{vSa}
s_mov_b32 s{sT+4}, {f2u(LOG2E):#x}
s_mov_b32 s{sT+5}, {f2u(KG):#x}
""")
if args.stamps and 'x1' not in SKIP: e("s_waitcnt vmcnt(2)"); stamp("x1")
e("s_waitcnt vmcnt(0)")
e("s_barrier")
stamp("B1")
PK=[24,28,32]
def post_qh(t):
    a=ACC[t]; p=PK[t]
    for i in range(4): e(f"v_mul_f32 v{a+i}, s{sT+4}, v{a+i}")
    for i in range(4): e(f"v_exp_f32 v{a+i}, v{a+i}")
    for i in range(4): e(f"v_mul_f32 v{a+4+i}, s{sT+5}, v{a+4+i}")
    for i in range(4): e(f"v_mul_f32 v{a+4+i}, v{a+i}, v{a+4+i}")
    for i in range(4): e(f"v_cvt_pk_bf16_f32 v{p+i}, v{a+i}, v{a+4+i}")
    e(f"buffer_store_dwordx4 {vr(p,4)}, v{vSa}, {sr(SRDT,4)}, 0 offen sc1")
    e(f"v_add_u32 v{vSa}, 4096, v{vSa}")
gemm("qh",4096,512,16384,post_qh,f"s_cmp_ge_u32 s{sW}, 4")
stamp("gemm")
cell_loads()
e("s_barrier")
e("s_branch L_cells")
e("L_hi:")
e(f"""
v_subrev_u32 v8, 512, v0
v_lshlrev_b32 v9, 4, v8
v_lshrrev_b32 v10, 3, v8
v_lshlrev_b32 v11, 2, v10
ds_read_b128 v[12:15], v9 offset:{IMG}
ds_read_b32 v16, v11 offset:{BCNT}
""")
w1_loads()
e(f"""
v_lshlrev_b32 v10, 15, v10
ds_write_b128 v9, v[120:123] offset:{IMG}
v_and_b32 v9, 0x70, v9
v_add_u32 v10, v10, v9
s_lshl_b32 s{sT}, s2, 7
s_add_u32 s{sT}, s{sT}, {PRI}
v_mov_b32 v17, 0xff
s_sub_u32 s{sT+1}, 80, s{sT+2}
s_sub_u32 s{sT+3}, s{sT+1}, s{sT+2}
s_lshl_b32 s{sT+3}, s{sT+3}, 8
s_sub_u32 s{sT+3}, s{sT+3}, 8192
v_add_u32 v18, s{sT+3}, v6
v_add_u32 v19, 8192, v18
v_add_u32 v20, 16384, v18
s_lshl_b32 s{sT+1}, s{sT+1}, 8
s_add_u32 s{sT+1}, s{sT+1}, s{sT+4}
s_add_u32 s{sT+1}, s{sT+1}, {XS-8192}
v_lshrrev_b32 v21, 2, v8
v_lshlrev_b32 v21, 8, v21
v_lshrrev_b32 v22, 4, v1
v_and_b32 v22, 2, v22
v_xor_b32 v22, v22, v1
v_and_b32 v22, 3, v22
v_lshl_add_u32 v21, v22, 4, v21
s_lshl_b32 s{sT+3}, s{sQ}, 6
v_add_u32 v21, s{sT+3}, v21
s_waitcnt lgkmcnt(1)
v_and_or_b32 v13, v13, v17, s{sTAG24}
v_lshl_or_b32 v16, v16, 5, s{sTAG14}
v_and_or_b32 v15, v15, v17, v16
s_add_u32 s{sT+8}, s{sT+4}, {W2-8192}
s_mov_b32 s{sT+9}, s{sT+1}
buffer_store_dwordx4 v[12:15], v10, {sr(SRDW,4)}, s{sT} offen sc1
""")
def w2_loads():
    e(f"""
    s_mov_b32 m0, s{sT+8}
    s_nop 0
    global_load_lds_dwordx4 v21, {sr(pG,2)}
    s_add_u32 m0, s{sT+8}, 8192
    s_nop 0
    global_load_lds_dwordx4 v21, {sr(pU,2)}
    """)
def x2_loads(after):
    e(f"""
    s_mov_b32 m0, s{sT+9}
    s_nop 0
    buffer_load_dwordx4 v18, {sr(SRDX,4)}, 0 offen lds
    s_add_u32 m0, s{sT+9}, 8192
    s_cmp_ge_u32 s{sW}, 12
    buffer_load_dwordx4 v19, {sr(SRDX,4)}, 0 offen lds
    s_cbranch_scc1 L_nox2c
    s_add_u32 m0, s{sT+9}, 16384
    s_nop 0
    buffer_load_dwordx4 v20, {sr(SRDX,4)}, 0 offen lds
    """)
    if after is not None:
        e(f"""
        s_waitcnt vmcnt({after+3})
        s_branch L_x2c
        L_nox2c:
        s_waitcnt vmcnt({after+2})
        L_x2c:
        """)
    else: e("L_nox2c:")
e("s_waitcnt lgkmcnt(0)")
if 'ordA' in OPT:
    x2_loads(1); e("s_barrier"); w2_loads()
elif 'ordC' in OPT:
    e("s_waitcnt vmcnt(1)"); e("s_barrier"); w2_loads(); x2_loads(None)
else:
    w2_loads(); e("s_waitcnt vmcnt(3)"); e("s_barrier"); x2_loads(None)
stamp("B1")
lane_terms()
e(f"""
s_and_b32 s{sT}, s{sW}, 1
v_and_b32 v13, 1, v12
v_xor_b32 v13, s{sT}, v13
v_lshl_add_u32 v13, v13, 5, v10
v_lshl_add_u32 v13, v9, 6, v13
v_add_u32 v{vWa}, {W2}, v13
s_bfe_u32 s{sT+1}, s{sW}, 0x10001
s_mul_i32 s{sT+1}, s{sT+1}, 5
s_bfe_u32 s{sT+3}, s{sW}, 0x10002
s_add_u32 s{sT+1}, s{sT+1}, s{sT+3}
s_lshl_b32 s{sT+3}, s{sT+1}, 12
s_add_u32 s{sT+3}, s{sT+3}, {XS}
v_add_u32 v{vXa}, s{sT+3}, v8
v_xor_b32 v{vXa+1}, 64, v{vXa}
v_xor_b32 v{vXa+2}, 128, v{vXa}
v_xor_b32 v{vXa+3}, 192, v{vXa}
s_mul_i32 s{sT+1}, s{sT+1}, {16*NSTR}
s_lshl_b32 s{sT}, s{sT}, 6
s_add_u32 s{sT+1}, s{sT+1}, s{sT}
s_add_u32 s{sT+1}, s{sT+1}, {NS}
v_mul_u32_u24 v{vSa}, {NSTR}, v11
v_lshl_add_u32 v{vSa}, v12, 4, v{vSa}
v_add_u32 v{vSa}, s{sT+1}, v{vSa}
s_mov_b32 s{sT+4}, {f2u(-LOG2E):#x}
""")
e("s_waitcnt vmcnt(0)")
e("s_barrier")
stamp("B1b")
cell_loads()
def post_pu(t):
    a=ACC[t]
    for i in range(4): e(f"v_mul_f32 v{a+i}, s{sT+4}, v{a+i}")
    for i in range(4): e(f"v_mul_f32 v{a+4+i}, s{sK40}, v{a+4+i}")
    e(f"ds_write_b128 v{vSa}, {vr(a,4)} offset:{t*32*NSTR}")
    e(f"ds_write_b128 v{vSa}, {vr(a+4,4)} offset:{t*32*NSTR+128}")
gemm("pu",2048,256,8192,post_pu,f"s_cmp_ge_u32 s{sW}, 12")
stamp("gemm")
vN,vM,vU,vP,vE,vC,vA,IA,IB,X,Y,xX,xY=8,12,16,20,24,28,32,36,44,52,68,84,100
vLA,vOA=2,3
e("L_cells:")
e(f"""
s_mov_b32 s{sSPIN}, 0
v_bfe_u32 v4, v1, 2, 2
v_lshrrev_b32 v5, 4, v1
v_cmp_eq_u32 vcc, v4, v5
v_and_b32 v4, 3, v1
v_mov_b32 v5, 0x3f80
v_cndmask_b32 v4, 4, v4, vcc
""")
for i in range(4):
    e(f"v_cmp_eq_u32 vcc, {i}, v4")
    e(f"v_mov_b32 v{vE+i}, 0")
    if i==0: e("v_and_b32 v6, 7, v1")
    elif i==1: e(f"v_lshlrev_b32 v{IA+1}, 4, v6")
    elif i==2: e(f"v_lshlrev_b32 v7, 1, v6")
    else: e(f"v_mov_b32 v20, 4")
    e(f"v_cndmask_b32 v{vA+i}, 0, v5, vcc")
for r in (IA+3,IA+5,IA+7,IB+1,IB+3,IB+5,IB+7): e(f"v_mov_b32 v{r}, v{IA+1}")
c0=CELL
e(f"""
v_lshlrev_b32 v124, 2, v6
v_mov_b32 v125, 0x3f80
s_cmp_ge_u32 s{sW}, 8
s_cbranch_scc1 L_cellwait
v_mov_b32 v8, 1
v_mov_b32 v9, 0
v_mov_b32 v10, s{NONCE}
v_mov_b32 v11, s{NONCE+1}
s_lshl_b32 s{sT}, s2, 7
s_add_u32 s{sT}, s{sT}, {FLG}
s_mov_b64 exec, 1
s_waitcnt vmcnt(3)
ds_add_rtn_u32 v8, v9, v8 offset:{DONE}
s_waitcnt lgkmcnt(0)
v_cmp_eq_u32 vcc, 7, v8
s_cbranch_vccz L_nosig
buffer_store_dwordx2 v[10:11], v9, {sr(SRDW,4)}, s{sT} offen sc1
s_mov_b64 exec, -1
""")
stamp("sig")
e(f"""
s_waitcnt vmcnt(1)
s_branch L_cellchk
L_nosig:
s_mov_b64 exec, -1
L_cellwait:
s_waitcnt vmcnt(0)
L_cellchk:
v_xor_b32 v8, s{sTAG24}, v{c0+1}
v_xor_b32 v9, s{sTAG24}, v{c0+5}
v_xor_b32 v10, s{sTAG14}, v{c0+3}
v_xor_b32 v11, s{sTAG14}, v{c0+7}
v_or_b32 v8, v8, v9
v_or_b32 v9, v10, v11
v_lshrrev_b32 v9, 10, v9
v_or_b32 v8, v8, v9
v_cmp_lt_u32 vcc, 255, v8
s_cbranch_vccnz L_cellretry
L_cellok:
v_lshrrev_b32 v10, 8, v10
v_lshrrev_b32 v11, 8, v11
v_max_u32 v21, v10, v11
v_add_u32 v22, 16, v6
v_cmp_gt_u32 vcc, v21, v22
v_add_u32 v9, 1, v7
s_cbranch_vccnz L_secload
L_secnone:
""")
def insert(recs, masks):
    for k,(r0,rl) in enumerate(recs):
        e(f"s_mov_b64 exec, {sr(masks[k],2)}")
        e(f"v_lshlrev_b32_sdwa v{12+k}, 2, v{rl} dst_sel:DWORD dst_unused:UNUSED_PAD src0_sel:DWORD src1_sel:BYTE_0")
        e(f"ds_add_rtn_u32 v{16+k}, v{12+k}, v20 offset:{NCNT}")
    n=len(recs)
    for k,(r0,rl) in enumerate(recs):
        e(f"s_mov_b64 exec, {sr(masks[k],2)}")
        e(f"s_waitcnt lgkmcnt({n-1-k+2*k})")
        e(f"v_min_u32 v{16+k}, {4*(CAP-1)}, v{16+k}")
        e(f"v_mad_u32_u24 v{12+k}, v{12+k}, {LSTR}, v{16+k}")
        e(f"v_lshl_add_u32 v{16+k}, v{16+k}, 3, v124")
        e(f"ds_add_u32 v{16+k}, v20 offset:{GE}")
        e(f"ds_write_b32 v{12+k}, v{r0} offset:{LISTS}")
    e("s_mov_b64 exec, -1")
e(f"""
v_cmp_gt_u32 {sr(sM,2)}, v10, v7
v_cmp_gt_u32 {sr(sM+2,2)}, v10, v9
v_cmp_gt_u32 {sr(sM+4,2)}, v11, v7
v_cmp_gt_u32 {sr(sM+6,2)}, v11, v9
""")
insert([(c0,c0+1),(c0+2,c0+3),(c0+4,c0+5),(c0+6,c0+7)],[sM,sM+2,sM+4,sM+6])
e(f"""
s_cbranch_vccnz L_secins
L_insdone:
s_mov_b32 s{sT}, {f2u(-LOG2E):#x}
v_lshlrev_b32 v{vC}, 16, v{CRAW}
v_and_b32 v{vC+1}, 0xffff0000, v{CRAW}
v_lshlrev_b32 v{vC+2}, 16, v{CRAW+1}
v_and_b32 v{vC+3}, 0xffff0000, v{CRAW+1}
""")
for i in range(4): e(f"v_mul_f32 v{vC+i}, s{sT}, v{vC+i}")
stamp("ins")
PL=X
e(f"""
s_cmp_eq_u32 s{sW}, 15
s_cbranch_scc0 L_nopoll0
v_lshlrev_b32 v118, 9, v1
s_lshr_b32 s{sT+8}, s{sQ}, 1
s_lshl_b32 s{sT+8}, s{sT+8}, 8
s_add_u32 s{sT+8}, s{sT+8}, {FLG}
buffer_load_dwordx2 {vr(PL,2)}, v118, {sr(SRDW,4)}, s{sT+8} offen sc1
buffer_load_dwordx2 {vr(PL+2,2)}, v118, {sr(SRDW,4)}, s{sT+8} offen offset:128 sc1
L_nopoll0:
s_waitcnt lgkmcnt(0)
s_barrier
s_cmp_ge_u32 s{sW}, 3
s_cbranch_scc1 L_noorder
v_cmp_gt_u32 vcc, 160, v0
v_lshlrev_b32 v8, 2, v0
s_mov_b64 exec, vcc
ds_read_b32 v9, v8 offset:{NCNT}
s_waitcnt lgkmcnt(0)
v_cmp_lt_u32 vcc, {4*CAP}, v9
v_min_u32 v9, {4*CAP}, v9
ds_add_rtn_u32 v10, v9, v20 offset:{TIE}
v_lshlrev_b32 v8, 3, v9
ds_read_b128 v[12:15], v8 offset:{GE}
ds_read_b128 v[16:19], v8 offset:{GE+16}
v_lshl_or_b32 v11, v9, 14, v0
s_cbranch_vccnz L_overflow
L_ovback:
s_waitcnt lgkmcnt(1)
v_add3_u32 v10, v10, v12, v13
v_add3_u32 v10, v10, v14, v15
s_waitcnt lgkmcnt(0)
v_add3_u32 v10, v10, v16, v17
v_add3_u32 v10, v10, v18, v19
v_min_u32 v10, 636, v10
ds_write_b32 v10, v11 offset:{ORDER}
s_mov_b64 exec, -1
s_or_b32 s{sT}, s2, s{sW}
s_cbranch_scc1 L_noorder
s_mov_b64 exec, 1
v_mov_b32 v8, s{NONCE}
v_mov_b32 v9, s{NONCE+1}
v_mov_b32 v10, 0
buffer_store_dwordx2 v[8:9], v10, {sr(SRDW,4)}, 0 offen sc1
s_mov_b64 exec, -1
L_noorder:
s_and_b32 s{sT}, s{sW}, 3
s_lshr_b32 s{sT+1}, s{sW}, 2
s_sub_u32 s{sTASK2}, 19, s{sT}
s_sub_u32 s{sI}, 15, s{sT}
s_cmp_eq_u32 s{sT+1}, 0
s_cselect_b32 s{sTASK2}, s{sTASK2}, 0
s_cmp_eq_u32 s{sT+1}, 1
s_cselect_b32 s{sI}, s{sT}, s{sI}
s_sub_u32 s{sT+2}, 7, s{sT}
s_cmp_eq_u32 s{sT+1}, 2
s_cselect_b32 s{sI}, s{sT+2}, s{sI}
s_add_u32 s{sT+2}, 8, s{sT}
s_cmp_eq_u32 s{sT+1}, 3
s_cselect_b32 s{sI}, s{sT+2}, s{sI}
v_lshrrev_b32 v116, 3, v1
v_lshlrev_b32 v116, 2, v116
s_lshl_b32 s{sT}, s{sN0}, 8
s_lshl_b32 s{sT+1}, s{sQ}, 6
s_add_u32 s{sT}, s{sT}, s{sT+1}
v_lshlrev_b32 v117, 3, v6
v_add_u32 v117, s{sT}, v117
v_add_u32 v119, {NS}, v{IA+1}
s_mov_b32 s{sT+9}, 1
s_waitcnt lgkmcnt(0)
s_barrier
""")
stamp("ord")
def idxreads(I,off):
    for k in (3,2,1,0): e(f"ds_read_u16 v{I+2*k}, v{vLA} offset:{off+4*k}")
def ereads(off):
    for k in range(4): e(f"ds_read_u16_d16_hi v{vE+k}, v{vLA} offset:{off+4*k+2}")
def apk(x):
    for k in (3,2,1,0):
        sel = "op_sel_hi:[0,1,1]" if k%2==0 else "op_sel:[1,0,0] op_sel_hi:[1,1,1]"
        for h in range(2):
            e(f"v_pk_fma_f32 {vr(x+4*k+2*h,2)}, {vr(vE+(k&2),2)}, {vr(vC+2*h,2)}, {vr(vP+2*h,2)} {sel}")
def exps(x,k):
    if 'novalu' in OPT: return
    for i in range(4): e(f"v_exp_f32 v{x+4*k+i}, v{x+4*k+i}")
def gath(B,I):
    for k in (3,2,1,0): e(f"buffer_load_dwordx4 {vr(B+4*k,4)}, {vr(I+2*k,2)}, {sr(SRDG,4)}, 0 idxen offen{'' if 'nosc1' in OPT else ' sc1'}")
def mext(B,x,k):
    if 'dot' in OPT:
        for i in range(4): e(f"v_dot2c_f32_bf16 v{x+4*k+i}, v125, v{B+4*k+i}")
    else: e(f"v_mfma_f32_16x16x32_bf16 {vr(x+4*k,4)}, {vr(vA,4)}, {vr(B+4*k,4)}, {vr(x+4*k,4)}")
def frac(B,x,k):
    if 'novalu' in OPT: e("s_nop 7"); return
    for h in range(2): e(f"v_pk_mul_f32 {vr(vU+2*h,2)}, {vr(B+4*k+2*h,2)}, {vr(vM+2*h,2)}")
    for h in range(2):
        e(f"v_pk_fma_f32 {vr(vN+2*h,2)}, {vr(vN+2*h,2)}, {vr(x+4*k+2*h,2)}, {vr(vU+2*h,2)}")
        e(f"v_pk_mul_f32 {vr(vM+2*h,2)}, {vr(vM+2*h,2)}, {vr(x+4*k+2*h,2)}")
e(f"""
L_task:
s_lshl_b32 s{sT}, s{sI}, 5
v_add_u32 v4, s{sT}, v116
ds_read_b32 v4, v4 offset:{ORDER}
v_mov_b32 v{vM}, 1.0
v_mov_b32 v{vM+1}, 1.0
v_mov_b32 v{vM+2}, 1.0
v_mov_b32 v{vM+3}, 1.0
s_waitcnt lgkmcnt(0)
v_readfirstlane_b32 s{sT}, v4
v_and_b32 v4, 0xff, v4
s_movk_i32 s{sT+2}, {NSTR}
v_mad_u32_u24 v5, v4, s{sT+2}, v119
s_lshr_b32 s{sT}, s{sT}, 16
s_add_u32 s{sREM}, s{sT}, 3
s_lshr_b32 s{sREM}, s{sREM}, 2
s_lshl_b32 s{sT+1}, s{sREM}, 4
s_add_u32 s{sT+1}, s{sT+1}, {LISTS-48}
v_mul_u32_u24 v{vLA}, {4*LSTR}, v4
v_add_u32 v{vLA}, s{sT+1}, v{vLA}
ds_read_b128 {vr(vP,4)}, v5
""")
ereads(32)
e(f"ds_read_b128 {vr(vN,4)}, v5 offset:128")
idxreads(IA,32)
idxreads(IB,16)
e(f"v_lshl_add_u32 v{vOA}, v4, 8, v117")
e(f"s_and_b32 s{sT+3}, s{sT}, 3")
e("s_waitcnt lgkmcnt(9)")
apk(xX)
ereads(16)
for k in (3,2,1,0): exps(xX,k)
e("s_waitcnt lgkmcnt(0)")
apk(xY)
ereads(0)
e(f"""
s_cmp_eq_u32 s{sT+9}, 0
s_cbranch_scc1 L_go
s_mov_b32 s{sT+9}, 0
s_cmp_eq_u32 s{sW}, 15
s_cbranch_scc0 L_nopoll1
s_mov_b32 s{sSPIN}, 0
L_poll:
s_waitcnt vmcnt(0)
v_cmp_ne_u64 vcc, {sr(NONCE,2)}, {vr(PL,2)}
v_cmp_ne_u64 {sr(sM,2)}, {sr(NONCE,2)}, {vr(PL+2,2)}
s_or_b64 vcc, vcc, {sr(sM,2)}
s_cbranch_scc0 L_nopoll1
s_add_u32 s{sSPIN}, s{sSPIN}, 1
s_cmp_ge_u32 s{sSPIN}, 0x8000
s_cbranch_scc1 L_nopoll1
buffer_load_dwordx2 {vr(PL,2)}, v118, {sr(SRDW,4)}, s{sT+8} offen sc1
buffer_load_dwordx2 {vr(PL+2,2)}, v118, {sr(SRDW,4)}, s{sT+8} offen offset:128 sc1
s_branch L_poll
L_nopoll1:
""")
stamp("pre")
e("s_barrier")
stamp("B3")
e(f"""
L_go:
s_cmp_eq_u32 s{sREM}, 0
s_cbranch_scc1 L_fin
""")
gath(X,IA); gath(Y,IB); idxreads(IA,0)
for k in (3,2,1,0): exps(xY,k)
e("s_waitcnt vmcnt(4)")
for k in (3,2,1,0): mext(X,xX,k)
e(f"""
s_nop 3
s_cmp_eq_u32 s{sT+3}, 1
s_cbranch_scc1 L_fx0
s_cmp_eq_u32 s{sT+3}, 2
s_cbranch_scc1 L_fx1
s_cmp_eq_u32 s{sT+3}, 3
s_cbranch_scc1 L_fx2
""")
def half(tag,B,x,B2,x2,tag2,last):
    for k in (3,2,1,0):
        e(f"L_f{tag}{k}:")
        frac(B,x,k)
    e(f"""
    s_sub_u32 s{sREM}, s{sREM}, 1
    s_cmp_le_u32 s{sREM}, 1
    s_cbranch_scc1 L_tail{tag}
    s_waitcnt lgkmcnt(0)
    """)
    gath(B,IA)
    apk(x)
    e(f"v_subrev_u32 v{vLA}, 16, v{vLA}")
    idxreads(IA,0); ereads(0)
    e("s_waitcnt vmcnt(4)")
    for k in (3,2,1,0):
        mext(B2,x2,k); exps(x,k)
    if last: e(f"s_branch L_f{tag2}3")
def tail(tag,B2,x2,tag2):
    e(f"""
    L_tail{tag}:
    s_cmp_eq_u32 s{sREM}, 0
    s_cbranch_scc1 L_fin
    s_waitcnt vmcnt(0)
    """)
    for k in (3,2,1,0): mext(B2,x2,k)
    e("s_nop 1")
    e(f"s_branch L_f{tag2}3")
half('x',X,xX,Y,xY,'y',False)
half('y',Y,xY,X,xX,'x',True)
tail('x',Y,xY,'y')
tail('y',X,xX,'x')
e("L_fin:")
e("s_waitcnt lgkmcnt(0)")
for i in range(4): e(f"v_rcp_f32 v{vM+i}, v{vM+i}")
for h in range(2): e(f"v_pk_mul_f32 {vr(vN+2*h,2)}, {vr(vN+2*h,2)}, {vr(vM+2*h,2)}")
for h in range(2): e(f"v_pk_mul_f32 {vr(vM+2*h,2)}, {vr(vN+2*h,2)}, {sr(sKE,2)} op_sel_hi:[1,0]")
for i in range(4): e(f"v_exp_f32 v{vM+i}, v{vM+i}")
for h in range(2): e(f"v_pk_fma_f32 {vr(vM+2*h,2)}, {vr(vM+2*h,2)}, {sr(sK40,2)}, {sr(sK40,2)} op_sel_hi:[1,0,0]")
for i in range(4): e(f"v_rcp_f32 v{vM+i}, v{vM+i}")
for h in range(2): e(f"v_pk_mul_f32 {vr(vU+2*h,2)}, {vr(vN+2*h,2)}, {vr(vM+2*h,2)}")
e(f"""
v_cvt_pk_bf16_f32 v{vU}, v{vU}, v{vU+1}
v_cvt_pk_bf16_f32 v{vU+1}, v{vU+2}, v{vU+3}
buffer_store_dwordx2 {vr(vU,2)}, v{vOA}, {sr(SRDO,4)}, 0 offen{' sc1' if 'osc1' in OPT else ' nt' if 'ont' in OPT else ''}
s_mov_b32 s{sI}, s{sTASK2}
s_mov_b32 s{sTASK2}, 0
s_cmp_lg_u32 s{sI}, 0
s_cbranch_scc1 L_task
""")
stamp("end")
if args.stamps:
    e(f"""
    s_waitcnt vmcnt(0) lgkmcnt(0)
    s_lshl_b32 s{sT}, s2, 4
    s_add_u32 s{sT}, s{sT}, s{sW}
    s_lshl_b32 s{sT}, s{sT}, 6
    s_add_u32 s{sT}, s{sT}, {DBG}
    v_mov_b32 v4, 0
    """)
    for i in range(nstamp[0]): e(f"v_writelane_b32 v4, s{sST+2*i}, {i}")
    e(f"""
    v_writelane_b32 v4, s{sSPIN}, 15
    v_lshlrev_b32 v5, 2, v1
    s_mov_b64 exec, 0xffff
    buffer_store_dword v4, v5, {sr(SRDW,4)}, s{sT} offen
    """)
if args.probe:
    pn,pwg,pw=args.probe.split(',')
    pi=stampnames.index(pn)
    e(f"""
    s_cmp_eq_u32 s2, {pwg}
    s_cbranch_scc0 L_end
    s_cmp_eq_u32 s{sW}, {pw}
    s_cbranch_scc0 L_end
    s_add_u32 s{sT}, s{sST+2*pi}, 4000
    L_probe:
    s_memrealtime {sr(sT+2,2)}
    s_waitcnt lgkmcnt(0)
    s_sub_u32 s{sT+1}, s{sT+2}, s{sT}
    s_cmp_lt_i32 s{sT+1}, 0
    s_cbranch_scc1 L_probe
    """)
e("L_end:")
e("s_endpgm")
e(f"""
L_secstore:
s_mov_b64 exec, {sr(sM,2)}
v_lshlrev_b32 v21, 8, v17
v_add_u32 v21, s2, v21
v_mul_u32_u24 v21, 10240, v21
v_lshl_add_u32 v21, v19, 1, v21
v_mov_b32 v24, v14
v_mov_b32 v25, v15
v_mov_b32 v26, s{NONCE}
v_mov_b32 v27, s{NONCE+1}
s_mov_b32 s{sT+7}, {SEC}
buffer_store_dwordx4 v[24:27], v21, {sr(SRDW,4)}, s{sT+7} offen sc1
s_branch L_secback
L_cellretry:
s_add_u32 s{sSPIN}, s{sSPIN}, 1
s_cmp_ge_u32 s{sSPIN}, 0x8000
s_cbranch_scc1 L_end
s_sleep 2
buffer_load_dwordx4 {vr(CELL,4)}, v118, {sr(SRDW,4)}, s{sCELL} offen sc1
buffer_load_dwordx4 {vr(CELL+4,4)}, v119, {sr(SRDW,4)}, s{sCELL} offen sc1
s_branch L_cellwait
""")
S0,S1=X,X+4
def secissue():
    e(f"""
    v_cmp_gt_u32 {sr(sM+8,2)}, v10, v22
    v_cmp_gt_u32 {sr(sM+10,2)}, v11, v22
    v_lshl_add_u32 v4, v22, 4, v23
    v_add_u32 v5, {128*10240}, v4
    s_mov_b64 exec, {sr(sM+8,2)}
    buffer_load_dwordx4 {vr(S0,4)}, v4, {sr(SRDW,4)}, s{sT+7} offen sc1
    s_mov_b64 exec, {sr(sM+10,2)}
    buffer_load_dwordx4 {vr(S1,4)}, v5, {sr(SRDW,4)}, s{sT+7} offen sc1
    s_mov_b64 exec, -1
    """)
e(f"""
L_secload:
v_lshrrev_b32 v23, 3, v0
v_mul_u32_u24 v23, 10240, v23
s_mul_i32 s{sT+7}, s{sB}, {256*10240}
s_add_u32 s{sT+7}, s{sT+7}, {SEC}
""")
secissue()
e(f"""
s_branch L_secnone
L_secagain:
""")
secissue()
e(f"""
L_secins:
s_waitcnt vmcnt(0)
v_cmp_ne_u64 {sr(sM,2)}, {sr(NONCE,2)}, {vr(S0+2,2)}
v_cmp_ne_u64 {sr(sM+2,2)}, {sr(NONCE,2)}, {vr(S1+2,2)}
s_and_b64 {sr(sM,2)}, {sr(sM,2)}, {sr(sM+8,2)}
s_and_b64 {sr(sM+2,2)}, {sr(sM+2,2)}, {sr(sM+10,2)}
s_or_b64 {sr(sM,2)}, {sr(sM,2)}, {sr(sM+2,2)}
s_cbranch_scc0 L_secok
s_add_u32 s{sSPIN}, s{sSPIN}, 1
s_cmp_ge_u32 s{sSPIN}, 0x8000
s_cbranch_scc1 L_end
s_branch L_secagain
L_secok:
s_waitcnt lgkmcnt(0)
""")
insert([(S0,S0+1),(S1,S1+1)],[sM+8,sM+10])
e(f"""
v_add_u32 v22, 8, v22
v_cmp_gt_u32 vcc, v21, v22
s_cbranch_vccnz L_secagain
s_branch L_insdone
L_overflow:
v_mov_b32 v8, 0
ds_write_b32 v8, v20 offset:{FAIL}
s_branch L_ovback
""")
out.append('.section .rodata,"a"')
out.append('.p2align 6')
out.append(f""".amdhsa_kernel {NAME}_kernel
  .amdhsa_next_free_vgpr 128
  .amdhsa_next_free_sgpr 102
  .amdhsa_accum_offset 128
  .amdhsa_group_segment_fixed_size 0
  .amdhsa_kernarg_size 80
  .amdhsa_user_sgpr_count 2
  .amdhsa_user_sgpr_kernarg_segment_ptr 1
  .amdhsa_system_sgpr_workgroup_id_x 1
.end_amdhsa_kernel""")
def offsets(lines):
    import subprocess,re,tempfile,os
    d=tempfile.mkdtemp()
    txt=[]
    for i,l in enumerate(lines):
        t=l.strip()
        if l.startswith('    ') and not t.startswith(';'): txt.append(f"Z_{i}:")
        txt.append(l)
    open(d+"/a.s","w").write("\n".join(txt)+"\n")
    subprocess.check_call(["clang","-x","assembler","-target","amdgcn-amd-amdhsa","-mcpu=gfx950","-c",d+"/a.s","-o",d+"/a.o"])
    o=subprocess.check_output(["llvm-readelf","-s",d+"/a.o"]).decode()
    return {int(m.group(2)):int(m.group(1),16) for m in re.finditer(r"^\s*\d+: ([0-9a-f]+) .* Z_(\d+)$",o,re.M)}
if 'nowarm' not in OPT:
    step=args.wstep
    off=offsets(out); iw=out.index('    ; WARM')
    idx=sorted(off); end=off[idx[-1]]
    nat=[i for k,i in enumerate(idx[:-1]) if out[i].split()[0] in ('s_branch','s_endpgm')]
    spots=[]; cur=args.wfirst
    while cur<end-128:
        cand=[i for i in nat if cur-160<=off[i]<=cur and i>iw and i not in [x for x,_ in spots]]
        if cand: i=max(cand,key=lambda i:off[i]); spots.append((i,True))
        else:
            i=max([i for i in idx if off[i]<=cur],key=lambda i:off[i]); spots.append((i,False))
        cur=off[i]+step
    assert len(spots)<=16, len(spots)
    for k,(i,isnat) in reversed(list(enumerate(spots))):
        ins=[f"L_stub{k}:","    s_branch L_warmret"]
        if not isnat: ins=[f"    s_branch L_skip{k}"]+ins+[f"L_skip{k}:"]
        out[i+1:i+1]=ins
    lad=[]
    for k in range(len(spots)): lad+=[f"    s_cmp_eq_u32 s{sW}, {15-k}",f"    s_cbranch_scc1 L_stub{k}"]
    out[iw+1:iw+1]=lad+["L_warmret:"]
if args.stamps: out.insert(0,"; stamps: "+",".join(stampnames))
print("\n".join(out))
```

```python
import sys, struct, argparse
ap=argparse.ArgumentParser()
ap.add_argument('--stamps',action='store_true')
ap.add_argument('--opt',default='')
ap.add_argument('--wstep',type=int,default=480)
ap.add_argument('--wfirst',type=int,default=896)
ap.add_argument('--base',type=int,default=1)
ap.add_argument('--skip',default='x1,edge,issued')
ap.add_argument('--probe',default='')
args=ap.parse_args()
if args.probe: args.stamps=True
OPT=set(args.opt.split(','))
NAME="gather_scatter__edge_featured_mpnn_egc__graph"
out=[]
def e(s):
    for l in s.strip('\n').split('\n'):
        l=l.strip()
        if not l: continue
        out.append(l if l.endswith(':') else '    '+l)
def f2u(x): return struct.unpack('<I',struct.pack('<f',x))[0]
def vr(a,n=1): return f"v{a}" if n==1 else f"v[{a}:{a+n-1}]"
def sr(a,n=1): return f"s{a}" if n==1 else f"s[{a}:{a+n-1}]"

N=10000; E=160000; NB=157; CAP=40; EPW=625
LOG2E=1.4426950408889634
BCNT=0; NCNT=256; TIE=896; DONE=1152; FAIL=1156; ORDER=1280; GE=2048; LSTR=CAP+1; PAD=3392; LISTS=PAD+64; IMG=4096
W1=29696; assert LISTS+160*LSTR*4<=W1 and GE+(CAP+1)*32<=PAD; W2=W1+32768; XS=W2+16384; NS=XS+40960; NSTR=272; LDS_TOTAL=NS+160*NSTR
TAB=args.base<<20; TABQ=N*128; PRI=TAB+(6<<20); FLG=TAB+(9<<20); SEC=(1<<20) if args.base>=170 else TAB+(10<<20); DBG=200<<20
assert SEC+16384*10240<=(256<<20) and FLG+32768<=(256<<20)
DUMMY=0x3fff
sW=3; pX,pE,pSRC,pDST,pU,pV,pG,pOUT=4,6,8,10,12,14,16,18
SRDX=20; SRDO=24; SRDW=28; SRDT=32; SRDG=36; NONCE=40
sQ=42; sB=43; sN0=44; sNEND=45; sT=46
sTAG24=56; sTAG14=57; sREM=58; sTASK2=59
sM=60
sK40=72; sKE=74; sSPIN=76; sCELL=77; sI=78
sST=80
nstamp=[0]; stampnames=[]
SKIP=set(args.skip.split(','))
def stamp(name):
    if args.stamps and name not in SKIP:
        if name not in stampnames: stampnames.append(name); nstamp[0]+=1
        i=stampnames.index(name); assert i<11
        e(f"{'s_memtime' if 'cyc' in OPT else 's_memrealtime'} {sr(sST+2*i,2)}")

e(f"""
; @launch grid=(256,1,1) block=(1024,1,1) lds={LDS_TOTAL}
""")
out[:]=[l.strip() for l in out]
out.append('.amdgcn_target "amdgcn-amd-amdhsa--gfx950"')
out.append('.text')
out.append(f'.globl {NAME}_kernel')
out.append('.p2align 8')
out.append(f'.type {NAME}_kernel,@function')
out.append(f'{NAME}_kernel:')

e(f"""
s_load_dwordx16 s[4:19], s[0:1], 0
s_load_dwordx2 {sr(SRDW,2)}, s[0:1], 72
s_cmp_ge_u32 s2, 256
s_cbranch_scc1 L_end
""")
if args.stamps:
    for i in range(11): e(f"s_mov_b32 s{sST+2*i}, 0")
stamp("start")
e(f"""
v_lshrrev_b32 v2, 6, v0
v_and_b32 v1, 63, v0
v_readfirstlane_b32 s{sW}, v2
s_mov_b32 s79, s2
""")
if 'map2' in OPT: e(f"""
s_and_b32 s2, s79, 0xf2
s_bfe_u32 s{sT}, s79, 0x10003
s_or_b32 s2, s2, s{sT}
s_and_b32 s{sT}, s79, 1
s_lshl_b32 s{sT}, s{sT}, 2
s_or_b32 s2, s2, s{sT}
s_and_b32 s{sT}, s79, 4
s_lshl_b32 s{sT}, s{sT}, 1
s_or_b32 s2, s2, s{sT}
""")
e(f"""
s_and_b32 s{sQ}, s2, 3
s_lshr_b32 s{sB}, s2, 2
s_mul_i32 s{sN0}, s{sB}, {NB}
s_add_u32 s{sNEND}, s{sN0}, {NB}
s_min_u32 s{sNEND}, s{sNEND}, {N}
s_mul_i32 s{sT}, s2, {EPW*4}
v_lshlrev_b32 v8, 2, v0
v_mov_b32 v120, {DUMMY}
v_cmp_le_u32 vcc, {PAD}, v8
v_mov_b32 v121, {DUMMY}
v_mov_b32 v122, {DUMMY}
v_cndmask_b32 v9, 0, v120, vcc
ds_write_b32 v8, v9
v_mov_b32 v123, {DUMMY}
v_lshlrev_b32 v118, 4, v0
v_add_u32 v3, s{sT}, v8
v_lshrrev_b32 v4, 1, v3
v_lshrrev_b32 v10, 3, v0
v_lshlrev_b32 v5, 8, v10
v_and_b32 v10, 2, v10
v_lshrrev_b32 v11, 4, v0
v_and_or_b32 v10, v11, 4, v10
v_xor_b32 v10, v10, v0
v_and_b32 v10, 7, v10
v_lshl_add_u32 v5, v10, 4, v5
s_lshr_b32 s{sT+1}, s{sQ}, 1
s_lshl_b32 s{sT+1}, s{sT+1}, 7
v_add_u32 v5, s{sT+1}, v5
v_add_u32 v7, 32768, v5
v_xor_b32 v10, v11, v0
v_and_b32 v10, 15, v10
v_lshlrev_b32 v6, 8, v11
v_lshl_add_u32 v6, v10, 4, v6
s_and_b32 s{sT+2}, s{sQ}, 1
s_mul_i32 s{sT+2}, s{sT+2}, 80
s_add_u32 s{sT+3}, s{sT+2}, s{sN0}
s_lshl_b32 s{sT+3}, s{sT+3}, 8
v_add_u32 v6, s{sT+3}, v6
v_add_u32 v9, 4096, v6
; c offset
v_and_b32 v10, 7, v0
v_lshlrev_b32 v10, 3, v10
s_lshl_b32 s{sT+3}, s{sQ}, 6
s_add_u32 s{sT+3}, s{sT+3}, 65536
v_add_u32 v116, s{sT+3}, v10
s_bfe_u32 s{sT+3}, s79, 0x40003
s_lshl_b32 s{sT+3}, s{sT+3}, 12
s_add_u32 s{sT+3}, s{sT+3}, s{sT+1}
v_lshlrev_b32 v10, 8, v1
v_add_u32 v10, s{sT+3}, v10
s_lshl_b32 s{sT+4}, s{sW}, 10
s_add_u32 s{sT+5}, s{sT+4}, {W1}
s_lshl_b32 s{sT+6}, s{sT+2}, 8
s_add_u32 s{sT+6}, s{sT+6}, s{sT+4}
s_add_u32 s{sT+6}, s{sT+6}, {XS}
s_mov_b32 s{SRDX+2}, {N*256}
s_mov_b32 s{SRDX+3}, 0x20000
s_mov_b32 s{SRDW+2}, 0x10000000
s_mov_b32 s{SRDW+3}, 0x20000
v_cmp_gt_u32 vcc, {EPW}, v0
s_cmp_ge_u32 s{sW}, 10
s_waitcnt lgkmcnt(0)
""")
if OPT&{'diagA','diagB','diagC','diagD'}:
    base={'diagA':TAB,'diagB':220<<20,'diagC':PRI,'diagD':0}[(OPT&{'diagA','diagB','diagC','diagD'}).pop()]
    per=8192 if 'diagC' in OPT else 10000 if 'diagD' in OPT else 16384
    srd=SRDW
    if 'diagD' in OPT:
        srd=SRDO
        e(f"""
        s_mov_b32 s{SRDO}, s{pOUT}
        s_mov_b32 s{SRDO+1}, s{pOUT+1}
        s_mov_b32 s{SRDO+2}, {N*256}
        s_mov_b32 s{SRDO+3}, 0x20000
        """)
    e("s_barrier")
    stamp("d0")
    e(f"""
    s_mul_i32 s{sT+7}, s2, {per}
    s_add_u32 s{sT+7}, s{sT+7}, {base}
    v_mov_b32 v127, {per}
    v_cmp_gt_u32 {sr(sM,2)}, v127, v118
    s_mov_b64 exec, {sr(sM,2)}
    s_cbranch_execz L_dskip
    buffer_store_dwordx4 v[120:123], v118, {sr(srd,4)}, s{sT+7} offen sc1
    L_dskip:
    s_mov_b64 exec, -1
    s_waitcnt vmcnt(0)
    s_barrier
    """)
    stamp("d1")
    e(f"s_cmp_ge_u32 s{sW}, 10")
if OPT&{'diagE','diagF','diagG','diagH'}:
    e("s_barrier")
    stamp("d0")
    if OPT&{'diagE','diagF'}:
        e(f"""
        s_and_b32 s{sT+7}, s{sQ}, 2
        s_mul_i32 s{sT+7}, s{sT+7}, {TABQ}
        s_add_u32 s{sT+7}, s{sT+7}, {TAB if 'diagE' in OPT else 220<<20}
        s_add_u32 s{sT+8}, s{sT+7}, {TABQ}
        s_add_u32 s{sT+9}, s{sT+2}, s{sN0}
        s_lshl_b32 s{sT+9}, s{sT+9}, 7
        v_add_u32 v127, s{sT+9}, v118
        s_add_u32 s{sT+9}, s{sT+9}, 10240
        s_lshl_b32 s{sM}, s{sNEND}, 7
        s_min_u32 s{sT+9}, s{sT+9}, s{sM}
        v_cmp_gt_u32 {sr(sM,2)}, s{sT+9}, v127
        s_mov_b64 exec, {sr(sM,2)}
        s_cbranch_execz L_dskip
        buffer_store_dwordx4 v[120:123], v127, {sr(SRDW,4)}, s{sT+7} offen sc1
        buffer_store_dwordx4 v[120:123], v127, {sr(SRDW,4)}, s{sT+8} offen sc1
        """)
    else:
        e(f"""
        s_lshl_b32 s{sT+7}, s2, 7
        s_add_u32 s{sT+7}, s{sT+7}, {PRI if 'diagG' in OPT else 220<<20}
        v_lshrrev_b32 v127, 3, v0
        v_lshlrev_b32 v127, 15, v127
        v_and_b32 v126, 0x70, v118
        v_add_u32 v127, v126, v127
        s_cmp_ge_u32 s{sW}, 8
        s_cbranch_scc1 L_dskip
        buffer_store_dwordx4 v[120:123], v127, {sr(SRDW,4)}, s{sT+7} offen sc1
        """)
    e(f"""
    L_dskip:
    s_mov_b64 exec, -1
    s_waitcnt vmcnt(0)
    s_barrier
    """)
    stamp("d1")
    e(f"s_cmp_ge_u32 s{sW}, 10")
e(f"""
s_load_dwordx2 {sr(NONCE,2)}, {sr(SRDW,2)}, 0
s_cbranch_scc1 L_noedge0
s_mov_b64 exec, vcc
global_load_dword v12, v3, {sr(pDST,2)}
global_load_dword v13, v3, {sr(pSRC,2)}
global_load_ushort v16, v4, {sr(pE,2)}
s_mov_b64 exec, -1
L_noedge0:
s_mov_b32 s{SRDX}, s{pX}
s_mov_b32 s{SRDX+1}, s{pX+1}
s_mov_b32 m0, s{sT+6}
s_cmp_eq_u32 s{sW}, 10
s_cbranch_scc0 L_nopf
s_bitcmp1_b32 s79, 7
s_cbranch_scc1 L_pfuv
s_mov_b64 exec, 0xffff
global_load_dword v127, v10, {sr(pG,2)}
s_mov_b64 exec, -1
s_branch L_nopf
L_pfuv:
s_bitcmp1_b32 s79, 6
s_cselect_b64 {sr(sM,2)}, {sr(pU,2)}, {sr(pV,2)}
v_and_b32 v10, 0x7fff, v10
s_mov_b64 exec, 0xffff
global_load_dword v127, v10, {sr(sM,2)}
s_mov_b64 exec, -1
L_nopf:
s_barrier
s_cmp_lt_u32 s{sW}, 12
buffer_load_dwordx4 v6, {sr(SRDX,4)}, 0 offen lds
s_cbranch_scc1 L_nox1b
s_add_u32 m0, s{sT+6}, 4096
s_nop 0
buffer_load_dwordx4 v9, {sr(SRDX,4)}, 0 offen lds
L_nox1b:
ds_write_b128 v118, v[120:123] offset:{W1-16384}
ds_write_b32 v8, v120 offset:{IMG+8192}
""")
e("; WARM")
stamp("issued")
e(f"""
s_mov_b32 s{SRDO}, s{pOUT}
s_mov_b32 s{SRDO+1}, s{pOUT+1}
s_lshl_b32 s{SRDO+2}, s{sNEND}, 8
s_mov_b32 s{SRDO+3}, 0x20000
s_mul_i32 s{sT}, s{sQ}, {TABQ}
s_add_u32 s{sT}, s{sT}, {TAB}
s_add_u32 s{SRDG}, s{SRDW}, s{sT}
s_addc_u32 s{SRDG+1}, s{SRDW+1}, 0
s_and_b32 s{SRDG+1}, s{SRDG+1}, 0xffff
s_or_b32 s{SRDG+1}, s{SRDG+1}, 0x800000
s_mov_b32 s{SRDG+2}, {0 if 'nogather' in OPT else N}
s_mov_b32 s{SRDG+3}, 0x20000
s_and_b32 s{sT}, s{sQ}, 2
s_bfe_u32 s{sT+1}, s{sW}, 0x10001
s_add_u32 s{sT}, s{sT}, s{sT+1}
s_mul_i32 s{sT}, s{sT}, {TABQ}
s_add_u32 s{sT}, s{sT}, {TAB}
s_add_u32 s{SRDT}, s{SRDW}, s{sT}
s_addc_u32 s{SRDT+1}, s{SRDW+1}, 0
s_lshl_b32 s{SRDT+2}, s{sNEND}, 7
s_mov_b32 s{SRDT+3}, 0x20000
s_lshl_b32 s{sCELL}, s{sB}, 15
s_add_u32 s{sCELL}, s{sCELL}, {PRI}
s_mov_b32 s{sK40}, {f2u(2.0**40):#x}
s_mov_b32 s{sKE}, {f2u(-LOG2E*2.0**-40):#x}
s_waitcnt lgkmcnt(0)
s_add_u32 s{NONCE}, s{NONCE}, 0x7f4a7c15
s_addc_u32 s{NONCE+1}, s{NONCE+1}, 0x9e3779b9
s_and_b32 s{sTAG24}, s{NONCE}, 0xffffff00
s_and_b32 s{sTAG14}, s{NONCE+1}, 0xfffc0000
""")
e(f"""
s_cmp_ge_u32 s{sW}, 10
s_cbranch_scc1 L_noedge1
s_mov_b64 exec, vcc
v_mov_b32 v20, 8
s_waitcnt vmcnt(1)
""")
stamp("edge")
e(f"""
v_mul_u32_u24 v17, 6679, v12
v_lshrrev_b32 v17, 20, v17
v_lshlrev_b32 v18, 2, v17
ds_add_rtn_u32 v19, v18, v20 offset:{BCNT}
v_mul_u32_u24 v15, {NB}, v17
v_sub_u32 v15, v12, v15
v_lshl_or_b32 v14, v16, 16, v13
s_waitcnt lgkmcnt(0)
v_lshl_add_u32 v18, v17, 7, v19
v_cmp_gt_u32 vcc, 128, v19
s_andn2_b64 {sr(sM,2)}, exec, vcc
s_cbranch_scc1 L_secstore
L_secback:
s_mov_b64 exec, vcc
ds_write_b64 v18, v[14:15] offset:{IMG}
s_mov_b64 exec, -1
L_noedge1:
s_waitcnt lgkmcnt(0)
s_barrier
""")
stamp("img")
e(f"""
s_cmp_ge_u32 s{sW}, 8
s_cbranch_scc1 L_hi
""")
def w1_loads():
    e(f"""
    s_mov_b32 m0, s{sT+5}
    s_nop 0
    global_load_lds_dwordx4 v7, {sr(pG,2)}
    s_add_u32 m0, s{sT+5}, 16384
    s_nop 0
    global_load_lds_dwordx4 v5, {sr(pV,2)}
    """)
def lane_terms():
    e(f"""
    v_and_b32 v11, 15, v1
    v_lshrrev_b32 v12, 4, v1
    v_xor_b32 v8, v11, v12
    v_lshlrev_b32 v8, 4, v8
    v_lshl_add_u32 v8, v11, 8, v8
    v_bfe_u32 v9, v1, 2, 2
    v_lshl_add_u32 v9, v12, 3, v9
    v_and_b32 v10, 3, v1
    v_lshlrev_b32 v10, 3, v10
    """)
WOP=36; XA=68; XB=84; ACC=[8,16,100]; CELL=108; CRAW=116
vWa=2; vXa=3; vSa=7
def gemm(tag,sstr,ustr,mstr,post,skipcond):
    def wreads(s):
        for m in range(2):
            for u in range(2):
                e(f"ds_read_b64_tr_b16 {vr(WOP+16*m+4*s+2*u,2)}, v{vWa} offset:{s*sstr+u*ustr+m*mstr}")
    def xread(buf,t,s): e(f"ds_read_b128 {vr(buf+4*s,4)}, v{vXa+s} offset:{8192*t}")
    def mf(acc,buf,s):
        for m in range(2):
            c = "0" if s==0 else vr(acc+4*m,4)
            e(f"v_mfma_f32_16x16x32_bf16 {vr(acc+4*m,4)}, {vr(WOP+16*m+4*s,4)}, {vr(buf+4*s,4)}, {c}")
    for s in range(3): wreads(s); xread(XA,0,s)
    e("s_waitcnt lgkmcnt(10)"); mf(ACC[0],XA,0)
    wreads(3); xread(XA,0,3)
    e("s_waitcnt lgkmcnt(10)"); mf(ACC[0],XA,1)
    for s in range(4): xread(XB,1,s)
    e("s_waitcnt lgkmcnt(9)"); mf(ACC[0],XA,2)
    e("s_waitcnt lgkmcnt(4)"); mf(ACC[0],XA,3)
    e("s_waitcnt lgkmcnt(0)")
    mf(ACC[1],XB,0)
    for s in range(4): xread(XA,2,s)
    for s in range(1,4): mf(ACC[1],XB,s)
    post(0)
    e(skipcond); e(f"s_cbranch_scc1 L_{tag}_two")
    e("s_waitcnt lgkmcnt(0)")
    for s in range(4): mf(ACC[2],XA,s)
    post(1)
    e("s_nop 3")
    post(2)
    e(f"s_branch L_{tag}_done")
    e(f"L_{tag}_two:")
    post(1)
    e(f"L_{tag}_done:")
def cell_loads():
    e(f"""
    v_add_u32 v119, 16384, v118
    global_load_dwordx2 v[116:117], v116, {sr(pG,2)}
    buffer_load_dwordx4 {vr(CELL,4)}, v118, {sr(SRDW,4)}, s{sCELL} offen sc1
    buffer_load_dwordx4 {vr(CELL+4,4)}, v119, {sr(SRDW,4)}, s{sCELL} offen sc1
    """)
w1_loads()
lane_terms()
KG=2.0**40*(1-0.00135)
e(f"""
s_and_b32 s{sT}, s{sW}, 3
v_bfe_u32 v13, v1, 3, 2
v_xor_b32 v13, s{sT}, v13
v_lshl_add_u32 v13, v13, 5, v10
v_lshl_add_u32 v13, v9, 7, v13
v_add_u32 v{vWa}, {W1}, v13
s_lshr_b32 s{sT+1}, s{sW}, 2
s_lshl_b32 s{sT+1}, s{sT+1}, 4
s_add_u32 s{sT+1}, s{sT+1}, s{sT+2}
s_lshl_b32 s{sT+3}, s{sT+1}, 8
s_add_u32 s{sT+3}, s{sT+3}, {XS}
v_add_u32 v{vXa}, s{sT+3}, v8
v_xor_b32 v{vXa+1}, 64, v{vXa}
v_xor_b32 v{vXa+2}, 128, v{vXa}
v_xor_b32 v{vXa+3}, 192, v{vXa}
s_add_u32 s{sT+1}, s{sT+1}, s{sN0}
s_lshl_b32 s{sT+1}, s{sT+1}, 7
s_and_b32 s{sT}, s{sW}, 1
s_lshl_b32 s{sT}, s{sT}, 6
s_add_u32 s{sT+1}, s{sT+1}, s{sT}
v_lshlrev_b32 v{vSa}, 7, v11
v_lshl_add_u32 v{vSa}, v12, 4, v{vSa}
v_add_u32 v{vSa}, s{sT+1}, v{vSa}
s_mov_b32 s{sT+4}, {f2u(LOG2E):#x}
s_mov_b32 s{sT+5}, {f2u(KG):#x}
""")
if args.stamps and 'x1' not in SKIP: e("s_waitcnt vmcnt(2)"); stamp("x1")
e("s_waitcnt vmcnt(0)")
e("s_barrier")
stamp("B1")
PK=[24,28,32]
def post_qh(t):
    a=ACC[t]; p=PK[t]
    for i in range(4): e(f"v_mul_f32 v{a+i}, s{sT+4}, v{a+i}")
    for i in range(4): e(f"v_exp_f32 v{a+i}, v{a+i}")
    for i in range(4): e(f"v_mul_f32 v{a+4+i}, s{sT+5}, v{a+4+i}")
    for i in range(4): e(f"v_mul_f32 v{a+4+i}, v{a+i}, v{a+4+i}")
    for i in range(4): e(f"v_cvt_pk_bf16_f32 v{p+i}, v{a+i}, v{a+4+i}")
    e(f"buffer_store_dwordx4 {vr(p,4)}, v{vSa}, {sr(SRDT,4)}, 0 offen sc1")
    e(f"v_add_u32 v{vSa}, 4096, v{vSa}")
gemm("qh",4096,512,16384,post_qh,f"s_cmp_ge_u32 s{sW}, 4")
stamp("gemm")
cell_loads()
e("s_barrier")
e("s_branch L_cells")
e("L_hi:")
e(f"""
v_subrev_u32 v8, 512, v0
v_lshlrev_b32 v9, 4, v8
v_lshrrev_b32 v10, 3, v8
v_lshlrev_b32 v11, 2, v10
ds_read_b128 v[12:15], v9 offset:{IMG}
ds_read_b32 v16, v11 offset:{BCNT}
""")
w1_loads()
e(f"""
v_lshlrev_b32 v10, 15, v10
ds_write_b128 v9, v[120:123] offset:{IMG}
v_and_b32 v9, 0x70, v9
v_add_u32 v10, v10, v9
s_lshl_b32 s{sT}, s2, 7
s_add_u32 s{sT}, s{sT}, {PRI}
v_mov_b32 v17, 0xff
s_sub_u32 s{sT+1}, 80, s{sT+2}
s_sub_u32 s{sT+3}, s{sT+1}, s{sT+2}
s_lshl_b32 s{sT+3}, s{sT+3}, 8
s_sub_u32 s{sT+3}, s{sT+3}, 8192
v_add_u32 v18, s{sT+3}, v6
v_add_u32 v19, 8192, v18
v_add_u32 v20, 16384, v18
s_lshl_b32 s{sT+1}, s{sT+1}, 8
s_add_u32 s{sT+1}, s{sT+1}, s{sT+4}
s_add_u32 s{sT+1}, s{sT+1}, {XS-8192}
v_lshrrev_b32 v21, 2, v8
v_lshlrev_b32 v21, 8, v21
v_lshrrev_b32 v22, 4, v1
v_and_b32 v22, 2, v22
v_xor_b32 v22, v22, v1
v_and_b32 v22, 3, v22
v_lshl_add_u32 v21, v22, 4, v21
s_lshl_b32 s{sT+3}, s{sQ}, 6
v_add_u32 v21, s{sT+3}, v21
s_waitcnt lgkmcnt(1)
v_and_or_b32 v13, v13, v17, s{sTAG24}
v_lshl_or_b32 v16, v16, 5, s{sTAG14}
v_and_or_b32 v15, v15, v17, v16
s_add_u32 s{sT+8}, s{sT+4}, {W2-8192}
s_mov_b32 s{sT+9}, s{sT+1}
buffer_store_dwordx4 v[12:15], v10, {sr(SRDW,4)}, s{sT} offen sc1
""")
def w2_loads():
    e(f"""
    s_mov_b32 m0, s{sT+8}
    s_nop 0
    global_load_lds_dwordx4 v21, {sr(pG,2)}
    s_add_u32 m0, s{sT+8}, 8192
    s_nop 0
    global_load_lds_dwordx4 v21, {sr(pU,2)}
    """)
def x2_loads(after):
    e(f"""
    s_mov_b32 m0, s{sT+9}
    s_nop 0
    buffer_load_dwordx4 v18, {sr(SRDX,4)}, 0 offen lds
    s_add_u32 m0, s{sT+9}, 8192
    s_cmp_ge_u32 s{sW}, 12
    buffer_load_dwordx4 v19, {sr(SRDX,4)}, 0 offen lds
    s_cbranch_scc1 L_nox2c
    s_add_u32 m0, s{sT+9}, 16384
    s_nop 0
    buffer_load_dwordx4 v20, {sr(SRDX,4)}, 0 offen lds
    """)
    if after is not None:
        e(f"""
        s_waitcnt vmcnt({after+3})
        s_branch L_x2c
        L_nox2c:
        s_waitcnt vmcnt({after+2})
        L_x2c:
        """)
    else: e("L_nox2c:")
e("s_waitcnt lgkmcnt(0)")
if 'ordA' in OPT:
    x2_loads(1); e("s_barrier"); w2_loads()
elif 'ordC' in OPT:
    e("s_waitcnt vmcnt(1)"); e("s_barrier"); w2_loads(); x2_loads(None)
else:
    w2_loads(); e("s_waitcnt vmcnt(3)"); e("s_barrier"); x2_loads(None)
stamp("B1")
lane_terms()
e(f"""
s_and_b32 s{sT}, s{sW}, 1
v_and_b32 v13, 1, v12
v_xor_b32 v13, s{sT}, v13
v_lshl_add_u32 v13, v13, 5, v10
v_lshl_add_u32 v13, v9, 6, v13
v_add_u32 v{vWa}, {W2}, v13
s_bfe_u32 s{sT+1}, s{sW}, 0x10001
s_mul_i32 s{sT+1}, s{sT+1}, 5
s_bfe_u32 s{sT+3}, s{sW}, 0x10002
s_add_u32 s{sT+1}, s{sT+1}, s{sT+3}
s_lshl_b32 s{sT+3}, s{sT+1}, 12
s_add_u32 s{sT+3}, s{sT+3}, {XS}
v_add_u32 v{vXa}, s{sT+3}, v8
v_xor_b32 v{vXa+1}, 64, v{vXa}
v_xor_b32 v{vXa+2}, 128, v{vXa}
v_xor_b32 v{vXa+3}, 192, v{vXa}
s_mul_i32 s{sT+1}, s{sT+1}, {16*NSTR}
s_lshl_b32 s{sT}, s{sT}, 6
s_add_u32 s{sT+1}, s{sT+1}, s{sT}
s_add_u32 s{sT+1}, s{sT+1}, {NS}
v_mul_u32_u24 v{vSa}, {NSTR}, v11
v_lshl_add_u32 v{vSa}, v12, 4, v{vSa}
v_add_u32 v{vSa}, s{sT+1}, v{vSa}
s_mov_b32 s{sT+4}, {f2u(-LOG2E):#x}
""")
e("s_waitcnt vmcnt(0)")
e("s_barrier")
stamp("B1b")
cell_loads()
def post_pu(t):
    a=ACC[t]
    for i in range(4): e(f"v_mul_f32 v{a+i}, s{sT+4}, v{a+i}")
    for i in range(4): e(f"v_mul_f32 v{a+4+i}, s{sK40}, v{a+4+i}")
    e(f"ds_write_b128 v{vSa}, {vr(a,4)} offset:{t*32*NSTR}")
    e(f"ds_write_b128 v{vSa}, {vr(a+4,4)} offset:{t*32*NSTR+128}")
gemm("pu",2048,256,8192,post_pu,f"s_cmp_ge_u32 s{sW}, 12")
stamp("gemm")
vN,vM,vU,vP,vE,vC,vA,IA,IB,X,Y,xX,xY=8,12,16,20,24,28,32,36,44,52,68,84,100
vLA,vOA=2,3
e("L_cells:")
e(f"""
s_mov_b32 s{sSPIN}, 0
v_bfe_u32 v4, v1, 2, 2
v_lshrrev_b32 v5, 4, v1
v_cmp_eq_u32 vcc, v4, v5
v_and_b32 v4, 3, v1
v_mov_b32 v5, 0x3f80
v_cndmask_b32 v4, 4, v4, vcc
""")
for i in range(4):
    e(f"v_cmp_eq_u32 vcc, {i}, v4")
    e(f"v_mov_b32 v{vE+i}, 0")
    if i==0: e("v_and_b32 v6, 7, v1")
    elif i==1: e(f"v_lshlrev_b32 v{IA+1}, 4, v6")
    elif i==2: e(f"v_lshlrev_b32 v7, 1, v6")
    else: e(f"v_mov_b32 v20, 4")
    e(f"v_cndmask_b32 v{vA+i}, 0, v5, vcc")
for r in (IA+3,IA+5,IA+7,IB+1,IB+3,IB+5,IB+7): e(f"v_mov_b32 v{r}, v{IA+1}")
c0=CELL
e(f"""
v_lshlrev_b32 v124, 2, v6
v_mov_b32 v125, 0x3f80
s_cmp_ge_u32 s{sW}, 8
s_cbranch_scc1 L_cellwait
v_mov_b32 v8, 1
v_mov_b32 v9, 0
v_mov_b32 v10, s{NONCE}
v_mov_b32 v11, s{NONCE+1}
s_lshl_b32 s{sT}, s2, 7
s_add_u32 s{sT}, s{sT}, {FLG}
s_mov_b64 exec, 1
s_waitcnt vmcnt(3)
ds_add_rtn_u32 v8, v9, v8 offset:{DONE}
s_waitcnt lgkmcnt(0)
v_cmp_eq_u32 vcc, 7, v8
s_cbranch_vccz L_nosig
buffer_store_dwordx2 v[10:11], v9, {sr(SRDW,4)}, s{sT} offen sc1
s_mov_b64 exec, -1
""")
stamp("sig")
e(f"""
s_waitcnt vmcnt(1)
s_branch L_cellchk
L_nosig:
s_mov_b64 exec, -1
L_cellwait:
s_waitcnt vmcnt(0)
L_cellchk:
v_xor_b32 v8, s{sTAG24}, v{c0+1}
v_xor_b32 v9, s{sTAG24}, v{c0+5}
v_xor_b32 v10, s{sTAG14}, v{c0+3}
v_xor_b32 v11, s{sTAG14}, v{c0+7}
v_or_b32 v8, v8, v9
v_or_b32 v9, v10, v11
v_lshrrev_b32 v9, 10, v9
v_or_b32 v8, v8, v9
v_cmp_lt_u32 vcc, 255, v8
s_cbranch_vccnz L_cellretry
L_cellok:
v_lshrrev_b32 v10, 8, v10
v_lshrrev_b32 v11, 8, v11
v_max_u32 v21, v10, v11
v_add_u32 v22, 16, v6
v_cmp_gt_u32 vcc, v21, v22
v_add_u32 v9, 1, v7
s_cbranch_vccnz L_secload
L_secnone:
""")
def insert(recs, masks):
    for k,(r0,rl) in enumerate(recs):
        e(f"s_mov_b64 exec, {sr(masks[k],2)}")
        e(f"v_lshlrev_b32_sdwa v{12+k}, 2, v{rl} dst_sel:DWORD dst_unused:UNUSED_PAD src0_sel:DWORD src1_sel:BYTE_0")
        e(f"ds_add_rtn_u32 v{16+k}, v{12+k}, v20 offset:{NCNT}")
    n=len(recs)
    for k,(r0,rl) in enumerate(recs):
        e(f"s_mov_b64 exec, {sr(masks[k],2)}")
        e(f"s_waitcnt lgkmcnt({n-1-k+2*k})")
        e(f"v_min_u32 v{16+k}, {4*(CAP-1)}, v{16+k}")
        e(f"v_mad_u32_u24 v{12+k}, v{12+k}, {LSTR}, v{16+k}")
        e(f"v_lshl_add_u32 v{16+k}, v{16+k}, 3, v124")
        e(f"ds_add_u32 v{16+k}, v20 offset:{GE}")
        e(f"ds_write_b32 v{12+k}, v{r0} offset:{LISTS}")
    e("s_mov_b64 exec, -1")
e(f"""
v_cmp_gt_u32 {sr(sM,2)}, v10, v7
v_cmp_gt_u32 {sr(sM+2,2)}, v10, v9
v_cmp_gt_u32 {sr(sM+4,2)}, v11, v7
v_cmp_gt_u32 {sr(sM+6,2)}, v11, v9
""")
insert([(c0,c0+1),(c0+2,c0+3),(c0+4,c0+5),(c0+6,c0+7)],[sM,sM+2,sM+4,sM+6])
e(f"""
s_cbranch_vccnz L_secins
L_insdone:
s_mov_b32 s{sT}, {f2u(-LOG2E):#x}
v_lshlrev_b32 v{vC}, 16, v{CRAW}
v_and_b32 v{vC+1}, 0xffff0000, v{CRAW}
v_lshlrev_b32 v{vC+2}, 16, v{CRAW+1}
v_and_b32 v{vC+3}, 0xffff0000, v{CRAW+1}
""")
for i in range(4): e(f"v_mul_f32 v{vC+i}, s{sT}, v{vC+i}")
stamp("ins")
PL=X
e(f"""
s_cmp_eq_u32 s{sW}, 15
s_cbranch_scc0 L_nopoll0
v_lshlrev_b32 v118, 9, v1
s_lshr_b32 s{sT+8}, s{sQ}, 1
s_lshl_b32 s{sT+8}, s{sT+8}, 8
s_add_u32 s{sT+8}, s{sT+8}, {FLG}
buffer_load_dwordx2 {vr(PL,2)}, v118, {sr(SRDW,4)}, s{sT+8} offen sc1
buffer_load_dwordx2 {vr(PL+2,2)}, v118, {sr(SRDW,4)}, s{sT+8} offen offset:128 sc1
L_nopoll0:
s_waitcnt lgkmcnt(0)
s_barrier
s_cmp_ge_u32 s{sW}, 3
s_cbranch_scc1 L_noorder
v_cmp_gt_u32 vcc, 160, v0
v_lshlrev_b32 v8, 2, v0
s_mov_b64 exec, vcc
ds_read_b32 v9, v8 offset:{NCNT}
s_waitcnt lgkmcnt(0)
v_cmp_lt_u32 vcc, {4*CAP}, v9
v_min_u32 v9, {4*CAP}, v9
ds_add_rtn_u32 v10, v9, v20 offset:{TIE}
v_lshlrev_b32 v8, 3, v9
ds_read_b128 v[12:15], v8 offset:{GE}
ds_read_b128 v[16:19], v8 offset:{GE+16}
v_lshl_or_b32 v11, v9, 14, v0
s_cbranch_vccnz L_overflow
L_ovback:
s_waitcnt lgkmcnt(1)
v_add3_u32 v10, v10, v12, v13
v_add3_u32 v10, v10, v14, v15
s_waitcnt lgkmcnt(0)
v_add3_u32 v10, v10, v16, v17
v_add3_u32 v10, v10, v18, v19
v_min_u32 v10, 636, v10
ds_write_b32 v10, v11 offset:{ORDER}
s_mov_b64 exec, -1
s_or_b32 s{sT}, s2, s{sW}
s_cbranch_scc1 L_noorder
s_mov_b64 exec, 1
v_mov_b32 v8, s{NONCE}
v_mov_b32 v9, s{NONCE+1}
v_mov_b32 v10, 0
buffer_store_dwordx2 v[8:9], v10, {sr(SRDW,4)}, 0 offen sc1
s_mov_b64 exec, -1
L_noorder:
s_and_b32 s{sT}, s{sW}, 3
s_lshr_b32 s{sT+1}, s{sW}, 2
s_sub_u32 s{sTASK2}, 19, s{sT}
s_sub_u32 s{sI}, 15, s{sT}
s_cmp_eq_u32 s{sT+1}, 0
s_cselect_b32 s{sTASK2}, s{sTASK2}, 0
s_cmp_eq_u32 s{sT+1}, 1
s_cselect_b32 s{sI}, s{sT}, s{sI}
s_sub_u32 s{sT+2}, 7, s{sT}
s_cmp_eq_u32 s{sT+1}, 2
s_cselect_b32 s{sI}, s{sT+2}, s{sI}
s_add_u32 s{sT+2}, 8, s{sT}
s_cmp_eq_u32 s{sT+1}, 3
s_cselect_b32 s{sI}, s{sT+2}, s{sI}
v_lshrrev_b32 v116, 3, v1
v_lshlrev_b32 v116, 2, v116
s_lshl_b32 s{sT}, s{sN0}, 8
s_lshl_b32 s{sT+1}, s{sQ}, 6
s_add_u32 s{sT}, s{sT}, s{sT+1}
v_lshlrev_b32 v117, 3, v6
v_add_u32 v117, s{sT}, v117
v_add_u32 v119, {NS}, v{IA+1}
s_mov_b32 s{sT+9}, 1
s_waitcnt lgkmcnt(0)
s_barrier
""")
stamp("ord")
def idxreads(I,off):
    for k in (3,2,1,0): e(f"ds_read_u16 v{I+2*k}, v{vLA} offset:{off+4*k}")
def ereads(off):
    for k in range(4): e(f"ds_read_u16_d16_hi v{vE+k}, v{vLA} offset:{off+4*k+2}")
def apk(x):
    for k in (3,2,1,0):
        sel = "op_sel_hi:[0,1,1]" if k%2==0 else "op_sel:[1,0,0] op_sel_hi:[1,1,1]"
        for h in range(2):
            e(f"v_pk_fma_f32 {vr(x+4*k+2*h,2)}, {vr(vE+(k&2),2)}, {vr(vC+2*h,2)}, {vr(vP+2*h,2)} {sel}")
def exps(x,k):
    if 'novalu' in OPT: return
    for i in range(4): e(f"v_exp_f32 v{x+4*k+i}, v{x+4*k+i}")
def gath(B,I):
    for k in (3,2,1,0): e(f"buffer_load_dwordx4 {vr(B+4*k,4)}, {vr(I+2*k,2)}, {sr(SRDG,4)}, 0 idxen offen{'' if 'nosc1' in OPT else ' sc1'}")
def mext(B,x,k):
    if 'dot' in OPT:
        for i in range(4): e(f"v_dot2c_f32_bf16 v{x+4*k+i}, v125, v{B+4*k+i}")
    else: e(f"v_mfma_f32_16x16x32_bf16 {vr(x+4*k,4)}, {vr(vA,4)}, {vr(B+4*k,4)}, {vr(x+4*k,4)}")
def frac(B,x,k):
    if 'novalu' in OPT: e("s_nop 7"); return
    for h in range(2): e(f"v_pk_mul_f32 {vr(vU+2*h,2)}, {vr(B+4*k+2*h,2)}, {vr(vM+2*h,2)}")
    for h in range(2):
        e(f"v_pk_fma_f32 {vr(vN+2*h,2)}, {vr(vN+2*h,2)}, {vr(x+4*k+2*h,2)}, {vr(vU+2*h,2)}")
        e(f"v_pk_mul_f32 {vr(vM+2*h,2)}, {vr(vM+2*h,2)}, {vr(x+4*k+2*h,2)}")
e(f"""
L_task:
s_lshl_b32 s{sT}, s{sI}, 5
v_add_u32 v4, s{sT}, v116
ds_read_b32 v4, v4 offset:{ORDER}
v_mov_b32 v{vM}, 1.0
v_mov_b32 v{vM+1}, 1.0
v_mov_b32 v{vM+2}, 1.0
v_mov_b32 v{vM+3}, 1.0
s_waitcnt lgkmcnt(0)
v_readfirstlane_b32 s{sT}, v4
v_and_b32 v4, 0xff, v4
s_movk_i32 s{sT+2}, {NSTR}
v_mad_u32_u24 v5, v4, s{sT+2}, v119
s_lshr_b32 s{sT}, s{sT}, 16
s_add_u32 s{sREM}, s{sT}, 3
s_lshr_b32 s{sREM}, s{sREM}, 2
s_lshl_b32 s{sT+1}, s{sREM}, 4
s_add_u32 s{sT+1}, s{sT+1}, {LISTS-48}
v_mul_u32_u24 v{vLA}, {4*LSTR}, v4
v_add_u32 v{vLA}, s{sT+1}, v{vLA}
ds_read_b128 {vr(vP,4)}, v5
""")
ereads(32)
e(f"ds_read_b128 {vr(vN,4)}, v5 offset:128")
idxreads(IA,32)
idxreads(IB,16)
e(f"v_lshl_add_u32 v{vOA}, v4, 8, v117")
e(f"s_and_b32 s{sT+3}, s{sT}, 3")
e("s_waitcnt lgkmcnt(9)")
apk(xX)
ereads(16)
for k in (3,2,1,0): exps(xX,k)
e("s_waitcnt lgkmcnt(0)")
apk(xY)
ereads(0)
e(f"""
s_cmp_eq_u32 s{sT+9}, 0
s_cbranch_scc1 L_go
s_mov_b32 s{sT+9}, 0
s_cmp_eq_u32 s{sW}, 15
s_cbranch_scc0 L_nopoll1
s_mov_b32 s{sSPIN}, 0
L_poll:
s_waitcnt vmcnt(0)
v_cmp_ne_u64 vcc, {sr(NONCE,2)}, {vr(PL,2)}
v_cmp_ne_u64 {sr(sM,2)}, {sr(NONCE,2)}, {vr(PL+2,2)}
s_or_b64 vcc, vcc, {sr(sM,2)}
s_cbranch_scc0 L_nopoll1
s_add_u32 s{sSPIN}, s{sSPIN}, 1
s_cmp_ge_u32 s{sSPIN}, 0x8000
s_cbranch_scc1 L_nopoll1
buffer_load_dwordx2 {vr(PL,2)}, v118, {sr(SRDW,4)}, s{sT+8} offen sc1
buffer_load_dwordx2 {vr(PL+2,2)}, v118, {sr(SRDW,4)}, s{sT+8} offen offset:128 sc1
s_branch L_poll
L_nopoll1:
""")
stamp("pre")
e("s_barrier")
stamp("B3")
e(f"""
L_go:
s_cmp_eq_u32 s{sREM}, 0
s_cbranch_scc1 L_fin
""")
gath(X,IA); gath(Y,IB); idxreads(IA,0)
for k in (3,2,1,0): exps(xY,k)
e("s_waitcnt vmcnt(4)")
for k in (3,2,1,0): mext(X,xX,k)
e(f"""
s_nop 3
s_cmp_eq_u32 s{sT+3}, 1
s_cbranch_scc1 L_fx0
s_cmp_eq_u32 s{sT+3}, 2
s_cbranch_scc1 L_fx1
s_cmp_eq_u32 s{sT+3}, 3
s_cbranch_scc1 L_fx2
""")
def half(tag,B,x,B2,x2,tag2,last):
    for k in (3,2,1,0):
        e(f"L_f{tag}{k}:")
        frac(B,x,k)
    e(f"""
    s_sub_u32 s{sREM}, s{sREM}, 1
    s_cmp_le_u32 s{sREM}, 1
    s_cbranch_scc1 L_tail{tag}
    s_waitcnt lgkmcnt(0)
    """)
    gath(B,IA)
    apk(x)
    e(f"v_subrev_u32 v{vLA}, 16, v{vLA}")
    idxreads(IA,0); ereads(0)
    e("s_waitcnt vmcnt(4)")
    for k in (3,2,1,0):
        mext(B2,x2,k); exps(x,k)
    if last: e(f"s_branch L_f{tag2}3")
def tail(tag,B2,x2,tag2):
    e(f"""
    L_tail{tag}:
    s_cmp_eq_u32 s{sREM}, 0
    s_cbranch_scc1 L_fin
    s_waitcnt vmcnt(0)
    """)
    for k in (3,2,1,0): mext(B2,x2,k)
    e("s_nop 1")
    e(f"s_branch L_f{tag2}3")
half('x',X,xX,Y,xY,'y',False)
half('y',Y,xY,X,xX,'x',True)
tail('x',Y,xY,'y')
tail('y',X,xX,'x')
e("L_fin:")
e("s_waitcnt lgkmcnt(0)")
for i in range(4): e(f"v_rcp_f32 v{vM+i}, v{vM+i}")
for h in range(2): e(f"v_pk_mul_f32 {vr(vN+2*h,2)}, {vr(vN+2*h,2)}, {vr(vM+2*h,2)}")
for h in range(2): e(f"v_pk_mul_f32 {vr(vM+2*h,2)}, {vr(vN+2*h,2)}, {sr(sKE,2)} op_sel_hi:[1,0]")
for i in range(4): e(f"v_exp_f32 v{vM+i}, v{vM+i}")
for h in range(2): e(f"v_pk_fma_f32 {vr(vM+2*h,2)}, {vr(vM+2*h,2)}, {sr(sK40,2)}, {sr(sK40,2)} op_sel_hi:[1,0,0]")
for i in range(4): e(f"v_rcp_f32 v{vM+i}, v{vM+i}")
for h in range(2): e(f"v_pk_mul_f32 {vr(vU+2*h,2)}, {vr(vN+2*h,2)}, {vr(vM+2*h,2)}")
e(f"""
v_cvt_pk_bf16_f32 v{vU}, v{vU}, v{vU+1}
v_cvt_pk_bf16_f32 v{vU+1}, v{vU+2}, v{vU+3}
buffer_store_dwordx2 {vr(vU,2)}, v{vOA}, {sr(SRDO,4)}, 0 offen{' sc1' if 'osc1' in OPT else ' nt' if 'ont' in OPT else ''}
s_mov_b32 s{sI}, s{sTASK2}
s_mov_b32 s{sTASK2}, 0
s_cmp_lg_u32 s{sI}, 0
s_cbranch_scc1 L_task
""")
stamp("end")
if args.stamps:
    e(f"""
    s_waitcnt vmcnt(0) lgkmcnt(0)
    s_lshl_b32 s{sT}, s2, 4
    s_add_u32 s{sT}, s{sT}, s{sW}
    s_lshl_b32 s{sT}, s{sT}, 6
    s_add_u32 s{sT}, s{sT}, {DBG}
    v_mov_b32 v4, 0
    """)
    for i in range(nstamp[0]): e(f"v_writelane_b32 v4, s{sST+2*i}, {i}")
    e(f"""
    v_writelane_b32 v4, s{sSPIN}, 15
    v_lshlrev_b32 v5, 2, v1
    s_mov_b64 exec, 0xffff
    buffer_store_dword v4, v5, {sr(SRDW,4)}, s{sT} offen
    """)
if args.probe:
    pn,pwg,pw=args.probe.split(',')
    pi=stampnames.index(pn)
    e(f"""
    s_cmp_eq_u32 s2, {pwg}
    s_cbranch_scc0 L_end
    s_cmp_eq_u32 s{sW}, {pw}
    s_cbranch_scc0 L_end
    s_add_u32 s{sT}, s{sST+2*pi}, 4000
    L_probe:
    s_memrealtime {sr(sT+2,2)}
    s_waitcnt lgkmcnt(0)
    s_sub_u32 s{sT+1}, s{sT+2}, s{sT}
    s_cmp_lt_i32 s{sT+1}, 0
    s_cbranch_scc1 L_probe
    """)
e("L_end:")
e("s_endpgm")
e(f"""
L_secstore:
s_mov_b64 exec, {sr(sM,2)}
v_lshlrev_b32 v21, 8, v17
v_add_u32 v21, s2, v21
v_mul_u32_u24 v21, 10240, v21
v_lshl_add_u32 v21, v19, 1, v21
v_mov_b32 v24, v14
v_mov_b32 v25, v15
v_mov_b32 v26, s{NONCE}
v_mov_b32 v27, s{NONCE+1}
s_mov_b32 s{sT+7}, {SEC}
buffer_store_dwordx4 v[24:27], v21, {sr(SRDW,4)}, s{sT+7} offen sc1
s_branch L_secback
L_cellretry:
s_add_u32 s{sSPIN}, s{sSPIN}, 1
s_cmp_ge_u32 s{sSPIN}, 0x8000
s_cbranch_scc1 L_end
s_sleep 2
buffer_load_dwordx4 {vr(CELL,4)}, v118, {sr(SRDW,4)}, s{sCELL} offen sc1
buffer_load_dwordx4 {vr(CELL+4,4)}, v119, {sr(SRDW,4)}, s{sCELL} offen sc1
s_branch L_cellwait
""")
S0,S1=X,X+4
def secissue():
    e(f"""
    v_cmp_gt_u32 {sr(sM+8,2)}, v10, v22
    v_cmp_gt_u32 {sr(sM+10,2)}, v11, v22
    v_lshl_add_u32 v4, v22, 4, v23
    v_add_u32 v5, {128*10240}, v4
    s_mov_b64 exec, {sr(sM+8,2)}
    buffer_load_dwordx4 {vr(S0,4)}, v4, {sr(SRDW,4)}, s{sT+7} offen sc1
    s_mov_b64 exec, {sr(sM+10,2)}
    buffer_load_dwordx4 {vr(S1,4)}, v5, {sr(SRDW,4)}, s{sT+7} offen sc1
    s_mov_b64 exec, -1
    """)
e(f"""
L_secload:
v_lshrrev_b32 v23, 3, v0
v_mul_u32_u24 v23, 10240, v23
s_mul_i32 s{sT+7}, s{sB}, {256*10240}
s_add_u32 s{sT+7}, s{sT+7}, {SEC}
""")
secissue()
e(f"""
s_branch L_secnone
L_secagain:
""")
secissue()
e(f"""
L_secins:
s_waitcnt vmcnt(0)
v_cmp_ne_u64 {sr(sM,2)}, {sr(NONCE,2)}, {vr(S0+2,2)}
v_cmp_ne_u64 {sr(sM+2,2)}, {sr(NONCE,2)}, {vr(S1+2,2)}
s_and_b64 {sr(sM,2)}, {sr(sM,2)}, {sr(sM+8,2)}
s_and_b64 {sr(sM+2,2)}, {sr(sM+2,2)}, {sr(sM+10,2)}
s_or_b64 {sr(sM,2)}, {sr(sM,2)}, {sr(sM+2,2)}
s_cbranch_scc0 L_secok
s_add_u32 s{sSPIN}, s{sSPIN}, 1
s_cmp_ge_u32 s{sSPIN}, 0x8000
s_cbranch_scc1 L_end
s_branch L_secagain
L_secok:
s_waitcnt lgkmcnt(0)
""")
insert([(S0,S0+1),(S1,S1+1)],[sM+8,sM+10])
e(f"""
v_add_u32 v22, 8, v22
v_cmp_gt_u32 vcc, v21, v22
s_cbranch_vccnz L_secagain
s_branch L_insdone
L_overflow:
v_mov_b32 v8, 0
ds_write_b32 v8, v20 offset:{FAIL}
s_branch L_ovback
""")
out.append('.section .rodata,"a"')
out.append('.p2align 6')
out.append(f""".amdhsa_kernel {NAME}_kernel
  .amdhsa_next_free_vgpr 128
  .amdhsa_next_free_sgpr 102
  .amdhsa_accum_offset 128
  .amdhsa_group_segment_fixed_size 0
  .amdhsa_kernarg_size 80
  .amdhsa_user_sgpr_count 2
  .amdhsa_user_sgpr_kernarg_segment_ptr 1
  .amdhsa_system_sgpr_workgroup_id_x 1
.end_amdhsa_kernel""")
def offsets(lines):
    import subprocess,re,tempfile,os
    d=tempfile.mkdtemp()
    txt=[]
    for i,l in enumerate(lines):
        t=l.strip()
        if l.startswith('    ') and not t.startswith(';'): txt.append(f"Z_{i}:")
        txt.append(l)
    open(d+"/a.s","w").write("\n".join(txt)+"\n")
    subprocess.check_call(["clang","-x","assembler","-target","amdgcn-amd-amdhsa","-mcpu=gfx950","-c",d+"/a.s","-o",d+"/a.o"])
    o=subprocess.check_output(["llvm-readelf","-s",d+"/a.o"]).decode()
    return {int(m.group(2)):int(m.group(1),16) for m in re.finditer(r"^\s*\d+: ([0-9a-f]+) .* Z_(\d+)$",o,re.M)}
if 'nowarm' not in OPT:
    step=args.wstep
    off=offsets(out); iw=out.index('    ; WARM')
    idx=sorted(off); end=off[idx[-1]]
    nat=[i for k,i in enumerate(idx[:-1]) if out[i].split()[0] in ('s_branch','s_endpgm')]
    spots=[]; cur=args.wfirst
    while cur<end-128:
        cand=[i for i in nat if cur-160<=off[i]<=cur and i>iw and i not in [x for x,_ in spots]]
        if cand: i=max(cand,key=lambda i:off[i]); spots.append((i,True))
        else:
            i=max([i for i in idx if off[i]<=cur],key=lambda i:off[i]); spots.append((i,False))
        cur=off[i]+step
    assert len(spots)<=16, len(spots)
    for k,(i,isnat) in reversed(list(enumerate(spots))):
        ins=[f"L_stub{k}:","    s_branch L_warmret"]
        if not isnat: ins=[f"    s_branch L_skip{k}"]+ins+[f"L_skip{k}:"]
        out[i+1:i+1]=ins
    lad=[]
    for k in range(len(spots)): lad+=[f"    s_cmp_eq_u32 s{sW}, {15-k}",f"    s_cbranch_scc1 L_stub{k}"]
    out[iw+1:iw+1]=lad+["L_warmret:"]
if args.stamps: out.insert(0,"; stamps: "+",".join(stampnames))
print("\n".join(out))
```

```python
import sys, struct, argparse
ap=argparse.ArgumentParser()
ap.add_argument('--stamps',action='store_true')
ap.add_argument('--opt',default='')
ap.add_argument('--wstep',type=int,default=480)
ap.add_argument('--wfirst',type=int,default=896)
ap.add_argument('--base',type=int,default=1)
ap.add_argument('--skip',default='x1,edge,issued')
ap.add_argument('--probe',default='')
args=ap.parse_args()
if args.probe: args.stamps=True
OPT=set(args.opt.split(','))
NAME="gather_scatter__edge_featured_mpnn_egc__graph"
out=[]
def e(s):
    for l in s.strip('\n').split('\n'):
        l=l.strip()
        if not l: continue
        out.append(l if l.endswith(':') else '    '+l)
def f2u(x): return struct.unpack('<I',struct.pack('<f',x))[0]
def vr(a,n=1): return f"v{a}" if n==1 else f"v[{a}:{a+n-1}]"
def sr(a,n=1): return f"s{a}" if n==1 else f"s[{a}:{a+n-1}]"

N=10000; E=160000; NB=157; CAP=40; EPW=625
LOG2E=1.4426950408889634
BCNT=0; NCNT=256; TIE=896; DONE=1152; FAIL=1156; ORDER=1280; GE=2048; LSTR=CAP+1; PAD=3392; LISTS=PAD+64; IMG=4096
W1=29696; assert LISTS+160*LSTR*4<=W1 and GE+(CAP+1)*32<=PAD; W2=W1+32768; XS=W2+16384; NS=XS+40960; NSTR=272; LDS_TOTAL=NS+160*NSTR
TAB=args.base<<20; TABQ=N*128; PRI=TAB+(6<<20); FLG=TAB+(9<<20); SEC=(1<<20) if args.base>=170 else TAB+(10<<20); DBG=200<<20
assert SEC+16384*10240<=(256<<20) and FLG+32768<=(256<<20)
DUMMY=0x3fff
sW=3; pX,pE,pSRC,pDST,pU,pV,pG,pOUT=4,6,8,10,12,14,16,18
SRDX=20; SRDO=24; SRDW=28; SRDT=32; SRDG=36; NONCE=40
sQ=42; sB=43; sN0=44; sNEND=45; sT=46
sTAG24=56; sTAG14=57; sREM=58; sTASK2=59
sM=60
sK40=72; sKE=74; sSPIN=76; sCELL=77; sI=78
sST=80
nstamp=[0]; stampnames=[]
SKIP=set(args.skip.split(','))
def stamp(name):
    if args.stamps and name not in SKIP:
        if name not in stampnames: stampnames.append(name); nstamp[0]+=1
        i=stampnames.index(name); assert i<11
        e(f"{'s_memtime' if 'cyc' in OPT else 's_memrealtime'} {sr(sST+2*i,2)}")

e(f"""
; @launch grid=(256,1,1) block=(1024,1,1) lds={LDS_TOTAL}
""")
out[:]=[l.strip() for l in out]
out.append('.amdgcn_target "amdgcn-amd-amdhsa--gfx950"')
out.append('.text')
out.append(f'.globl {NAME}_kernel')
out.append('.p2align 8')
out.append(f'.type {NAME}_kernel,@function')
out.append(f'{NAME}_kernel:')

e(f"""
s_load_dwordx16 s[4:19], s[0:1], 0
s_load_dwordx2 {sr(SRDW,2)}, s[0:1], 72
s_cmp_ge_u32 s2, 256
s_cbranch_scc1 L_end
""")
if args.stamps:
    for i in range(11): e(f"s_mov_b32 s{sST+2*i}, 0")
stamp("start")
e(f"""
v_lshrrev_b32 v2, 6, v0
v_and_b32 v1, 63, v0
v_readfirstlane_b32 s{sW}, v2
s_mov_b32 s79, s2
""")
if 'map3' in OPT: e(f"""
s_and_b32 s2, s79, 0xf8
s_bfe_u32 s{sT}, s79, 0x20001
s_or_b32 s2, s2, s{sT}
s_and_b32 s{sT}, s79, 1
s_lshl_b32 s{sT}, s{sT}, 2
s_or_b32 s2, s2, s{sT}
""")
if 'map4' in OPT: e(f"""
s_and_b32 s2, s79, 0xf0
s_bfe_u32 s{sT}, s79, 0x10003
s_or_b32 s2, s2, s{sT}
s_and_b32 s{sT}, s79, 4
s_lshr_b32 s{sT}, s{sT}, 1
s_or_b32 s2, s2, s{sT}
s_and_b32 s{sT}, s79, 3
s_lshl_b32 s{sT}, s{sT}, 2
s_or_b32 s2, s2, s{sT}
""")
if 'map2' in OPT: e(f"""
s_and_b32 s2, s79, 0xf2
s_bfe_u32 s{sT}, s79, 0x10003
s_or_b32 s2, s2, s{sT}
s_and_b32 s{sT}, s79, 1
s_lshl_b32 s{sT}, s{sT}, 2
s_or_b32 s2, s2, s{sT}
s_and_b32 s{sT}, s79, 4
s_lshl_b32 s{sT}, s{sT}, 1
s_or_b32 s2, s2, s{sT}
""")
e(f"""
s_and_b32 s{sQ}, s2, 3
s_lshr_b32 s{sB}, s2, 2
s_mul_i32 s{sN0}, s{sB}, {NB}
s_add_u32 s{sNEND}, s{sN0}, {NB}
s_min_u32 s{sNEND}, s{sNEND}, {N}
s_mul_i32 s{sT}, s2, {EPW*4}
v_lshlrev_b32 v8, 2, v0
v_mov_b32 v120, {DUMMY}
v_cmp_le_u32 vcc, {PAD}, v8
v_mov_b32 v121, {DUMMY}
v_mov_b32 v122, {DUMMY}
v_cndmask_b32 v9, 0, v120, vcc
ds_write_b32 v8, v9
v_mov_b32 v123, {DUMMY}
v_lshlrev_b32 v118, 4, v0
v_add_u32 v3, s{sT}, v8
v_lshrrev_b32 v4, 1, v3
v_lshrrev_b32 v10, 3, v0
v_lshlrev_b32 v5, 8, v10
v_and_b32 v10, 2, v10
v_lshrrev_b32 v11, 4, v0
v_and_or_b32 v10, v11, 4, v10
v_xor_b32 v10, v10, v0
v_and_b32 v10, 7, v10
v_lshl_add_u32 v5, v10, 4, v5
s_lshr_b32 s{sT+1}, s{sQ}, 1
s_lshl_b32 s{sT+1}, s{sT+1}, 7
v_add_u32 v5, s{sT+1}, v5
v_add_u32 v7, 32768, v5
v_xor_b32 v10, v11, v0
v_and_b32 v10, 15, v10
v_lshlrev_b32 v6, 8, v11
v_lshl_add_u32 v6, v10, 4, v6
s_and_b32 s{sT+2}, s{sQ}, 1
s_mul_i32 s{sT+2}, s{sT+2}, 80
s_add_u32 s{sT+3}, s{sT+2}, s{sN0}
s_lshl_b32 s{sT+3}, s{sT+3}, 8
v_add_u32 v6, s{sT+3}, v6
v_add_u32 v9, 4096, v6
; c offset
v_and_b32 v10, 7, v0
v_lshlrev_b32 v10, 3, v10
s_lshl_b32 s{sT+3}, s{sQ}, 6
s_add_u32 s{sT+3}, s{sT+3}, 65536
v_add_u32 v116, s{sT+3}, v10
s_bfe_u32 s{sT+3}, s79, 0x40003
s_lshl_b32 s{sT+3}, s{sT+3}, 12
s_add_u32 s{sT+3}, s{sT+3}, s{sT+1}
v_lshlrev_b32 v10, 8, v1
v_add_u32 v10, s{sT+3}, v10
s_lshl_b32 s{sT+4}, s{sW}, 10
s_add_u32 s{sT+5}, s{sT+4}, {W1}
s_lshl_b32 s{sT+6}, s{sT+2}, 8
s_add_u32 s{sT+6}, s{sT+6}, s{sT+4}
s_add_u32 s{sT+6}, s{sT+6}, {XS}
s_mov_b32 s{SRDX+2}, {N*256}
s_mov_b32 s{SRDX+3}, 0x20000
s_mov_b32 s{SRDW+2}, 0x10000000
s_mov_b32 s{SRDW+3}, 0x20000
v_cmp_gt_u32 vcc, {EPW}, v0
s_cmp_ge_u32 s{sW}, 10
s_waitcnt lgkmcnt(0)
""")
if OPT&{'diagA','diagB','diagC','diagD'}:
    base={'diagA':TAB,'diagB':220<<20,'diagC':PRI,'diagD':0}[(OPT&{'diagA','diagB','diagC','diagD'}).pop()]
    per=8192 if 'diagC' in OPT else 10000 if 'diagD' in OPT else 16384
    srd=SRDW
    if 'diagD' in OPT:
        srd=SRDO
        e(f"""
        s_mov_b32 s{SRDO}, s{pOUT}
        s_mov_b32 s{SRDO+1}, s{pOUT+1}
        s_mov_b32 s{SRDO+2}, {N*256}
        s_mov_b32 s{SRDO+3}, 0x20000
        """)
    e("s_barrier")
    stamp("d0")
    e(f"""
    s_mul_i32 s{sT+7}, s2, {per}
    s_add_u32 s{sT+7}, s{sT+7}, {base}
    v_mov_b32 v127, {per}
    v_cmp_gt_u32 {sr(sM,2)}, v127, v118
    s_mov_b64 exec, {sr(sM,2)}
    s_cbranch_execz L_dskip
    buffer_store_dwordx4 v[120:123], v118, {sr(srd,4)}, s{sT+7} offen sc1
    L_dskip:
    s_mov_b64 exec, -1
    s_waitcnt vmcnt(0)
    s_barrier
    """)
    stamp("d1")
    e(f"s_cmp_ge_u32 s{sW}, 10")
if OPT&{'diagE','diagF','diagG','diagH'}:
    e("s_barrier")
    stamp("d0")
    if OPT&{'diagE','diagF'}:
        e(f"""
        s_and_b32 s{sT+7}, s{sQ}, 2
        s_mul_i32 s{sT+7}, s{sT+7}, {TABQ}
        s_add_u32 s{sT+7}, s{sT+7}, {TAB if 'diagE' in OPT else 220<<20}
        s_add_u32 s{sT+8}, s{sT+7}, {TABQ}
        s_add_u32 s{sT+9}, s{sT+2}, s{sN0}
        s_lshl_b32 s{sT+9}, s{sT+9}, 7
        v_add_u32 v127, s{sT+9}, v118
        s_add_u32 s{sT+9}, s{sT+9}, 10240
        s_lshl_b32 s{sM}, s{sNEND}, 7
        s_min_u32 s{sT+9}, s{sT+9}, s{sM}
        v_cmp_gt_u32 {sr(sM,2)}, s{sT+9}, v127
        s_mov_b64 exec, {sr(sM,2)}
        s_cbranch_execz L_dskip
        buffer_store_dwordx4 v[120:123], v127, {sr(SRDW,4)}, s{sT+7} offen sc1
        buffer_store_dwordx4 v[120:123], v127, {sr(SRDW,4)}, s{sT+8} offen sc1
        """)
    else:
        e(f"""
        s_lshl_b32 s{sT+7}, s2, 7
        s_add_u32 s{sT+7}, s{sT+7}, {PRI if 'diagG' in OPT else 220<<20}
        v_lshrrev_b32 v127, 3, v0
        v_lshlrev_b32 v127, 15, v127
        v_and_b32 v126, 0x70, v118
        v_add_u32 v127, v126, v127
        s_cmp_ge_u32 s{sW}, 8
        s_cbranch_scc1 L_dskip
        buffer_store_dwordx4 v[120:123], v127, {sr(SRDW,4)}, s{sT+7} offen sc1
        """)
    e(f"""
    L_dskip:
    s_mov_b64 exec, -1
    s_waitcnt vmcnt(0)
    s_barrier
    """)
    stamp("d1")
    e(f"s_cmp_ge_u32 s{sW}, 10")
e(f"""
s_load_dwordx2 {sr(NONCE,2)}, {sr(SRDW,2)}, 0
s_cbranch_scc1 L_noedge0
s_mov_b64 exec, vcc
global_load_dword v12, v3, {sr(pDST,2)}
global_load_dword v13, v3, {sr(pSRC,2)}
global_load_ushort v16, v4, {sr(pE,2)}
s_mov_b64 exec, -1
L_noedge0:
s_mov_b32 s{SRDX}, s{pX}
s_mov_b32 s{SRDX+1}, s{pX+1}
s_mov_b32 m0, s{sT+6}
s_cmp_eq_u32 s{sW}, 10
s_cbranch_scc0 L_nopf
s_bitcmp1_b32 s79, 7
s_cbranch_scc1 L_pfuv
s_mov_b64 exec, 0xffff
global_load_dword v127, v10, {sr(pG,2)}
s_mov_b64 exec, -1
s_branch L_nopf
L_pfuv:
s_bitcmp1_b32 s79, 6
s_cselect_b64 {sr(sM,2)}, {sr(pU,2)}, {sr(pV,2)}
v_and_b32 v10, 0x7fff, v10
s_mov_b64 exec, 0xffff
global_load_dword v127, v10, {sr(sM,2)}
s_mov_b64 exec, -1
L_nopf:
s_barrier
s_cmp_lt_u32 s{sW}, 12
buffer_load_dwordx4 v6, {sr(SRDX,4)}, 0 offen lds
s_cbranch_scc1 L_nox1b
s_add_u32 m0, s{sT+6}, 4096
s_nop 0
buffer_load_dwordx4 v9, {sr(SRDX,4)}, 0 offen lds
L_nox1b:
ds_write_b128 v118, v[120:123] offset:{W1-16384}
ds_write_b32 v8, v120 offset:{IMG+8192}
""")
e("; WARM")
stamp("issued")
e(f"""
s_mov_b32 s{SRDO}, s{pOUT}
s_mov_b32 s{SRDO+1}, s{pOUT+1}
s_lshl_b32 s{SRDO+2}, s{sNEND}, 8
s_mov_b32 s{SRDO+3}, 0x20000
s_mul_i32 s{sT}, s{sQ}, {TABQ}
s_add_u32 s{sT}, s{sT}, {TAB}
s_add_u32 s{SRDG}, s{SRDW}, s{sT}
s_addc_u32 s{SRDG+1}, s{SRDW+1}, 0
s_and_b32 s{SRDG+1}, s{SRDG+1}, 0xffff
s_or_b32 s{SRDG+1}, s{SRDG+1}, 0x800000
s_mov_b32 s{SRDG+2}, {0 if 'nogather' in OPT else N}
s_mov_b32 s{SRDG+3}, 0x20000
s_and_b32 s{sT}, s{sQ}, 2
s_bfe_u32 s{sT+1}, s{sW}, 0x10001
s_add_u32 s{sT}, s{sT}, s{sT+1}
s_mul_i32 s{sT}, s{sT}, {TABQ}
s_add_u32 s{sT}, s{sT}, {TAB}
s_add_u32 s{SRDT}, s{SRDW}, s{sT}
s_addc_u32 s{SRDT+1}, s{SRDW+1}, 0
s_lshl_b32 s{SRDT+2}, s{sNEND}, 7
s_mov_b32 s{SRDT+3}, 0x20000
s_lshl_b32 s{sCELL}, s{sB}, 15
s_add_u32 s{sCELL}, s{sCELL}, {PRI}
s_mov_b32 s{sK40}, {f2u(2.0**40):#x}
s_mov_b32 s{sKE}, {f2u(-LOG2E*2.0**-40):#x}
s_waitcnt lgkmcnt(0)
s_add_u32 s{NONCE}, s{NONCE}, 0x7f4a7c15
s_addc_u32 s{NONCE+1}, s{NONCE+1}, 0x9e3779b9
s_and_b32 s{sTAG24}, s{NONCE}, 0xffffff00
s_and_b32 s{sTAG14}, s{NONCE+1}, 0xfffc0000
""")
e(f"""
s_cmp_ge_u32 s{sW}, 10
s_cbranch_scc1 L_noedge1
s_mov_b64 exec, vcc
v_mov_b32 v20, 8
s_waitcnt vmcnt(1)
""")
stamp("edge")
e(f"""
v_mul_u32_u24 v17, 6679, v12
v_lshrrev_b32 v17, 20, v17
v_lshlrev_b32 v18, 2, v17
ds_add_rtn_u32 v19, v18, v20 offset:{BCNT}
v_mul_u32_u24 v15, {NB}, v17
v_sub_u32 v15, v12, v15
v_lshl_or_b32 v14, v16, 16, v13
s_waitcnt lgkmcnt(0)
v_lshl_add_u32 v18, v17, 7, v19
v_cmp_gt_u32 vcc, 128, v19
s_andn2_b64 {sr(sM,2)}, exec, vcc
s_cbranch_scc1 L_secstore
L_secback:
s_mov_b64 exec, vcc
ds_write_b64 v18, v[14:15] offset:{IMG}
s_mov_b64 exec, -1
L_noedge1:
s_waitcnt lgkmcnt(0)
s_barrier
""")
stamp("img")
e(f"""
s_cmp_ge_u32 s{sW}, 8
s_cbranch_scc1 L_hi
""")
def w1_loads():
    e(f"""
    s_mov_b32 m0, s{sT+5}
    s_nop 0
    global_load_lds_dwordx4 v7, {sr(pG,2)}
    s_add_u32 m0, s{sT+5}, 16384
    s_nop 0
    global_load_lds_dwordx4 v5, {sr(pV,2)}
    """)
def lane_terms():
    e(f"""
    v_and_b32 v11, 15, v1
    v_lshrrev_b32 v12, 4, v1
    v_xor_b32 v8, v11, v12
    v_lshlrev_b32 v8, 4, v8
    v_lshl_add_u32 v8, v11, 8, v8
    v_bfe_u32 v9, v1, 2, 2
    v_lshl_add_u32 v9, v12, 3, v9
    v_and_b32 v10, 3, v1
    v_lshlrev_b32 v10, 3, v10
    """)
WOP=36; XA=68; XB=84; ACC=[8,16,100]; CELL=108; CRAW=116
vWa=2; vXa=3; vSa=7
def gemm(tag,sstr,ustr,mstr,post,skipcond):
    def wreads(s):
        for m in range(2):
            for u in range(2):
                e(f"ds_read_b64_tr_b16 {vr(WOP+16*m+4*s+2*u,2)}, v{vWa} offset:{s*sstr+u*ustr+m*mstr}")
    def xread(buf,t,s): e(f"ds_read_b128 {vr(buf+4*s,4)}, v{vXa+s} offset:{8192*t}")
    def mf(acc,buf,s):
        for m in range(2):
            c = "0" if s==0 else vr(acc+4*m,4)
            e(f"v_mfma_f32_16x16x32_bf16 {vr(acc+4*m,4)}, {vr(WOP+16*m+4*s,4)}, {vr(buf+4*s,4)}, {c}")
    for s in range(3): wreads(s); xread(XA,0,s)
    e("s_waitcnt lgkmcnt(10)"); mf(ACC[0],XA,0)
    wreads(3); xread(XA,0,3)
    e("s_waitcnt lgkmcnt(10)"); mf(ACC[0],XA,1)
    for s in range(4): xread(XB,1,s)
    e("s_waitcnt lgkmcnt(9)"); mf(ACC[0],XA,2)
    e("s_waitcnt lgkmcnt(4)"); mf(ACC[0],XA,3)
    e("s_waitcnt lgkmcnt(0)")
    mf(ACC[1],XB,0)
    for s in range(4): xread(XA,2,s)
    for s in range(1,4): mf(ACC[1],XB,s)
    post(0)
    e(skipcond); e(f"s_cbranch_scc1 L_{tag}_two")
    e("s_waitcnt lgkmcnt(0)")
    for s in range(4): mf(ACC[2],XA,s)
    post(1)
    e("s_nop 3")
    post(2)
    e(f"s_branch L_{tag}_done")
    e(f"L_{tag}_two:")
    post(1)
    e(f"L_{tag}_done:")
def cell_loads():
    e(f"""
    v_add_u32 v119, 16384, v118
    global_load_dwordx2 v[116:117], v116, {sr(pG,2)}
    buffer_load_dwordx4 {vr(CELL,4)}, v118, {sr(SRDW,4)}, s{sCELL} offen sc1
    buffer_load_dwordx4 {vr(CELL+4,4)}, v119, {sr(SRDW,4)}, s{sCELL} offen sc1
    """)
w1_loads()
lane_terms()
KG=2.0**40*(1-0.00135)
e(f"""
s_and_b32 s{sT}, s{sW}, 3
v_bfe_u32 v13, v1, 3, 2
v_xor_b32 v13, s{sT}, v13
v_lshl_add_u32 v13, v13, 5, v10
v_lshl_add_u32 v13, v9, 7, v13
v_add_u32 v{vWa}, {W1}, v13
s_lshr_b32 s{sT+1}, s{sW}, 2
s_lshl_b32 s{sT+1}, s{sT+1}, 4
s_add_u32 s{sT+1}, s{sT+1}, s{sT+2}
s_lshl_b32 s{sT+3}, s{sT+1}, 8
s_add_u32 s{sT+3}, s{sT+3}, {XS}
v_add_u32 v{vXa}, s{sT+3}, v8
v_xor_b32 v{vXa+1}, 64, v{vXa}
v_xor_b32 v{vXa+2}, 128, v{vXa}
v_xor_b32 v{vXa+3}, 192, v{vXa}
s_add_u32 s{sT+1}, s{sT+1}, s{sN0}
s_lshl_b32 s{sT+1}, s{sT+1}, 7
s_and_b32 s{sT}, s{sW}, 1
s_lshl_b32 s{sT}, s{sT}, 6
s_add_u32 s{sT+1}, s{sT+1}, s{sT}
v_lshlrev_b32 v{vSa}, 7, v11
v_lshl_add_u32 v{vSa}, v12, 4, v{vSa}
v_add_u32 v{vSa}, s{sT+1}, v{vSa}
s_mov_b32 s{sT+4}, {f2u(LOG2E):#x}
s_mov_b32 s{sT+5}, {f2u(KG):#x}
""")
if args.stamps and 'x1' not in SKIP: e("s_waitcnt vmcnt(2)"); stamp("x1")
e("s_waitcnt vmcnt(0)")
e("s_barrier")
stamp("B1")
PK=[24,28,32]
def post_qh(t):
    a=ACC[t]; p=PK[t]
    for i in range(4): e(f"v_mul_f32 v{a+i}, s{sT+4}, v{a+i}")
    for i in range(4): e(f"v_exp_f32 v{a+i}, v{a+i}")
    for i in range(4): e(f"v_mul_f32 v{a+4+i}, s{sT+5}, v{a+4+i}")
    for i in range(4): e(f"v_mul_f32 v{a+4+i}, v{a+i}, v{a+4+i}")
    for i in range(4): e(f"v_cvt_pk_bf16_f32 v{p+i}, v{a+i}, v{a+4+i}")
    e(f"buffer_store_dwordx4 {vr(p,4)}, v{vSa}, {sr(SRDT,4)}, 0 offen sc1")
    e(f"v_add_u32 v{vSa}, 4096, v{vSa}")
gemm("qh",4096,512,16384,post_qh,f"s_cmp_ge_u32 s{sW}, 4")
stamp("gemm")
cell_loads()
e("s_barrier")
e("s_branch L_cells")
e("L_hi:")
e(f"""
v_subrev_u32 v8, 512, v0
v_lshlrev_b32 v9, 4, v8
v_lshrrev_b32 v10, 3, v8
v_lshlrev_b32 v11, 2, v10
ds_read_b128 v[12:15], v9 offset:{IMG}
ds_read_b32 v16, v11 offset:{BCNT}
""")
w1_loads()
e(f"""
v_lshlrev_b32 v10, 15, v10
ds_write_b128 v9, v[120:123] offset:{IMG}
v_and_b32 v9, 0x70, v9
v_add_u32 v10, v10, v9
s_lshl_b32 s{sT}, s2, 7
s_add_u32 s{sT}, s{sT}, {PRI}
v_mov_b32 v17, 0xff
s_sub_u32 s{sT+1}, 80, s{sT+2}
s_sub_u32 s{sT+3}, s{sT+1}, s{sT+2}
s_lshl_b32 s{sT+3}, s{sT+3}, 8
s_sub_u32 s{sT+3}, s{sT+3}, 8192
v_add_u32 v18, s{sT+3}, v6
v_add_u32 v19, 8192, v18
v_add_u32 v20, 16384, v18
s_lshl_b32 s{sT+1}, s{sT+1}, 8
s_add_u32 s{sT+1}, s{sT+1}, s{sT+4}
s_add_u32 s{sT+1}, s{sT+1}, {XS-8192}
v_lshrrev_b32 v21, 2, v8
v_lshlrev_b32 v21, 8, v21
v_lshrrev_b32 v22, 4, v1
v_and_b32 v22, 2, v22
v_xor_b32 v22, v22, v1
v_and_b32 v22, 3, v22
v_lshl_add_u32 v21, v22, 4, v21
s_lshl_b32 s{sT+3}, s{sQ}, 6
v_add_u32 v21, s{sT+3}, v21
s_waitcnt lgkmcnt(1)
v_and_or_b32 v13, v13, v17, s{sTAG24}
v_lshl_or_b32 v16, v16, 5, s{sTAG14}
v_and_or_b32 v15, v15, v17, v16
s_add_u32 s{sT+8}, s{sT+4}, {W2-8192}
s_mov_b32 s{sT+9}, s{sT+1}
buffer_store_dwordx4 v[12:15], v10, {sr(SRDW,4)}, s{sT} offen sc1
""")
def w2_loads():
    e(f"""
    s_mov_b32 m0, s{sT+8}
    s_nop 0
    global_load_lds_dwordx4 v21, {sr(pG,2)}
    s_add_u32 m0, s{sT+8}, 8192
    s_nop 0
    global_load_lds_dwordx4 v21, {sr(pU,2)}
    """)
def x2_loads(after):
    e(f"""
    s_mov_b32 m0, s{sT+9}
    s_nop 0
    buffer_load_dwordx4 v18, {sr(SRDX,4)}, 0 offen lds
    s_add_u32 m0, s{sT+9}, 8192
    s_cmp_ge_u32 s{sW}, 12
    buffer_load_dwordx4 v19, {sr(SRDX,4)}, 0 offen lds
    s_cbranch_scc1 L_nox2c
    s_add_u32 m0, s{sT+9}, 16384
    s_nop 0
    buffer_load_dwordx4 v20, {sr(SRDX,4)}, 0 offen lds
    """)
    if after is not None:
        e(f"""
        s_waitcnt vmcnt({after+3})
        s_branch L_x2c
        L_nox2c:
        s_waitcnt vmcnt({after+2})
        L_x2c:
        """)
    else: e("L_nox2c:")
e("s_waitcnt lgkmcnt(0)")
if 'ordA' in OPT:
    x2_loads(1); e("s_barrier"); w2_loads()
elif 'ordC' in OPT:
    e("s_waitcnt vmcnt(1)"); e("s_barrier"); w2_loads(); x2_loads(None)
else:
    w2_loads(); e("s_waitcnt vmcnt(3)"); e("s_barrier"); x2_loads(None)
stamp("B1")
lane_terms()
e(f"""
s_and_b32 s{sT}, s{sW}, 1
v_and_b32 v13, 1, v12
v_xor_b32 v13, s{sT}, v13
v_lshl_add_u32 v13, v13, 5, v10
v_lshl_add_u32 v13, v9, 6, v13
v_add_u32 v{vWa}, {W2}, v13
s_bfe_u32 s{sT+1}, s{sW}, 0x10001
s_mul_i32 s{sT+1}, s{sT+1}, 5
s_bfe_u32 s{sT+3}, s{sW}, 0x10002
s_add_u32 s{sT+1}, s{sT+1}, s{sT+3}
s_lshl_b32 s{sT+3}, s{sT+1}, 12
s_add_u32 s{sT+3}, s{sT+3}, {XS}
v_add_u32 v{vXa}, s{sT+3}, v8
v_xor_b32 v{vXa+1}, 64, v{vXa}
v_xor_b32 v{vXa+2}, 128, v{vXa}
v_xor_b32 v{vXa+3}, 192, v{vXa}
s_mul_i32 s{sT+1}, s{sT+1}, {16*NSTR}
s_lshl_b32 s{sT}, s{sT}, 6
s_add_u32 s{sT+1}, s{sT+1}, s{sT}
s_add_u32 s{sT+1}, s{sT+1}, {NS}
v_mul_u32_u24 v{vSa}, {NSTR}, v11
v_lshl_add_u32 v{vSa}, v12, 4, v{vSa}
v_add_u32 v{vSa}, s{sT+1}, v{vSa}
s_mov_b32 s{sT+4}, {f2u(-LOG2E):#x}
""")
e("s_waitcnt vmcnt(0)")
e("s_barrier")
stamp("B1b")
cell_loads()
def post_pu(t):
    a=ACC[t]
    for i in range(4): e(f"v_mul_f32 v{a+i}, s{sT+4}, v{a+i}")
    for i in range(4): e(f"v_mul_f32 v{a+4+i}, s{sK40}, v{a+4+i}")
    e(f"ds_write_b128 v{vSa}, {vr(a,4)} offset:{t*32*NSTR}")
    e(f"ds_write_b128 v{vSa}, {vr(a+4,4)} offset:{t*32*NSTR+128}")
gemm("pu",2048,256,8192,post_pu,f"s_cmp_ge_u32 s{sW}, 12")
stamp("gemm")
vN,vM,vU,vP,vE,vC,vA,IA,IB,X,Y,xX,xY=8,12,16,20,24,28,32,36,44,52,68,84,100
vLA,vOA=2,3
e("L_cells:")
e(f"""
s_mov_b32 s{sSPIN}, 0
v_bfe_u32 v4, v1, 2, 2
v_lshrrev_b32 v5, 4, v1
v_cmp_eq_u32 vcc, v4, v5
v_and_b32 v4, 3, v1
v_mov_b32 v5, 0x3f80
v_cndmask_b32 v4, 4, v4, vcc
""")
for i in range(4):
    e(f"v_cmp_eq_u32 vcc, {i}, v4")
    e(f"v_mov_b32 v{vE+i}, 0")
    if i==0: e("v_and_b32 v6, 7, v1")
    elif i==1: e(f"v_lshlrev_b32 v{IA+1}, 4, v6")
    elif i==2: e(f"v_lshlrev_b32 v7, 1, v6")
    else: e(f"v_mov_b32 v20, 4")
    e(f"v_cndmask_b32 v{vA+i}, 0, v5, vcc")
for r in (IA+3,IA+5,IA+7,IB+1,IB+3,IB+5,IB+7): e(f"v_mov_b32 v{r}, v{IA+1}")
c0=CELL
e(f"""
v_lshlrev_b32 v124, 2, v6
v_mov_b32 v125, 0x3f80
s_cmp_ge_u32 s{sW}, 8
s_cbranch_scc1 L_cellwait
v_mov_b32 v8, 1
v_mov_b32 v9, 0
v_mov_b32 v10, s{NONCE}
v_mov_b32 v11, s{NONCE+1}
s_lshl_b32 s{sT}, s2, 7
s_add_u32 s{sT}, s{sT}, {FLG}
s_mov_b64 exec, 1
s_waitcnt vmcnt(3)
ds_add_rtn_u32 v8, v9, v8 offset:{DONE}
s_waitcnt lgkmcnt(0)
v_cmp_eq_u32 vcc, 7, v8
s_cbranch_vccz L_nosig
buffer_store_dwordx2 v[10:11], v9, {sr(SRDW,4)}, s{sT} offen sc1
s_mov_b64 exec, -1
""")
stamp("sig")
e(f"""
s_waitcnt vmcnt(1)
s_branch L_cellchk
L_nosig:
s_mov_b64 exec, -1
L_cellwait:
s_waitcnt vmcnt(0)
L_cellchk:
v_xor_b32 v8, s{sTAG24}, v{c0+1}
v_xor_b32 v9, s{sTAG24}, v{c0+5}
v_xor_b32 v10, s{sTAG14}, v{c0+3}
v_xor_b32 v11, s{sTAG14}, v{c0+7}
v_or_b32 v8, v8, v9
v_or_b32 v9, v10, v11
v_lshrrev_b32 v9, 10, v9
v_or_b32 v8, v8, v9
v_cmp_lt_u32 vcc, 255, v8
s_cbranch_vccnz L_cellretry
L_cellok:
v_lshrrev_b32 v10, 8, v10
v_lshrrev_b32 v11, 8, v11
v_max_u32 v21, v10, v11
v_add_u32 v22, 16, v6
v_cmp_gt_u32 vcc, v21, v22
v_add_u32 v9, 1, v7
s_cbranch_vccnz L_secload
L_secnone:
""")
def insert(recs, masks):
    for k,(r0,rl) in enumerate(recs):
        e(f"s_mov_b64 exec, {sr(masks[k],2)}")
        e(f"v_lshlrev_b32_sdwa v{12+k}, 2, v{rl} dst_sel:DWORD dst_unused:UNUSED_PAD src0_sel:DWORD src1_sel:BYTE_0")
        e(f"ds_add_rtn_u32 v{16+k}, v{12+k}, v20 offset:{NCNT}")
    n=len(recs)
    for k,(r0,rl) in enumerate(recs):
        e(f"s_mov_b64 exec, {sr(masks[k],2)}")
        e(f"s_waitcnt lgkmcnt({n-1-k+2*k})")
        e(f"v_min_u32 v{16+k}, {4*(CAP-1)}, v{16+k}")
        e(f"v_mad_u32_u24 v{12+k}, v{12+k}, {LSTR}, v{16+k}")
        e(f"v_lshl_add_u32 v{16+k}, v{16+k}, 3, v124")
        e(f"ds_add_u32 v{16+k}, v20 offset:{GE}")
        e(f"ds_write_b32 v{12+k}, v{r0} offset:{LISTS}")
    e("s_mov_b64 exec, -1")
e(f"""
v_cmp_gt_u32 {sr(sM,2)}, v10, v7
v_cmp_gt_u32 {sr(sM+2,2)}, v10, v9
v_cmp_gt_u32 {sr(sM+4,2)}, v11, v7
v_cmp_gt_u32 {sr(sM+6,2)}, v11, v9
""")
insert([(c0,c0+1),(c0+2,c0+3),(c0+4,c0+5),(c0+6,c0+7)],[sM,sM+2,sM+4,sM+6])
e(f"""
s_cbranch_vccnz L_secins
L_insdone:
s_mov_b32 s{sT}, {f2u(-LOG2E):#x}
v_lshlrev_b32 v{vC}, 16, v{CRAW}
v_and_b32 v{vC+1}, 0xffff0000, v{CRAW}
v_lshlrev_b32 v{vC+2}, 16, v{CRAW+1}
v_and_b32 v{vC+3}, 0xffff0000, v{CRAW+1}
""")
for i in range(4): e(f"v_mul_f32 v{vC+i}, s{sT}, v{vC+i}")
stamp("ins")
PL=X
e(f"""
s_cmp_eq_u32 s{sW}, 15
s_cbranch_scc0 L_nopoll0
v_lshlrev_b32 v118, 9, v1
s_lshr_b32 s{sT+8}, s{sQ}, 1
s_lshl_b32 s{sT+8}, s{sT+8}, 8
s_add_u32 s{sT+8}, s{sT+8}, {FLG}
buffer_load_dwordx2 {vr(PL,2)}, v118, {sr(SRDW,4)}, s{sT+8} offen sc1
buffer_load_dwordx2 {vr(PL+2,2)}, v118, {sr(SRDW,4)}, s{sT+8} offen offset:128 sc1
L_nopoll0:
s_waitcnt lgkmcnt(0)
s_barrier
s_cmp_ge_u32 s{sW}, 3
s_cbranch_scc1 L_noorder
v_cmp_gt_u32 vcc, 160, v0
v_lshlrev_b32 v8, 2, v0
s_mov_b64 exec, vcc
ds_read_b32 v9, v8 offset:{NCNT}
s_waitcnt lgkmcnt(0)
v_cmp_lt_u32 vcc, {4*CAP}, v9
v_min_u32 v9, {4*CAP}, v9
ds_add_rtn_u32 v10, v9, v20 offset:{TIE}
v_lshlrev_b32 v8, 3, v9
ds_read_b128 v[12:15], v8 offset:{GE}
ds_read_b128 v[16:19], v8 offset:{GE+16}
v_lshl_or_b32 v11, v9, 14, v0
s_cbranch_vccnz L_overflow
L_ovback:
s_waitcnt lgkmcnt(1)
v_add3_u32 v10, v10, v12, v13
v_add3_u32 v10, v10, v14, v15
s_waitcnt lgkmcnt(0)
v_add3_u32 v10, v10, v16, v17
v_add3_u32 v10, v10, v18, v19
v_min_u32 v10, 636, v10
ds_write_b32 v10, v11 offset:{ORDER}
s_mov_b64 exec, -1
s_or_b32 s{sT}, s2, s{sW}
s_cbranch_scc1 L_noorder
s_mov_b64 exec, 1
v_mov_b32 v8, s{NONCE}
v_mov_b32 v9, s{NONCE+1}
v_mov_b32 v10, 0
buffer_store_dwordx2 v[8:9], v10, {sr(SRDW,4)}, 0 offen sc1
s_mov_b64 exec, -1
L_noorder:
s_and_b32 s{sT}, s{sW}, 3
s_lshr_b32 s{sT+1}, s{sW}, 2
s_sub_u32 s{sTASK2}, 19, s{sT}
s_sub_u32 s{sI}, 15, s{sT}
s_cmp_eq_u32 s{sT+1}, 0
s_cselect_b32 s{sTASK2}, s{sTASK2}, 0
s_cmp_eq_u32 s{sT+1}, 1
s_cselect_b32 s{sI}, s{sT}, s{sI}
s_sub_u32 s{sT+2}, 7, s{sT}
s_cmp_eq_u32 s{sT+1}, 2
s_cselect_b32 s{sI}, s{sT+2}, s{sI}
s_add_u32 s{sT+2}, 8, s{sT}
s_cmp_eq_u32 s{sT+1}, 3
s_cselect_b32 s{sI}, s{sT+2}, s{sI}
v_lshrrev_b32 v116, 3, v1
v_lshlrev_b32 v116, 2, v116
s_lshl_b32 s{sT}, s{sN0}, 8
s_lshl_b32 s{sT+1}, s{sQ}, 6
s_add_u32 s{sT}, s{sT}, s{sT+1}
v_lshlrev_b32 v117, 3, v6
v_add_u32 v117, s{sT}, v117
v_add_u32 v119, {NS}, v{IA+1}
s_mov_b32 s{sT+9}, 1
s_waitcnt lgkmcnt(0)
s_barrier
""")
stamp("ord")
def idxreads(I,off):
    for k in (3,2,1,0): e(f"ds_read_u16 v{I+2*k}, v{vLA} offset:{off+4*k}")
def ereads(off):
    for k in range(4): e(f"ds_read_u16_d16_hi v{vE+k}, v{vLA} offset:{off+4*k+2}")
def apk(x):
    for k in (3,2,1,0):
        sel = "op_sel_hi:[0,1,1]" if k%2==0 else "op_sel:[1,0,0] op_sel_hi:[1,1,1]"
        for h in range(2):
            e(f"v_pk_fma_f32 {vr(x+4*k+2*h,2)}, {vr(vE+(k&2),2)}, {vr(vC+2*h,2)}, {vr(vP+2*h,2)} {sel}")
def exps(x,k):
    if 'novalu' in OPT: return
    for i in range(4): e(f"v_exp_f32 v{x+4*k+i}, v{x+4*k+i}")
def gath(B,I):
    for k in (3,2,1,0): e(f"buffer_load_dwordx4 {vr(B+4*k,4)}, {vr(I+2*k,2)}, {sr(SRDG,4)}, 0 idxen offen{'' if 'nosc1' in OPT else ' sc1'}")
def mext(B,x,k):
    if 'dot' in OPT:
        for i in range(4): e(f"v_dot2c_f32_bf16 v{x+4*k+i}, v125, v{B+4*k+i}")
    else: e(f"v_mfma_f32_16x16x32_bf16 {vr(x+4*k,4)}, {vr(vA,4)}, {vr(B+4*k,4)}, {vr(x+4*k,4)}")
def frac(B,x,k):
    if 'novalu' in OPT: e("s_nop 7"); return
    for h in range(2): e(f"v_pk_mul_f32 {vr(vU+2*h,2)}, {vr(B+4*k+2*h,2)}, {vr(vM+2*h,2)}")
    for h in range(2):
        e(f"v_pk_fma_f32 {vr(vN+2*h,2)}, {vr(vN+2*h,2)}, {vr(x+4*k+2*h,2)}, {vr(vU+2*h,2)}")
        e(f"v_pk_mul_f32 {vr(vM+2*h,2)}, {vr(vM+2*h,2)}, {vr(x+4*k+2*h,2)}")
e(f"""
L_task:
s_lshl_b32 s{sT}, s{sI}, 5
v_add_u32 v4, s{sT}, v116
ds_read_b32 v4, v4 offset:{ORDER}
v_mov_b32 v{vM}, 1.0
v_mov_b32 v{vM+1}, 1.0
v_mov_b32 v{vM+2}, 1.0
v_mov_b32 v{vM+3}, 1.0
s_waitcnt lgkmcnt(0)
v_readfirstlane_b32 s{sT}, v4
v_and_b32 v4, 0xff, v4
s_movk_i32 s{sT+2}, {NSTR}
v_mad_u32_u24 v5, v4, s{sT+2}, v119
s_lshr_b32 s{sT}, s{sT}, 16
s_add_u32 s{sREM}, s{sT}, 3
s_lshr_b32 s{sREM}, s{sREM}, 2
s_lshl_b32 s{sT+1}, s{sREM}, 4
s_add_u32 s{sT+1}, s{sT+1}, {LISTS-48}
v_mul_u32_u24 v{vLA}, {4*LSTR}, v4
v_add_u32 v{vLA}, s{sT+1}, v{vLA}
ds_read_b128 {vr(vP,4)}, v5
""")
ereads(32)
e(f"ds_read_b128 {vr(vN,4)}, v5 offset:128")
idxreads(IA,32)
idxreads(IB,16)
e(f"v_lshl_add_u32 v{vOA}, v4, 8, v117")
e(f"s_and_b32 s{sT+3}, s{sT}, 3")
e("s_waitcnt lgkmcnt(9)")
apk(xX)
ereads(16)
for k in (3,2,1,0): exps(xX,k)
e("s_waitcnt lgkmcnt(0)")
apk(xY)
ereads(0)
e(f"""
s_cmp_eq_u32 s{sT+9}, 0
s_cbranch_scc1 L_go
s_mov_b32 s{sT+9}, 0
s_cmp_eq_u32 s{sW}, 15
s_cbranch_scc0 L_nopoll1
s_mov_b32 s{sSPIN}, 0
L_poll:
s_waitcnt vmcnt(0)
v_cmp_ne_u64 vcc, {sr(NONCE,2)}, {vr(PL,2)}
v_cmp_ne_u64 {sr(sM,2)}, {sr(NONCE,2)}, {vr(PL+2,2)}
s_or_b64 vcc, vcc, {sr(sM,2)}
s_cbranch_scc0 L_nopoll1
s_add_u32 s{sSPIN}, s{sSPIN}, 1
s_cmp_ge_u32 s{sSPIN}, 0x8000
s_cbranch_scc1 L_nopoll1
buffer_load_dwordx2 {vr(PL,2)}, v118, {sr(SRDW,4)}, s{sT+8} offen sc1
buffer_load_dwordx2 {vr(PL+2,2)}, v118, {sr(SRDW,4)}, s{sT+8} offen offset:128 sc1
s_branch L_poll
L_nopoll1:
""")
stamp("pre")
e("s_barrier")
stamp("B3")
e(f"""
L_go:
s_cmp_eq_u32 s{sREM}, 0
s_cbranch_scc1 L_fin
""")
gath(X,IA); gath(Y,IB); idxreads(IA,0)
for k in (3,2,1,0): exps(xY,k)
e("s_waitcnt vmcnt(4)")
for k in (3,2,1,0): mext(X,xX,k)
e(f"""
s_nop 3
s_cmp_eq_u32 s{sT+3}, 1
s_cbranch_scc1 L_fx0
s_cmp_eq_u32 s{sT+3}, 2
s_cbranch_scc1 L_fx1
s_cmp_eq_u32 s{sT+3}, 3
s_cbranch_scc1 L_fx2
""")
def half(tag,B,x,B2,x2,tag2,last):
    for k in (3,2,1,0):
        e(f"L_f{tag}{k}:")
        frac(B,x,k)
    e(f"""
    s_sub_u32 s{sREM}, s{sREM}, 1
    s_cmp_le_u32 s{sREM}, 1
    s_cbranch_scc1 L_tail{tag}
    s_waitcnt lgkmcnt(0)
    """)
    gath(B,IA)
    apk(x)
    e(f"v_subrev_u32 v{vLA}, 16, v{vLA}")
    idxreads(IA,0); ereads(0)
    e("s_waitcnt vmcnt(4)")
    for k in (3,2,1,0):
        mext(B2,x2,k); exps(x,k)
    if last: e(f"s_branch L_f{tag2}3")
def tail(tag,B2,x2,tag2):
    e(f"""
    L_tail{tag}:
    s_cmp_eq_u32 s{sREM}, 0
    s_cbranch_scc1 L_fin
    s_waitcnt vmcnt(0)
    """)
    for k in (3,2,1,0): mext(B2,x2,k)
    e("s_nop 1")
    e(f"s_branch L_f{tag2}3")
half('x',X,xX,Y,xY,'y',False)
half('y',Y,xY,X,xX,'x',True)
tail('x',Y,xY,'y')
tail('y',X,xX,'x')
e("L_fin:")
e("s_waitcnt lgkmcnt(0)")
for i in range(4): e(f"v_rcp_f32 v{vM+i}, v{vM+i}")
for h in range(2): e(f"v_pk_mul_f32 {vr(vN+2*h,2)}, {vr(vN+2*h,2)}, {vr(vM+2*h,2)}")
for h in range(2): e(f"v_pk_mul_f32 {vr(vM+2*h,2)}, {vr(vN+2*h,2)}, {sr(sKE,2)} op_sel_hi:[1,0]")
for i in range(4): e(f"v_exp_f32 v{vM+i}, v{vM+i}")
for h in range(2): e(f"v_pk_fma_f32 {vr(vM+2*h,2)}, {vr(vM+2*h,2)}, {sr(sK40,2)}, {sr(sK40,2)} op_sel_hi:[1,0,0]")
for i in range(4): e(f"v_rcp_f32 v{vM+i}, v{vM+i}")
for h in range(2): e(f"v_pk_mul_f32 {vr(vU+2*h,2)}, {vr(vN+2*h,2)}, {vr(vM+2*h,2)}")
e(f"""
v_cvt_pk_bf16_f32 v{vU}, v{vU}, v{vU+1}
v_cvt_pk_bf16_f32 v{vU+1}, v{vU+2}, v{vU+3}
buffer_store_dwordx2 {vr(vU,2)}, v{vOA}, {sr(SRDO,4)}, 0 offen{' sc1' if 'osc1' in OPT else ' nt' if 'ont' in OPT else ''}
s_mov_b32 s{sI}, s{sTASK2}
s_mov_b32 s{sTASK2}, 0
s_cmp_lg_u32 s{sI}, 0
s_cbranch_scc1 L_task
""")
stamp("end")
if args.stamps:
    e(f"""
    s_waitcnt vmcnt(0) lgkmcnt(0)
    s_lshl_b32 s{sT}, s2, 4
    s_add_u32 s{sT}, s{sT}, s{sW}
    s_lshl_b32 s{sT}, s{sT}, 6
    s_add_u32 s{sT}, s{sT}, {DBG}
    v_mov_b32 v4, 0
    """)
    for i in range(nstamp[0]): e(f"v_writelane_b32 v4, s{sST+2*i}, {i}")
    e(f"""
    v_writelane_b32 v4, s{sSPIN}, 15
    v_lshlrev_b32 v5, 2, v1
    s_mov_b64 exec, 0xffff
    buffer_store_dword v4, v5, {sr(SRDW,4)}, s{sT} offen
    """)
if args.probe:
    pn,pwg,pw=args.probe.split(',')
    pi=stampnames.index(pn)
    e(f"""
    s_cmp_eq_u32 s2, {pwg}
    s_cbranch_scc0 L_end
    s_cmp_eq_u32 s{sW}, {pw}
    s_cbranch_scc0 L_end
    s_add_u32 s{sT}, s{sST+2*pi}, 4000
    L_probe:
    s_memrealtime {sr(sT+2,2)}
    s_waitcnt lgkmcnt(0)
    s_sub_u32 s{sT+1}, s{sT+2}, s{sT}
    s_cmp_lt_i32 s{sT+1}, 0
    s_cbranch_scc1 L_probe
    """)
e("L_end:")
e("s_endpgm")
e(f"""
L_secstore:
s_mov_b64 exec, {sr(sM,2)}
v_lshlrev_b32 v21, 8, v17
v_add_u32 v21, s2, v21
v_mul_u32_u24 v21, 10240, v21
v_lshl_add_u32 v21, v19, 1, v21
v_mov_b32 v24, v14
v_mov_b32 v25, v15
v_mov_b32 v26, s{NONCE}
v_mov_b32 v27, s{NONCE+1}
s_mov_b32 s{sT+7}, {SEC}
buffer_store_dwordx4 v[24:27], v21, {sr(SRDW,4)}, s{sT+7} offen sc1
s_branch L_secback
L_cellretry:
s_add_u32 s{sSPIN}, s{sSPIN}, 1
s_cmp_ge_u32 s{sSPIN}, 0x8000
s_cbranch_scc1 L_end
s_sleep 2
buffer_load_dwordx4 {vr(CELL,4)}, v118, {sr(SRDW,4)}, s{sCELL} offen sc1
buffer_load_dwordx4 {vr(CELL+4,4)}, v119, {sr(SRDW,4)}, s{sCELL} offen sc1
s_branch L_cellwait
""")
S0,S1=X,X+4
def secissue():
    e(f"""
    v_cmp_gt_u32 {sr(sM+8,2)}, v10, v22
    v_cmp_gt_u32 {sr(sM+10,2)}, v11, v22
    v_lshl_add_u32 v4, v22, 4, v23
    v_add_u32 v5, {128*10240}, v4
    s_mov_b64 exec, {sr(sM+8,2)}
    buffer_load_dwordx4 {vr(S0,4)}, v4, {sr(SRDW,4)}, s{sT+7} offen sc1
    s_mov_b64 exec, {sr(sM+10,2)}
    buffer_load_dwordx4 {vr(S1,4)}, v5, {sr(SRDW,4)}, s{sT+7} offen sc1
    s_mov_b64 exec, -1
    """)
e(f"""
L_secload:
v_lshrrev_b32 v23, 3, v0
v_mul_u32_u24 v23, 10240, v23
s_mul_i32 s{sT+7}, s{sB}, {256*10240}
s_add_u32 s{sT+7}, s{sT+7}, {SEC}
""")
secissue()
e(f"""
s_branch L_secnone
L_secagain:
""")
secissue()
e(f"""
L_secins:
s_waitcnt vmcnt(0)
v_cmp_ne_u64 {sr(sM,2)}, {sr(NONCE,2)}, {vr(S0+2,2)}
v_cmp_ne_u64 {sr(sM+2,2)}, {sr(NONCE,2)}, {vr(S1+2,2)}
s_and_b64 {sr(sM,2)}, {sr(sM,2)}, {sr(sM+8,2)}
s_and_b64 {sr(sM+2,2)}, {sr(sM+2,2)}, {sr(sM+10,2)}
s_or_b64 {sr(sM,2)}, {sr(sM,2)}, {sr(sM+2,2)}
s_cbranch_scc0 L_secok
s_add_u32 s{sSPIN}, s{sSPIN}, 1
s_cmp_ge_u32 s{sSPIN}, 0x8000
s_cbranch_scc1 L_end
s_branch L_secagain
L_secok:
s_waitcnt lgkmcnt(0)
""")
insert([(S0,S0+1),(S1,S1+1)],[sM+8,sM+10])
e(f"""
v_add_u32 v22, 8, v22
v_cmp_gt_u32 vcc, v21, v22
s_cbranch_vccnz L_secagain
s_branch L_insdone
L_overflow:
v_mov_b32 v8, 0
ds_write_b32 v8, v20 offset:{FAIL}
s_branch L_ovback
""")
out.append('.section .rodata,"a"')
out.append('.p2align 6')
out.append(f""".amdhsa_kernel {NAME}_kernel
  .amdhsa_next_free_vgpr 128
  .amdhsa_next_free_sgpr 102
  .amdhsa_accum_offset 128
  .amdhsa_group_segment_fixed_size 0
  .amdhsa_kernarg_size 80
  .amdhsa_user_sgpr_count 2
  .amdhsa_user_sgpr_kernarg_segment_ptr 1
  .amdhsa_system_sgpr_workgroup_id_x 1
.end_amdhsa_kernel""")
def offsets(lines):
    import subprocess,re,tempfile,os
    d=tempfile.mkdtemp()
    txt=[]
    for i,l in enumerate(lines):
        t=l.strip()
        if l.startswith('    ') and not t.startswith(';'): txt.append(f"Z_{i}:")
        txt.append(l)
    open(d+"/a.s","w").write("\n".join(txt)+"\n")
    subprocess.check_call(["clang","-x","assembler","-target","amdgcn-amd-amdhsa","-mcpu=gfx950","-c",d+"/a.s","-o",d+"/a.o"])
    o=subprocess.check_output(["llvm-readelf","-s",d+"/a.o"]).decode()
    return {int(m.group(2)):int(m.group(1),16) for m in re.finditer(r"^\s*\d+: ([0-9a-f]+) .* Z_(\d+)$",o,re.M)}
if 'nowarm' not in OPT:
    step=args.wstep
    off=offsets(out); iw=out.index('    ; WARM')
    idx=sorted(off); end=off[idx[-1]]
    nat=[i for k,i in enumerate(idx[:-1]) if out[i].split()[0] in ('s_branch','s_endpgm')]
    spots=[]; cur=args.wfirst
    while cur<end-128:
        cand=[i for i in nat if cur-160<=off[i]<=cur and i>iw and i not in [x for x,_ in spots]]
        if cand: i=max(cand,key=lambda i:off[i]); spots.append((i,True))
        else:
            i=max([i for i in idx if off[i]<=cur],key=lambda i:off[i]); spots.append((i,False))
        cur=off[i]+step
    assert len(spots)<=16, len(spots)
    for k,(i,isnat) in reversed(list(enumerate(spots))):
        ins=[f"L_stub{k}:","    s_branch L_warmret"]
        if not isnat: ins=[f"    s_branch L_skip{k}"]+ins+[f"L_skip{k}:"]
        out[i+1:i+1]=ins
    lad=[]
    for k in range(len(spots)): lad+=[f"    s_cmp_eq_u32 s{sW}, {15-k}",f"    s_cbranch_scc1 L_stub{k}"]
    out[iw+1:iw+1]=lad+["L_warmret:"]
if args.stamps: out.insert(0,"; stamps: "+",".join(stampnames))
print("\n".join(out))
```

```python
import sys, struct, argparse
ap=argparse.ArgumentParser()
ap.add_argument('--stamps',default='')
ap.add_argument('--probe',default='')
ap.add_argument('--opt',default='')
ap.add_argument('--cap',type=int,default=3)
ap.add_argument('--nx0',type=int,default=3)
ap.add_argument('--ctrig',type=int,default=4)
ap.add_argument('--wstep',type=int,default=900)
ap.add_argument('--wfirst',type=int,default=1000)
args=ap.parse_args()
OPT=set(args.opt.split(','))
stampnames=[s for s in args.stamps.split(',') if s]
if args.probe: stampnames=[args.probe.split(',')[0]]
assert len(stampnames)<=10
NAME="gather_scatter__edge_featured_mpnn_egc__graph"
out=[]
def e(s):
    for l in s.strip('\n').split('\n'):
        l=l.strip()
        if not l: continue
        out.append(l if l.endswith(':') and not l.startswith(';') else '    '+l)
def f2u(x): return struct.unpack('<I',struct.pack('<f',x))[0]
def vr(a,n=1): return f"v{a}" if n==1 else f"v[{a}:{a+n-1}]"
def sr(a,n=1): return f"s{a}" if n==1 else f"s[{a}:{a+n-1}]"

N=10000; E=160000; NB=157; CAP=48; LSTR=CAP+1; EPW=625
LOG2E=1.4426950408889634
BCNT=0; NCNT=256; TIE=896; DONE=1152; FAIL=1156; W1RDY=1160; CSTI=1164; XRDY=1180; RDY2=1192; ECNT=1168; CCNT=1172; TRDY=1176; NON=1184
ORDER=1280; CVEC=1920; GE=2048; PAD=3648; LISTS=PAD+64; IMG=LISTS+160*LSTR*4
WS=IMG+8192; XS=WS+32768; NS=XS+40960; NSTR=272; LDS_TOTAL=NS+160*NSTR
assert GE+(CAP+1)*32<=PAD and WS%256==0 and XS%256==0 and LDS_TOTAL<=163840
TAB=1<<20; TABQ=N*128; FLG=7<<20; CELLS=8<<20; LVL=1<<20; DBG=200<<20
DUMMY=0x3fff
SPINMAX=0x8000
sW=3; pX,pE,pSRC,pDST,pU,pV,pG,pOUT=4,6,8,10,12,14,16,18
SRDX=20; SRDO=24; SRDW=28; SRDT=32; SRDG=36; NONCE=40
sQ=42; sB=43; sN0=44; sNEND=45; sT=46
sREM=56; sTASK2=57; sI=58; sSPIN=59
sM=60
sK40=72; sKE=74; sRDY=76; sT2=77; sR=78; sPART=79
sST=82
sA=4
def stamp(name):
    if name in stampnames:
        e(f"{'s_memtime' if 'cyc' in OPT else 's_memrealtime'} {sr(sST+2*stampnames.index(name),2)}")
nl=[0]
def spin(off,target,sleep=0,vt=4):
    nl[0]+=1
    e(f"L_spin{nl[0]}:")
    if sleep: e(f"s_sleep {sleep}")
    e(f"""
    ds_read_b32 v{vt}, v{vZ} offset:{off}
    s_waitcnt lgkmcnt(0)
    v_readfirstlane_b32 s{sT+9}, v{vt}
    s_cmp_ge_i32 s{sT+9}, {target}
    s_cbranch_scc0 L_spin{nl[0]}
    """)
def post(off):
    e(f"""
    s_mov_b64 exec, 1
    ds_add_u32 v{vZ}, v{vOne} offset:{off}
    s_mov_b64 exec, -1
    """)
vLA,vOA=2,3
vN,vM,vU,vP,vE,vC,vA,IA,IB,X,Y,xX,xY=8,12,16,20,24,28,32,36,44,52,68,84,100
vOrd,vOB,vNB,vZ,vOne,vJ,vPF=116,117,118,119,120,121,127

out.append(f"; @launch grid=(256,1,1) block=(1024,1,1) lds={LDS_TOTAL}")
out.append('.amdgcn_target "amdgcn-amd-amdhsa--gfx950"')
out.append('.text')
out.append(f'.globl {NAME}_kernel')
out.append('.p2align 8')
out.append(f'.type {NAME}_kernel,@function')
out.append(f'{NAME}_kernel:')
e(f"""
s_load_dwordx16 s[4:19], s[0:1], 0
s_load_dwordx2 {sr(SRDW,2)}, s[0:1], 72
s_cmp_ge_u32 s2, 256
s_cbranch_scc1 L_end
""")
for i in range(len(stampnames)): e(f"s_mov_b32 s{sST+2*i}, 0")
stamp("start")
e(f"""
v_lshrrev_b32 v2, 6, v0
v_and_b32 v1, 63, v0
v_readfirstlane_b32 s{sW}, v2
v_lshlrev_b32 v8, 2, v0
v_mov_b32 v12, {DUMMY}
v_cmp_le_u32 vcc, {PAD}, v8
s_and_b32 s{sQ}, s2, 3
s_lshr_b32 s{sB}, s2, 2
s_mul_i32 s{sN0}, s{sB}, {NB}
v_cndmask_b32 v9, 0, v12, vcc
ds_write_b32 v8, v9
v_mov_b32 v{vZ}, 0
v_mov_b32 v{vOne}, 1
s_mov_b32 s{SRDW+2}, 0x10000000
s_mov_b32 s{SRDW+3}, 0x20000
s_cmp_ge_u32 s{sW}, 6
s_cbranch_scc1 L_e0
v_lshrrev_b32 v11, 4, v1
s_cmp_ge_u32 s{sW}, 4
s_cbranch_scc1 L_l0
v_xor_b32 v4, v11, v1
v_and_b32 v4, 15, v4
v_lshlrev_b32 v4, 4, v4
v_lshl_add_u32 v4, v11, 8, v4
s_lshl_b32 s{sT}, s{sW}, 12
s_lshl_b32 s{sT+2}, s{sN0}, 8
s_add_u32 s{sT+2}, s{sT+2}, s{sT}
v_add_u32 v4, s{sT+2}, v4
v_xor_b32 v5, 64, v4
v_xor_b32 v6, 128, v4
v_xor_b32 v7, 192, v4
s_add_u32 m0, s{sT}, {XS}
s_mov_b32 s{SRDX+2}, {N*256}
s_mov_b32 s{SRDX+3}, 0x20000
s_waitcnt lgkmcnt(0)
s_mov_b32 s{SRDX}, s{pX}
s_mov_b32 s{SRDX+1}, s{pX+1}
s_barrier
""")
def xtile():
    for i in range(4): e(f"buffer_load_dwordx4 v{4+i}, {sr(SRDX,4)}, 0 offen offset:{1024*i} lds")
def xnext():
    for i in range(4): e(f"v_add_u32 v{4+i}, 16384, v{4+i}")
    e("s_add_u32 m0, m0, 16384")
xtile()
e("""
L_warm:
; WARM
s_branch L_common
""")
e(f"""
L_e0:
s_setprio 2
s_mul_i32 s{sT}, s2, {EPW*4}
s_sub_u32 s{sT}, s{sT}, {384*4}
v_add_u32 v3, s{sT}, v8
v_lshrrev_b32 v4, 1, v3
v_cmp_gt_u32 vcc, {384+EPW}, v0
s_mov_b64 {sr(sM+10,2)}, vcc
v_mov_b32 v16, 0
v_mov_b32 v17, 0
v_mov_b32 v18, 0
v_mov_b32 v19, 0xffffff
v_lshlrev_b32 v9, 4, v0
v_subrev_u32 v9, {384*16}, v9
v_min_u32 v10, 8176, v9
ds_write_b128 v10, v[16:19] offset:{IMG}
v_mov_b32 v13, v12
v_mov_b32 v14, v12
v_mov_b32 v15, v12
s_mov_b64 exec, vcc
s_waitcnt lgkmcnt(0)
global_load_dword v52, v3, {sr(pDST,2)}
global_load_dword v54, v3, {sr(pSRC,2)}
global_load_ushort v56, v4, {sr(pE,2)}
s_load_dwordx2 {sr(NONCE,2)}, {sr(SRDW,2)}, 0
s_mov_b64 exec, -1
s_barrier
""")
for i in range(3): e(f"ds_write_b128 v9, v[12:15] offset:{4096+10240*i}")
e(f"""
v_lshrrev_b32 v9, 2, v9
ds_write_b32 v9, v12 offset:{IMG-2560}
s_branch L_common
""")
def waddr():
    e("""
    v_add_u32 v13, 3072, v12
    v_add_u32 v14, 6144, v12
    v_add_u32 v15, 9216, v12
    """)
def wloop(tag,p1,wend):
    e(f"""
    L_w{tag}:
    s_mov_b32 m0, s{sT+4}
    s_add_u32 s{sT+4}, s{sT+4}, 4096
    """)
    for i in range(4): e(f"global_load_lds_dwordx4 v{12+i}, {sr(sT+6,2)} offset:{1024*i}")
    e(f"""
    s_add_u32 s{sT+6}, s{sT+6}, 16384
    s_addc_u32 s{sT+7}, s{sT+7}, 0
    s_cmp_eq_u32 s{sT+4}, {wend-8192}
    s_cselect_b64 {sr(sT+6,2)}, {sr(p1,2)}, {sr(sT+6,2)}
    s_cmp_lt_u32 s{sT+4}, {wend}
    s_cbranch_scc1 L_w{tag}
    """)
e(f"""
L_l0:
s_lshl_b32 s{sT}, s{sQ}, 6
v_lshrrev_b32 v9, 2, v1
v_and_b32 v12, 2, v11
v_xor_b32 v12, v12, v1
v_and_b32 v12, 3, v12
v_lshlrev_b32 v12, 4, v12
v_lshl_add_u32 v12, v9, 8, v12
v_add_u32 v12, s{sT}, v12
s_cmp_eq_u32 s{sW}, 4
s_cbranch_scc1 L_l4
s_waitcnt lgkmcnt(0)
s_barrier
s_branch L_warm
L_l4:
s_setprio 3
s_bfe_u32 s{sT+1}, s2, 0x40003
s_lshl_b32 s{sT+1}, s{sT+1}, 12
s_add_u32 s{sT+1}, s{sT+1}, s{sT}
v_lshlrev_b32 v10, 8, v1
v_add_u32 v10, s{sT+1}, v10
s_bitcmp1_b32 s2, 7
s_cselect_b32 s{sT+2}, 0x7fff, -1
v_and_b32 v10, s{sT+2}, v10
v_and_b32 v19, 7, v1
v_lshlrev_b32 v16, 3, v19
s_add_u32 s{sT+1}, s{sT}, 65536
v_add_u32 v16, s{sT+1}, v16
s_mov_b32 s{sT+4}, {WS}
s_waitcnt lgkmcnt(0)
s_bitcmp1_b32 s2, 6
s_cselect_b64 {sr(sT+6,2)}, {sr(pU,2)}, {sr(pV,2)}
s_bitcmp1_b32 s2, 7
s_cselect_b64 {sr(sT+6,2)}, {sr(sT+6,2)}, {sr(pG,2)}
s_mov_b64 exec, 0xffff
global_load_dword v{vPF}, v10, {sr(sT+6,2)}
s_mov_b64 exec, -1
global_load_dwordx2 v[16:17], v16, {sr(pG,2)}
s_add_u32 s{sT+6}, s{pG}, 32768
s_addc_u32 s{sT+7}, s{pG+1}, 0
s_barrier
""")
waddr()
if 'w1pf' in OPT: e("s_waitcnt vmcnt(0)")
else: spin(CSTI,8,vt=8,sleep=1)
wloop('a',pV,WS+16384)
if 'w1first' in OPT: post(CSTI)
e(f"""
s_mov_b32 s{sT}, {f2u(-LOG2E):#x}
s_waitcnt vmcnt(16)
v_lshlrev_b32 v8, 16, v16
v_and_b32 v9, 0xffff0000, v16
v_lshlrev_b32 v10, 16, v17
v_and_b32 v11, 0xffff0000, v17
""")
for i in range(4): e(f"v_mul_f32 v{8+i}, s{sT}, v{8+i}")
e(f"""
v_lshlrev_b32 v19, 4, v19
ds_write_b128 v19, v[8:11] offset:{CVEC}
s_waitcnt vmcnt(0)
ds_write_b32 v{vZ}, v{vOne} offset:{W1RDY}
s_setprio 0
""")
e(f"""
L_common:
s_mov_b32 s{SRDX}, s{pX}
s_mov_b32 s{SRDX+1}, s{pX+1}
s_mov_b32 s{SRDX+2}, {N*256}
s_mov_b32 s{SRDX+3}, 0x20000
s_add_u32 s{sNEND}, s{sN0}, {NB}
s_min_u32 s{sNEND}, s{sNEND}, {N}
s_mov_b32 s{SRDO}, s{pOUT}
s_mov_b32 s{SRDO+1}, s{pOUT+1}
s_lshl_b32 s{SRDO+2}, s{sNEND}, 8
s_mov_b32 s{SRDO+3}, 0x20000
s_mul_i32 s{sT+8}, s{sQ}, {TABQ}
s_add_u32 s{sT+8}, s{sT+8}, {TAB}
s_add_u32 s{SRDT}, s{SRDW}, s{sT+8}
s_addc_u32 s{SRDT+1}, s{SRDW+1}, 0
s_lshl_b32 s{SRDT+2}, s{sNEND}, 7
s_mov_b32 s{SRDT+3}, 0x20000
s_mov_b32 s{SRDG}, s{SRDT}
s_and_b32 s{SRDG+1}, s{SRDT+1}, 0xffff
s_or_b32 s{SRDG+1}, s{SRDG+1}, 0x800000
s_mov_b32 s{SRDG+2}, {0 if 'nogather' in OPT else N}
s_mov_b32 s{SRDG+3}, 0x20000
s_mov_b32 s{sK40}, {f2u(2.0**40):#x}
s_mov_b32 s{sKE}, {f2u(-LOG2E*2.0**-40):#x}
s_mov_b32 s{sRDY}, 0
s_mov_b32 s{sSPIN}, 0
s_and_b32 s{sT+8}, s{sW}, 3
s_lshr_b32 s{sT+9}, s{sW}, 2
s_sub_u32 s{sTASK2}, 19, s{sT+8}
s_sub_u32 s{sI}, 15, s{sT+8}
s_cmp_eq_u32 s{sT+9}, 0
s_cselect_b32 s{sTASK2}, s{sTASK2}, 0
s_cmp_eq_u32 s{sT+9}, 1
s_cselect_b32 s{sI}, s{sT+8}, s{sI}
s_sub_u32 s{sREM}, 7, s{sT+8}
s_cmp_eq_u32 s{sT+9}, 2
s_cselect_b32 s{sI}, s{sREM}, s{sI}
s_add_u32 s{sREM}, 8, s{sT+8}
s_cmp_eq_u32 s{sT+9}, 3
s_cselect_b32 s{sI}, s{sREM}, s{sI}
""")
def lane_consts():
    e(f"""
    v_bfe_u32 v20, v1, 2, 2
    v_lshrrev_b32 v21, 4, v1
    v_cmp_eq_u32 vcc, v20, v21
    v_and_b32 v22, 3, v1
    v_mov_b32 v23, 0x3f80
    v_cndmask_b32 v2, 4, v22, vcc
    """)
    fill=[f"v_and_b32 v{vJ}, 7, v1", f"v_lshlrev_b32 v{IA+1}, 4, v{vJ}", f"v_lshrrev_b32 v{vOrd}, 3, v1", f"v_lshlrev_b32 v{vOrd}, 2, v{vOrd}"]
    for i in range(4):
        e(f"v_cmp_eq_u32 vcc, {i}, v2")
        e(f"v_mov_b32 v{vE+i}, 0")
        e(fill[i])
        e(f"v_cndmask_b32 v{vA+i}, 0, v23, vcc")
    for r in (IA+3,IA+5,IA+7,IB+1,IB+3,IB+5,IB+7): e(f"v_mov_b32 v{r}, v{IA+1}")
lane_consts()
e(f"""
s_lshl_b32 s{sT+8}, s{sN0}, 8
s_lshl_b32 s{sT+9}, s{sQ}, 6
s_add_u32 s{sT+8}, s{sT+8}, s{sT+9}
v_lshlrev_b32 v{vOB}, 3, v{vJ}
v_add_u32 v{vOB}, s{sT+8}, v{vOB}
v_add_u32 v{vNB}, {NS}, v{IA+1}
s_cmp_ge_u32 s{sW}, 6
s_cbranch_scc1 L_e1
""")
WR=52; XO=8; ACC=[116-16,116-8]
WR=44+8
vW0,vW1=2,3
KG=2.0**40*(1-0.00135)
ACC=[24,32]; PK=[40,44]; vSa,vNa,vMin,vTm=48,49,50,51
e(f"""
L_t0:
s_and_b32 s{sT+8}, s{sW}, 3
v_bfe_u32 v20, v1, 2, 2
v_lshrrev_b32 v21, 4, v1
v_and_b32 v22, 3, v1
v_and_b32 v23, 15, v1
v_xor_b32 v122, v23, v21
v_lshlrev_b32 v122, 4, v122
v_lshl_add_u32 v122, v23, 8, v122
s_lshl_b32 s{sT}, s{sT+8}, 12
s_add_u32 s{sT}, s{sT}, {XS}
v_add_u32 v122, s{sT}, v122
v_lshl_add_u32 v{vW0}, v21, 3, v20
v_lshlrev_b32 v{vW0}, 6, v{vW0}
v_lshl_add_u32 v{vW0}, v22, 3, v{vW0}
v_and_b32 v20, 1, v21
v_lshl_add_u32 v{vW0}, v20, 5, v{vW0}
v_add_u32 v{vW0}, {WS}, v{vW0}
v_xor_b32 v{vW1}, 32, v{vW0}
v_lshlrev_b32 v21, 4, v21
s_lshl_b32 s{sT+1}, s{sW}, 4
s_add_u32 s{sT+1}, s{sT+1}, s{sN0}
s_lshl_b32 s{sT+1}, s{sT+1}, 7
v_lshl_add_u32 v{vSa}, v23, 7, v21
v_add_u32 v{vSa}, s{sT+1}, v{vSa}
v_lshlrev_b32 v123, 7, v23
v_lshl_add_u32 v123, v21, 9, v123
v_add_u32 v123, s{sT+1}, v123
s_mul_i32 s{sT+2}, s{sT+8}, {16*NSTR}
s_add_u32 s{sT+2}, s{sT+2}, {NS}
v_mul_u32_u24 v{vNa}, {NSTR}, v23
v_add3_u32 v{vNa}, v{vNa}, v21, s{sT+2}
s_mov_b32 s{sT+4}, {f2u(LOG2E):#x}
s_mov_b32 s{sT+5}, {f2u(KG):#x}
s_cmp_ge_u32 s{sW}, 4
s_cbranch_scc1 L_pu
""")
xnext()
spin(CSTI,9 if 'w1first' in OPT else 8,vt=vTm,sleep=1)
xtile()
e(f"""
s_cmp_ge_u32 s{sW}, 2
s_cbranch_scc1 L_two
""")
xnext()
e("s_nop 0")
xtile()
e("""
s_waitcnt vmcnt(8)
s_branch L_three
L_two:
s_waitcnt vmcnt(4)
L_three:
""")
def gemm(tag,moff,flag,need0,posts,perTileWait):
    e(f"""
    v_mov_b32 v4, v122
    v_xor_b32 v5, 64, v122
    v_xor_b32 v6, 128, v122
    v_xor_b32 v7, 192, v122
    s_mov_b32 s{sT+3}, s{sT+8}
    """)
    spin(flag,need0,sleep=1,vt=vTm)
    stamp("w"+tag)
    for f in range(2):
        for s_ in range(4):
            for m in range(2):
                for u in range(2):
                    e(f"ds_read_b64_tr_b16 {vr(WR+32*f+8*s_+4*m+2*u,2)}, v{vW0+f} offset:{moff+m*8192+s_*2048+u*256}")
    e(f"L_tile{tag}:")
    for s_ in range(4): e(f"ds_read_b128 {vr(XO+4*s_,4)}, v{4+s_}")
    for s_ in range(4): e(f"v_add_u32 v{4+s_}, 16384, v{4+s_}")
    for f in range(2):
        for s_ in range(4):
            if f==0: e(f"s_waitcnt lgkmcnt({3-s_})")
            for m in range(2):
                c="0" if s_==0 else vr(ACC[f]+4*m,4)
                e(f"v_mfma_f32_16x16x32_bf16 {vr(ACC[f]+4*m,4)}, {vr(WR+32*f+8*s_+4*m,4)}, {vr(XO+4*s_,4)}, {c}")
    posts()
    e(f"s_add_u32 s{sT+3}, s{sT+3}, 4")
    if perTileWait:
        e(f"""
        s_cmp_ge_u32 s{sT+3}, 10
        s_cbranch_scc1 L_tiles{tag}
        s_waitcnt vmcnt(6)
        s_cmp_lt_u32 s{sT+3}, 6
        s_cbranch_scc1 L_tile{tag}
        s_waitcnt vmcnt(4)
        s_cmp_ge_u32 s{sT+3}, 8
        s_cbranch_scc1 L_xdone
        s_waitcnt vmcnt(2)
        L_xdone:
        """)
        post(XRDY)
        stamp("x")
        e(f"s_branch L_tile{tag}")
        e(f"L_tiles{tag}:")
    else:
        e(f"""
        s_cmp_lt_u32 s{sT+3}, 10
        s_cbranch_scc1 L_tile{tag}
        """)
def post_qh():
    for f in range(2):
        a=ACC[f]; p=PK[f]
        for i in range(4): e(f"v_mul_f32 v{a+i}, s{sT+4}, v{a+i}")
        for i in range(4): e(f"v_exp_f32 v{a+i}, v{a+i}")
        for i in range(4): e(f"v_mul_f32 v{a+4+i}, s{sT+5}, v{a+4+i}")
        for i in range(4): e(f"v_mul_f32 v{a+4+i}, v{a+i}, v{a+4+i}")
        for i in range(4): e(f"v_cvt_pk_bf16_f32 v{p+i}, v{a+i}, v{a+4+i}")
        e(f"buffer_store_dwordx4 {vr(p,4)}, v{vSa}, {sr(SRDT,4)}, 0 offen offset:{64*f} sc1")
    a0,a1=ACC
    e(f"""
    v_min3_f32 v{vMin}, v{a0}, v{a0+1}, v{a0+2}
    v_min3_f32 v{vMin}, v{vMin}, v{a0+3}, v{a1}
    v_min3_f32 v{vMin}, v{vMin}, v{a1+1}, v{a1+2}
    v_min_f32 v{vMin}, v{vMin}, v{a1+3}
    v_cmp_gt_f32 vcc, {f2u(2.0**-80):#x}, v{vMin}
    s_cbranch_vccnz L_mark
    L_markback:
    v_add_u32 v{vSa}, 8192, v{vSa}
    """)
gemm('1',0,W1RDY,1,post_qh,True)
stamp("qh")
spin(ECNT,10,vt=vTm)
e(f"""
ds_read_b64 v[8:9], v{vZ} offset:{NON}
ds_read_b64 v[10:11], v{vZ} offset:{NON}
v_lshlrev_b32 v12, 4, v1
s_lshl_b32 s{sT}, s{sQ}, 6
s_add_u32 s{sT}, s{sT}, s{sB}
s_lshl_b32 s{sT}, s{sT}, 6
s_add_u32 s{sT}, s{sT}, {FLG}
s_mov_b64 exec, 1
s_waitcnt vmcnt(0)
ds_add_rtn_u32 v13, v{vZ}, v{vOne} offset:{DONE}
""")
stamp("drain")
e(f"""
s_waitcnt lgkmcnt(0)
v_cmp_eq_u32 vcc, 3, v13
s_cbranch_vccz L_nosig
s_mov_b64 exec, 15
buffer_store_dwordx4 v[8:11], v12, {sr(SRDW,4)}, s{sT} offen sc1
""")
stamp("sig")
e(f"""
s_mov_b64 exec, -1
s_setprio 3
v_lshlrev_b32 v12, 6, v1
s_lshl_b32 s{sT}, s{sQ}, 12
s_add_u32 s{sT}, s{sT}, {FLG}
""")
if 'nopf' not in OPT: e(f"buffer_load_dword v{vPF}, v123, {sr(SRDT,4)}, 0 offen sc1")
if 'pollwait' in OPT: e("s_waitcnt vmcnt(0)")
e(f"""
L_poll:
buffer_load_dwordx2 v[10:11], v12, {sr(SRDW,4)}, s{sT} offen sc1
s_add_u32 s{sSPIN}, s{sSPIN}, 1
s_cmp_ge_u32 s{sSPIN}, {SPINMAX}
s_cbranch_scc1 L_pollok
s_waitcnt vmcnt(0)
v_cmp_ne_u64 vcc, v[8:9], v[10:11]
s_cbranch_vccnz L_poll
L_pollok:
ds_write_b32 v{vZ}, v{vOne} offset:{TRDY}
s_setprio 0
""")
stamp("trdy")
e("s_branch L_tdone")
e("L_nosig:")
e("s_mov_b64 exec, -1")
if 'nopf' not in OPT: e(f"buffer_load_dword v{vPF}, v123, {sr(SRDT,4)}, 0 offen sc1")
e("s_branch L_tdone")
e(f"""
L_pu:
s_cmp_eq_u32 s{sW}, 5
s_cbranch_scc0 L_now2
s_mov_b64 {sr(sT+6,2)}, {sr(pG,2)}
s_mov_b32 s{sT+4}, {WS+16384}
""")
waddr()
spin(W1RDY,1,sleep=1,vt=vTm)
wloop('b',pU,WS+32768)
e("s_waitcnt vmcnt(0)")
post(XRDY)
stamp("load")
e("L_now2:")
e(f"s_mov_b32 s{sT+4}, {f2u(-LOG2E):#x}")
def post_pu():
    for f in range(2):
        a=ACC[f]
        for i in range(4): e(f"v_mul_f32 v{a+i}, s{sT+4}, v{a+i}")
        if f==0: e("s_nop 1")
        e(f"ds_write_b128 v{vNa}, {vr(a,4)} offset:{64*f}")
        e(f"ds_write_b128 v{vNa}, {vr(a+4,4)} offset:{64*f+128}")
    e(f"v_add_u32 v{vNa}, {64*NSTR}, v{vNa}")
gemm('2',16384,XRDY,5,post_pu,False)
e('s_waitcnt lgkmcnt(0)')
post(RDY2)
stamp("pu")
e("L_tdone:")
lane_consts()
e("s_branch L_join")
e(f"""
L_e1:
s_waitcnt lgkmcnt(0)
s_add_u32 s{NONCE}, s{NONCE}, 0x7f4a7c15
s_addc_u32 s{NONCE+1}, s{NONCE+1}, 0x9e3779b9
s_lshr_b32 s{sT2}, s{NONCE}, 14
s_and_b32 s{sT2}, s{sT2}, 0xc000
v_mul_u32_u24 v22, 7, v22
v_lshrrev_b32 v22, v22, s{NONCE}
v_lshlrev_b32 v22, 25, v22
s_mov_b32 s{sR}, 0
v_mov_b32 v8, s{NONCE}
v_mov_b32 v9, s{NONCE+1}
ds_write_b64 v{vZ}, v[8:9] offset:{NON}
s_mov_b32 s{sT+8}, 10
s_movk_i32 s{sT}, 683
v_subrev_u32 v23, 512, v0
v_bfe_u32 v8, v23, 2, 6
v_and_b32 v10, 3, v23
v_lshlrev_b32 v10, 4, v10
v_lshl_add_u32 v11, v8, 7, v10
v_lshl_add_u32 v21, v8, 14, v10
v_lshlrev_b32 v62, 2, v8
v_lshlrev_b32 v63, 2, v1
s_bfe_u32 s{sT+4}, s{sW}, 0x10002
s_lshl_b32 s{sT+5}, s{sT+4}, 6
v_add_u32 v11, s{sT+5}, v11
s_lshl_b32 s{sT+1}, s{sT+4}, 20
s_lshl_b32 s{sT+2}, s2, 6
s_add_u32 s{sT+1}, s{sT+1}, s{sT+2}
s_add_u32 s{sT+1}, s{sT+1}, {CELLS}
s_mul_i32 s{sT+5}, s{sT+4}, 12
s_sub_u32 s{sT+3}, s{sT+4}, 1
v_or_b32 v7, 0x1000000, v22
v_mov_b32 v60, -1
s_mov_b64 exec, {sr(sM+10,2)}
s_waitcnt vmcnt(2)
""")
stamp("edge")
e(f"""
v_mul_u32_u24 v58, 6679, v52
v_lshrrev_b32 v58, 20, v58
v_lshlrev_b32 v60, 2, v58
ds_add_rtn_u32 v60, v60, v{vOne} offset:{BCNT}
v_mul_u32_u24 v8, {NB}, v58
v_sub_u32 v52, v52, v8
v_lshlrev_b32 v58, 7, v58
s_mov_b64 exec, -1
s_waitcnt lgkmcnt(0)
L_round:
v_subrev_u32 v8, s{sR}, v60
v_cmp_gt_u32 vcc, 24, v8
v_mul_u32_u24 v9, s{sT}, v8
v_lshrrev_b32 v9, 11, v9
v_add_u32 v10, v8, v9
v_lshl_add_u32 v10, v10, 2, v58
v_mad_u32_u24 v9, v9, 13, v8
v_add_u32 v9, v9, v58
s_mov_b64 exec, vcc
ds_write_b8 v9, v52 offset:{IMG+12}
s_waitcnt vmcnt(0)
v_lshl_or_b32 v8, v56, 16, v54
ds_write_b32 v10, v8 offset:{IMG}
s_mov_b64 exec, 1
s_waitcnt lgkmcnt(0)
ds_add_u32 v{vZ}, v{vOne} offset:{ECNT}
s_mov_b64 exec, -1
""")
spin(ECNT,f"s{sT+8}")
stamp("img")
e(f"""
ds_read_b32 v5, v63 offset:{BCNT}
s_cmp_lt_u32 s{sW}, 8
s_cbranch_scc1 L_nocopy
ds_read_b32 v6, v62 offset:{BCNT}
ds_read_b128 v[12:15], v11 offset:{IMG}
s_waitcnt lgkmcnt(1)
v_subrev_u32 v6, s{sT+5}, v6
v_cmp_lt_i32 vcc, 12, v6
v_cmp_lt_i32 {sr(sM,2)}, s{sT+3}, v6
s_waitcnt lgkmcnt(0)
v_cndmask_b32 v20, v22, v7, vcc
v_xor_b32 v12, s{sT2}, v12
v_xor_b32 v13, s{sT2}, v13
v_xor_b32 v14, s{sT2}, v14
v_or_b32 v15, v20, v15
s_mov_b64 exec, {sr(sM,2)}
buffer_store_dwordx4 v[12:15], v21, {sr(SRDW,4)}, s{sT+1} offen sc1
s_mov_b64 exec, 1
ds_add_u32 v{vZ}, v{vOne} offset:{CSTI}
s_mov_b64 exec, -1
L_nocopy:
s_add_u32 s{sR}, s{sR}, 24
s_waitcnt lgkmcnt(0)
v_cmp_lt_u32 vcc, s{sR}, v5
s_cbranch_vccnz L_again
s_cmp_ge_u32 s{sW}, 8
s_cbranch_scc1 L_c0
s_setprio 0
s_branch L_t0
""")
D=52; Cc=68; sO=sT+1; mk=sA; cur=sA+4; bad=sA+8; NJ=2
def cloads(m):
    for j in range(NJ):
        e(f"s_mov_b64 exec, {sr(m+2*j,2)}")
        e(f"buffer_load_dwordx4 {vr(D+4*j,4)}, v23, {sr(SRDW,4)}, s{sO+j} offen sc1")
    e("s_mov_b64 exec, -1")
e(f"""
L_c0:
v_lshlrev_b32 v23, 4, v23
v_lshlrev_b32 v21, 2, v{vJ}
v_mov_b32 v20, 4
v_mov_b32 v6, 0xff
v_mov_b32 v7, 0xc000
s_lshl_b32 s{sO}, s{sB}, 14
s_add_u32 s{sO}, s{sO}, {CELLS}
s_add_u32 s{sO+1}, s{sO}, 8192
""")
for j in range(NJ): e(f"s_mov_b64 {sr(mk+2*j,2)}, -1")
e("s_waitcnt vmcnt(0)")
stamp("cst")
spin(XRDY,args.ctrig,sleep=1) if args.ctrig>0 else spin(W1RDY,1,sleep=1)
cloads(mk)
e("L_cwait:")
for j in range(NJ):
    d=D+4*j; c=Cc+4*j
    e(f"""
    s_waitcnt vmcnt({NJ-1-j})
    v_xor_b32 v{c}, s{sT2}, v{d}
    v_xor_b32 v{c+1}, s{sT2}, v{d+1}
    v_xor_b32 v{c+2}, s{sT2}, v{d+2}
    v_xor_b32 v{c+3}, v22, v{d+3}
    v_or3_b32 v8, v{c}, v{c+1}, v{c+2}
    v_lshrrev_b32 v9, 25, v{c+3}
    v_and_or_b32 v8, v8, v7, v9
    v_cmp_ne_u32 vcc, 0, v8
    s_and_b64 {sr(bad+2*j,2)}, vcc, {sr(mk+2*j,2)}
    """)
e(f"s_or_b64 {sr(sM,2)}, {sr(bad,2)}, {sr(bad+2,2)}")
e("s_cbranch_scc1 L_cretry")
stamp("cell")
for j in range(NJ):
    e(f"""
    v_cmp_lt_u32 vcc, 0xffffff, v{Cc+4*j+3}
    s_mov_b64 {sr(cur+2*j,2)}, {sr(mk+2*j,2)}
    s_add_u32 s{sO+j}, s{sO+j}, {LVL}
    s_and_b64 {sr(mk+2*j,2)}, {sr(mk+2*j,2)}, vcc
    """)
e(f"""
s_or_b64 {sr(sM,2)}, {sr(mk,2)}, {sr(mk+2,2)}
s_cselect_b32 s{sR}, 1, 0
s_cbranch_scc0 L_cnomore
""")
cloads(mk)
e("L_cnomore:")
for half in range(1):
    recs=[(j,i) for j in (2*half,2*half+1) for i in range(3)]
    for k,(j,i) in enumerate(recs):
        if i==0: e(f"s_mov_b64 exec, {sr(cur+2*j,2)}")
        e(f"v_cmp_ne_u32_sdwa {sr(sM+2*k,2)}, v{Cc+4*j+3}, v6 src0_sel:BYTE_{i} src1_sel:DWORD")
        e(f"v_lshlrev_b32_sdwa v{8+k}, 2, v{Cc+4*j+3} dst_sel:DWORD dst_unused:UNUSED_PAD src0_sel:DWORD src1_sel:BYTE_{i}")
    for k,(j,i) in enumerate(recs):
        e(f"s_mov_b64 exec, {sr(sM+2*k,2)}")
        e(f"ds_add_rtn_u32 v{14+k}, v{8+k}, v20 offset:{NCNT}")
    for k,(j,i) in enumerate(recs):
        e(f"""
        s_mov_b64 exec, {sr(sM+2*k,2)}
        s_waitcnt lgkmcnt({5+k})
        v_min_u32 v{14+k}, {4*(CAP-1)}, v{14+k}
        v_mad_u32_u24 v{8+k}, v{8+k}, {LSTR}, v{14+k}
        v_lshl_add_u32 v{14+k}, v{14+k}, 3, v21
        ds_write_b32 v{8+k}, v{Cc+4*j+i} offset:{LISTS}
        ds_add_u32 v{14+k}, v20 offset:{GE}
        """)
e(f"""
s_mov_b64 exec, -1
s_cmp_eq_u32 s{sR}, 1
s_cbranch_scc1 L_cwait
L_cdone:
s_waitcnt lgkmcnt(0)
""")
post(CCNT)
stamp("ins")
e(f"""
s_cmp_ge_u32 s{sW}, 11
s_cbranch_scc1 L_join0
v_lshrrev_b32 v23, 4, v23
v_cmp_gt_u32 vcc, 160, v23
v_lshlrev_b32 v8, 2, v23
""")
spin(CCNT,8)
e(f"""
s_mov_b64 exec, vcc
ds_read_b32 v9, v8 offset:{NCNT}
s_waitcnt lgkmcnt(0)
v_cmp_lt_u32 vcc, {4*CAP}, v9
v_min_u32 v9, {4*CAP}, v9
ds_add_rtn_u32 v10, v9, v20 offset:{TIE}
v_lshlrev_b32 v8, 3, v9
ds_read_b128 v[12:15], v8 offset:{GE}
ds_read_b128 v[16:19], v8 offset:{GE+16}
v_lshl_or_b32 v11, v9, 14, v23
s_cbranch_vccnz L_overflow
L_ovback:
s_waitcnt lgkmcnt(1)
v_add3_u32 v10, v10, v12, v13
v_add3_u32 v10, v10, v14, v15
s_waitcnt lgkmcnt(0)
v_add3_u32 v10, v10, v16, v17
v_add3_u32 v10, v10, v18, v19
v_min_u32 v10, 636, v10
ds_write_b32 v10, v11 offset:{ORDER}
s_mov_b64 exec, 1
s_waitcnt lgkmcnt(0)
ds_add_u32 v{vZ}, v{vOne} offset:{RDY2}
s_mov_b64 exec, -1
s_xor_b32 s{sT}, s{sW}, 8
s_or_b32 s{sT}, s{sT}, s2
s_cbranch_scc1 L_join0
s_mov_b64 exec, 1
v_mov_b32 v8, s{NONCE}
v_mov_b32 v9, s{NONCE+1}
buffer_store_dwordx2 v[8:9], v{vZ}, {sr(SRDW,4)}, 0 offen sc1
s_mov_b64 exec, -1
L_join0:
s_setprio 0
L_join:
""")
spin(RDY2,7,sleep=1)
stamp("B2")
e(f"ds_read_b128 {vr(vC,4)}, v{IA+1} offset:{CVEC}")
def idxreads(I,off):
    for k in (3,2,1,0): e(f"ds_read_u16 v{I+2*k}, v{vLA} offset:{off+4*k}")
def ereads(off):
    for k in range(4): e(f"ds_read_u16_d16_hi v{vE+k}, v{vLA} offset:{off+4*k+2}")
def apk(x):
    for k in (3,2,1,0):
        sel = "op_sel_hi:[0,1,1]" if k%2==0 else "op_sel:[1,0,0] op_sel_hi:[1,1,1]"
        for h in range(2):
            e(f"v_pk_fma_f32 {vr(x+4*k+2*h,2)}, {vr(vE+(k&2),2)}, {vr(vC+2*h,2)}, {vr(vP+2*h,2)} {sel}")
def exps(x,k):
    if 'novalu' in OPT: return
    for i in range(4): e(f"v_exp_f32 v{x+4*k+i}, v{x+4*k+i}")
def gath1(B,I,k): e(f"buffer_load_dwordx4 {vr(B+4*k,4)}, {vr(I+2*k,2)}, {sr(SRDG,4)}, 0 idxen offen sc1")
def gath(B,I):
    for k in (3,2,1,0): gath1(B,I,k)
def mext(B,x,k): e(f"v_mfma_f32_16x16x32_bf16 {vr(x+4*k,4)}, {vr(vA,4)}, {vr(B+4*k,4)}, {vr(x+4*k,4)}")
def frac(B,x,k):
    if 'novalu' in OPT: e("s_nop 7"); return
    for h in range(2): e(f"v_pk_mul_f32 {vr(vU+2*h,2)}, {vr(B+4*k+2*h,2)}, {vr(vM+2*h,2)}")
    for h in range(2):
        e(f"v_pk_fma_f32 {vr(vN+2*h,2)}, {vr(vN+2*h,2)}, {vr(x+4*k+2*h,2)}, {vr(vU+2*h,2)}")
        e(f"v_pk_mul_f32 {vr(vM+2*h,2)}, {vr(vM+2*h,2)}, {vr(x+4*k+2*h,2)}")
def ladder(lab):
    for r in (1,2,3):
        e(f"s_cmp_eq_u32 s{sPART}, {r}")
        e(f"s_cbranch_scc1 {lab}{r-1}")
def gfirst(tag):
    ladder(f"L_g{tag}")
    for k in (3,2,1,0):
        e(f"L_g{tag}{k}:"); gath1(X,IA,k)
    gath(Y,IB); idxreads(IA,0)
e(f"""
L_task:
s_lshl_b32 s{sT}, s{sI}, 5
v_add_u32 v4, s{sT}, v{vOrd}
ds_read_b32 v4, v4 offset:{ORDER}
v_mov_b32 v{vM}, 1.0
v_mov_b32 v{vM+1}, 1.0
v_mov_b32 v{vM+2}, 1.0
v_mov_b32 v{vM+3}, 1.0
s_movk_i32 s{sT+2}, {NSTR}
s_waitcnt lgkmcnt(0)
v_readfirstlane_b32 s{sT}, v4
v_and_b32 v4, 0xff, v4
v_mul_u32_u24 v{vLA}, {4*LSTR}, v4
v_mad_u32_u24 v5, v4, s{sT+2}, v{vNB}
s_lshr_b32 s{sT}, s{sT}, 16
s_add_u32 s{sREM}, s{sT}, 3
s_lshr_b32 s{sREM}, s{sREM}, 2
s_lshl_b32 s{sT+1}, s{sREM}, 4
s_add_u32 s{sT+1}, s{sT+1}, {LISTS-48}
v_add_u32 v{vLA}, s{sT+1}, v{vLA}
""")
idxreads(IA,32); idxreads(IB,16)
e(f"ds_read_b32 v7, v{vZ} offset:{TRDY}")
e(f"ds_read_b128 {vr(vP,4)}, v5")
ereads(32)
e(f"""
ds_read_b128 {vr(vN,4)}, v5 offset:128
v_lshl_add_u32 v{vOA}, v4, 8, v{vOB}
s_and_b32 s{sPART}, s{sT}, 3
s_waitcnt lgkmcnt(6)
v_readfirstlane_b32 s{sRDY}, v7
s_cmp_eq_u32 s{sRDY}, 0
s_cbranch_scc1 L_notyet
L_rdy:
""")
stamp("go")
gfirst('a')
e("s_waitcnt lgkmcnt(4)")
e("s_branch L_astage")
e("L_notyet:")
e("s_waitcnt lgkmcnt(0)")
e("L_astage:")
apk(xX)
ereads(16)
for h in range(2): e(f"v_pk_mul_f32 {vr(vN+2*h,2)}, {vr(vN+2*h,2)}, {sr(sK40,2)} op_sel_hi:[1,0]")
for k in (3,2,1,0): exps(xX,k)
e("s_waitcnt lgkmcnt(0)")
apk(xY)
ereads(0)
e(f"""
s_cmp_eq_u32 s{sRDY}, 0
s_cbranch_scc1 L_late
s_waitcnt vmcnt(4)
""")
for k in (3,2,1,0): mext(X,xX,k); exps(xY,k)
e(f"""
L_enter:
s_cmp_eq_u32 s{sREM}, 0
s_cbranch_scc1 L_fin
""")
ladder("L_fx")
def half(tag,B,x,B2,x2,tag2,last):
    for k in (3,2,1,0):
        e(f"L_f{tag}{k}:")
        frac(B,x,k)
    e(f"""
    s_sub_u32 s{sREM}, s{sREM}, 1
    s_cmp_le_u32 s{sREM}, 1
    s_cbranch_scc1 L_tail{tag}
    s_waitcnt lgkmcnt(0)
    """)
    gath(B,IA)
    apk(x)
    e(f"v_subrev_u32 v{vLA}, 16, v{vLA}")
    idxreads(IA,0); ereads(0)
    e("s_waitcnt vmcnt(4)")
    for k in (3,2,1,0):
        mext(B2,x2,k); exps(x,k)
    if last: e(f"s_branch L_f{tag2}3")
def tail(tag,B2,x2,tag2):
    e(f"""
    L_tail{tag}:
    s_cmp_eq_u32 s{sREM}, 0
    s_cbranch_scc1 L_fin
    s_waitcnt vmcnt(0)
    """)
    for k in (3,2,1,0): mext(B2,x2,k)
    e("s_nop 1")
    e(f"s_branch L_f{tag2}3")
half('x',X,xX,Y,xY,'y',False)
half('y',Y,xY,X,xX,'x',True)
tail('x',Y,xY,'y')
tail('y',X,xX,'x')
e("L_late:")
for k in (3,2,1,0): exps(xY,k)
spin(TRDY,1,vt=7)
stamp("go")
gfirst('b')
e("s_waitcnt vmcnt(4)")
for k in (3,2,1,0): mext(X,xX,k)
e("s_nop 1")
e("s_branch L_enter")
e("L_fin:")
e("s_waitcnt lgkmcnt(0)")
for i in range(4): e(f"v_rcp_f32 v{vM+i}, v{vM+i}")
for h in range(2): e(f"v_pk_mul_f32 {vr(vN+2*h,2)}, {vr(vN+2*h,2)}, {vr(vM+2*h,2)}")
for h in range(2): e(f"v_pk_mul_f32 {vr(vM+2*h,2)}, {vr(vN+2*h,2)}, {sr(sKE,2)} op_sel_hi:[1,0]")
for i in range(4): e(f"v_exp_f32 v{vM+i}, v{vM+i}")
for h in range(2): e(f"v_pk_fma_f32 {vr(vM+2*h,2)}, {vr(vM+2*h,2)}, {sr(sK40,2)}, {sr(sK40,2)} op_sel_hi:[1,0,0]")
for i in range(4): e(f"v_rcp_f32 v{vM+i}, v{vM+i}")
for h in range(2): e(f"v_pk_mul_f32 {vr(vU+2*h,2)}, {vr(vN+2*h,2)}, {vr(vM+2*h,2)}")
e(f"""
v_cvt_pk_bf16_f32 v{vU}, v{vU}, v{vU+1}
v_cvt_pk_bf16_f32 v{vU+1}, v{vU+2}, v{vU+3}
buffer_store_dwordx2 {vr(vU,2)}, v{vOA}, {sr(SRDO,4)}, 0 offen sc1
s_mov_b32 s{sI}, s{sTASK2}
s_mov_b32 s{sTASK2}, 0
s_cmp_lg_u32 s{sI}, 0
s_cbranch_scc1 L_task
""")
stamp("end")
if stampnames and not args.probe:
    e(f"""
    s_waitcnt vmcnt(0) lgkmcnt(0)
    s_lshl_b32 s{sT}, s2, 4
    s_add_u32 s{sT}, s{sT}, s{sW}
    s_lshl_b32 s{sT}, s{sT}, 6
    s_add_u32 s{sT}, s{sT}, {DBG}
    v_mov_b32 v4, 0
    """)
    for i in range(len(stampnames)): e(f"v_writelane_b32 v4, s{sST+2*i}, {i}")
    e(f"""
    v_writelane_b32 v4, s{sSPIN}, 15
    v_lshlrev_b32 v5, 2, v1
    s_mov_b64 exec, 0xffff
    buffer_store_dword v4, v5, {sr(SRDW,4)}, s{sT} offen
    """)
if args.probe:
    pn,pwg,pw=args.probe.split(',')
    e(f"""
    s_cmp_eq_u32 s2, {pwg}
    s_cbranch_scc0 L_end
    s_cmp_eq_u32 s{sW}, {pw}
    s_cbranch_scc0 L_end
    s_waitcnt lgkmcnt(0)
    s_add_u32 s{sT}, s{sST}, 4000
    L_probe:
    s_memrealtime {sr(sT+2,2)}
    s_waitcnt lgkmcnt(0)
    s_sub_u32 s{sT+1}, s{sT+2}, s{sT}
    s_cmp_lt_i32 s{sT+1}, 0
    s_cbranch_scc1 L_probe
    """)
e("L_end:")
e("s_endpgm")
e("; COLD")
e(f"""
L_cretry:
s_add_u32 s{sSPIN}, s{sSPIN}, 1
s_cmp_ge_u32 s{sSPIN}, {SPINMAX}
s_cbranch_scc1 L_cdone
s_sleep 4
""")
cloads(bad)
e(f"""
s_branch L_cwait
L_overflow:
ds_write_b32 v{vZ}, v{vOne} offset:{FAIL}
s_branch L_ovback
L_again:
s_cmp_lt_u32 s{sW}, 8
s_cbranch_scc1 L_again1
ds_write_b128 v11, v[16:19] offset:{IMG}
s_waitcnt lgkmcnt(0)
L_again1:
""")
post(ECNT)
e(f"s_add_u32 s{sT+8}, s{sT+8}, 10")
spin(ECNT,f"s{sT+8}")
e(f"""
s_add_u32 s{sT+8}, s{sT+8}, 10
s_add_u32 s{sT+1}, s{sT+1}, {2*LVL}
s_add_u32 s{sT+5}, s{sT+5}, 24
s_mov_b32 s{sT+3}, 0
s_branch L_round
L_mark:
s_waitcnt vmcnt(0)
s_mov_b64 exec, vcc
v_mov_b32 v{vMin}, -1
buffer_store_dword v{vMin}, v{vSa}, {sr(SRDT,4)}, 0 offen sc1
s_mov_b64 exec, -1
s_branch L_markback
""")
out.append('.section .rodata,"a"')
out.append('.p2align 6')
out.append(f""".amdhsa_kernel {NAME}_kernel
  .amdhsa_next_free_vgpr 128
  .amdhsa_next_free_sgpr 102
  .amdhsa_accum_offset 128
  .amdhsa_group_segment_fixed_size 0
  .amdhsa_kernarg_size 80
  .amdhsa_user_sgpr_count 2
  .amdhsa_user_sgpr_kernarg_segment_ptr 1
  .amdhsa_system_sgpr_workgroup_id_x 1
.end_amdhsa_kernel""")
def offsets(lines):
    import subprocess,re,tempfile
    d=tempfile.mkdtemp()
    txt=[]
    for i,l in enumerate(lines):
        t=l.strip()
        if l.startswith('    ') and not t.startswith(';'): txt.append(f"Z_{i}:")
        txt.append(l)
    open(d+"/a.s","w").write("\n".join(txt)+"\n")
    subprocess.check_call(["clang","-x","assembler","-target","amdgcn-amd-amdhsa","-mcpu=gfx950","-c",d+"/a.s","-o",d+"/a.o"])
    o=subprocess.check_output(["llvm-readelf","-s",d+"/a.o"]).decode()
    return {int(m.group(2)):int(m.group(1),16) for m in re.finditer(r"^\s*\d+: ([0-9a-f]+) .* Z_(\d+)$",o,re.M)}
if 'nowarm' not in OPT:
    off=offsets(out); iw=out.index('    ; WARM'); ic=out.index('    ; COLD')
    idx=sorted(off); end=off[max(i for i in idx if i<ic)]
    nat=[i for i in idx if out[i].split()[0] in ('s_branch','s_endpgm') and i>iw+1]
    spots=[]; cur=args.wfirst
    while cur<end-64:
        cand=[i for i in nat if cur-200<=off[i]<=cur and i not in [x for x,_ in spots]]
        if cand: i=max(cand,key=lambda i:off[i]); spots.append((i,True))
        else:
            i=max([i for i in idx if off[i]<=cur],key=lambda i:off[i]); spots.append((i,False))
        cur=off[i]+args.wstep
    assert len(spots)<=10, len(spots)
    for k,(i,isnat) in reversed(list(enumerate(spots))):
        ins=[f"L_stub{k}:",f"    s_branch L_stub{k+5}" if k+5<len(spots) else "    s_branch L_common"]
        if not isnat: ins=[f"    s_branch L_skip{k}"]+ins+[f"L_skip{k}:"]
        out[i+1:i+1]=ins
    lad=[]
    for k in range(min(5,len(spots))): lad+=[f"    s_cmp_eq_u32 s{sW}, {[0,1,2,3,5][k]}",f"    s_cbranch_scc1 L_stub{k}"]
    out[iw+1:iw+1]=lad
if stampnames: out.insert(0,"; stamps: "+",".join(stampnames))
print("\n".join(out))
```

```python
import sys, struct, argparse
ap=argparse.ArgumentParser()
ap.add_argument('--stamps',default='')
ap.add_argument('--probe',default='')
ap.add_argument('--opt',default='')
ap.add_argument('--cap',type=int,default=3)
ap.add_argument('--nx0',type=int,default=3)
ap.add_argument('--ctrig',type=int,default=4)
ap.add_argument('--thr',type=int,default=-1)
ap.add_argument('--psleep',type=int,default=0)
ap.add_argument('--wstep',type=int,default=900)
ap.add_argument('--wfirst',type=int,default=1000)
args=ap.parse_args()
OPT=set(args.opt.split(','))
stampnames=[s for s in args.stamps.split(',') if s]
if args.probe: stampnames=[args.probe.split(',')[0]]
assert len(stampnames)<=10
NAME="gather_scatter__edge_featured_mpnn_egc__graph"
out=[]
def e(s):
    for l in s.strip('\n').split('\n'):
        l=l.strip()
        if not l: continue
        out.append(l if l.endswith(':') and not l.startswith(';') else '    '+l)
def f2u(x): return struct.unpack('<I',struct.pack('<f',x))[0]
def vr(a,n=1): return f"v{a}" if n==1 else f"v[{a}:{a+n-1}]"
def sr(a,n=1): return f"s{a}" if n==1 else f"s[{a}:{a+n-1}]"

N=10000; E=160000; NB=157; CAP=48; LSTR=CAP+1; EPW=625
LOG2E=1.4426950408889634
BCNT=0; NCNT=256; TIE=896; DONE=1152; FAIL=1156; W1RDY=1160; CSTI=1164; XRDY=1180; RDY2=1192; ECNT=1168; CCNT=1172; TRDY=1176; NON=1184
ORDER=1280; CVEC=1920; GE=2048; PAD=3648; LISTS=PAD+64; IMG=LISTS+160*LSTR*4
WS=IMG+8192; XS=WS+32768; NS=XS+40960; NSTR=272; LDS_TOTAL=NS+160*NSTR
assert GE+(CAP+1)*32<=PAD and WS%256==0 and XS%256==0 and LDS_TOTAL<=163840
TAB=1<<20; TABQ=N*128; FLG=7<<20; CELLS=8<<20; LVL=1<<20; DBG=200<<20
DUMMY=0x3fff
SPINMAX=0x8000
sW=3; pX,pE,pSRC,pDST,pU,pV,pG,pOUT=4,6,8,10,12,14,16,18
SRDX=20; SRDO=24; SRDW=28; SRDT=32; SRDG=36; NONCE=40
sQ=42; sB=43; sN0=44; sNEND=45; sT=46
sREM=56; sTASK2=57; sI=58; sSPIN=59
sM=60
sK40=72; sKE=74; sRDY=76; sT2=77; sR=78; sPART=79
sST=82
sA=4
def stamp(name):
    if name in stampnames:
        e(f"{'s_memtime' if 'cyc' in OPT else 's_memrealtime'} {sr(sST+2*stampnames.index(name),2)}")
nl=[0]
def spin(off,target,sleep=0,vt=4):
    nl[0]+=1
    e(f"L_spin{nl[0]}:")
    if sleep: e(f"s_sleep {sleep}")
    e(f"""
    ds_read_b32 v{vt}, v{vZ} offset:{off}
    s_waitcnt lgkmcnt(0)
    v_readfirstlane_b32 s{sT+9}, v{vt}
    s_cmp_ge_i32 s{sT+9}, {target}
    s_cbranch_scc0 L_spin{nl[0]}
    """)
def post(off):
    e(f"""
    s_mov_b64 exec, 1
    ds_add_u32 v{vZ}, v{vOne} offset:{off}
    s_mov_b64 exec, -1
    """)
vLA,vOA=2,3
vN,vM,vU,vP,vE,vC,vA,IA,IB,X,Y,xX,xY=8,12,16,20,24,28,32,36,44,52,68,84,100
vOrd,vOB,vNB,vZ,vOne,vJ,vPF=116,117,118,119,120,121,127

out.append(f"; @launch grid=(256,1,1) block=(1024,1,1) lds={LDS_TOTAL}")
out.append('.amdgcn_target "amdgcn-amd-amdhsa--gfx950"')
out.append('.text')
out.append(f'.globl {NAME}_kernel')
out.append('.p2align 8')
out.append(f'.type {NAME}_kernel,@function')
out.append(f'{NAME}_kernel:')
e(f"""
s_load_dwordx16 s[4:19], s[0:1], 0
s_load_dwordx2 {sr(SRDW,2)}, s[0:1], 72
s_cmp_ge_u32 s2, 256
s_cbranch_scc1 L_end
""")
for i in range(len(stampnames)): e(f"s_mov_b32 s{sST+2*i}, 0")
stamp("start")
e(f"""
v_lshrrev_b32 v2, 6, v0
v_and_b32 v1, 63, v0
v_readfirstlane_b32 s{sW}, v2
v_lshlrev_b32 v8, 2, v0
v_mov_b32 v12, {DUMMY}
v_cmp_le_u32 vcc, {PAD}, v8
s_and_b32 s{sQ}, s2, 3
s_lshr_b32 s{sB}, s2, 2
s_mul_i32 s{sN0}, s{sB}, {NB}
v_cndmask_b32 v9, 0, v12, vcc
ds_write_b32 v8, v9
v_mov_b32 v{vZ}, 0
v_mov_b32 v{vOne}, 1
s_mov_b32 s{SRDW+2}, 0x10000000
s_mov_b32 s{SRDW+3}, 0x20000
s_cmp_ge_u32 s{sW}, 6
s_cbranch_scc1 L_e0
v_lshrrev_b32 v11, 4, v1
s_cmp_ge_u32 s{sW}, 4
s_cbranch_scc1 L_l0
v_xor_b32 v4, v11, v1
v_and_b32 v4, 15, v4
v_lshlrev_b32 v4, 4, v4
v_lshl_add_u32 v4, v11, 8, v4
s_lshl_b32 s{sT}, s{sW}, 12
s_lshl_b32 s{sT+2}, s{sN0}, 8
s_add_u32 s{sT+2}, s{sT+2}, s{sT}
v_add_u32 v4, s{sT+2}, v4
v_xor_b32 v5, 64, v4
v_xor_b32 v6, 128, v4
v_xor_b32 v7, 192, v4
s_add_u32 m0, s{sT}, {XS}
s_mov_b32 s{SRDX+2}, {N*256}
s_mov_b32 s{SRDX+3}, 0x20000
s_waitcnt lgkmcnt(0)
s_mov_b32 s{SRDX}, s{pX}
s_mov_b32 s{SRDX+1}, s{pX+1}
s_barrier
""")
def xtile():
    for i in range(4): e(f"buffer_load_dwordx4 v{4+i}, {sr(SRDX,4)}, 0 offen offset:{1024*i} lds")
def xnext():
    for i in range(4): e(f"v_add_u32 v{4+i}, 16384, v{4+i}")
    e("s_add_u32 m0, m0, 16384")
xtile()
e("""
L_warm:
; WARM
s_branch L_common
""")
e(f"""
L_e0:
s_setprio 2
s_mul_i32 s{sT}, s2, {EPW*4}
s_sub_u32 s{sT}, s{sT}, {384*4}
v_add_u32 v3, s{sT}, v8
v_lshrrev_b32 v4, 1, v3
v_cmp_gt_u32 vcc, {384+EPW}, v0
s_mov_b64 {sr(sM+10,2)}, vcc
v_mov_b32 v16, 0
v_mov_b32 v17, 0
v_mov_b32 v18, 0
v_mov_b32 v19, 0xffffff
v_lshlrev_b32 v9, 4, v0
v_subrev_u32 v9, {384*16}, v9
v_min_u32 v10, 8176, v9
ds_write_b128 v10, v[16:19] offset:{IMG}
v_mov_b32 v13, v12
v_mov_b32 v14, v12
v_mov_b32 v15, v12
s_mov_b64 exec, vcc
s_waitcnt lgkmcnt(0)
global_load_dword v52, v3, {sr(pDST,2)}
global_load_dword v54, v3, {sr(pSRC,2)}
global_load_ushort v56, v4, {sr(pE,2)}
s_load_dwordx2 {sr(NONCE,2)}, {sr(SRDW,2)}, 0
s_mov_b64 exec, -1
s_barrier
""")
for i in range(3): e(f"ds_write_b128 v9, v[12:15] offset:{4096+10240*i}")
e(f"""
v_lshrrev_b32 v9, 2, v9
ds_write_b32 v9, v12 offset:{IMG-2560}
s_branch L_common
""")
def waddr():
    e("""
    v_add_u32 v13, 3072, v12
    v_add_u32 v14, 6144, v12
    v_add_u32 v15, 9216, v12
    """)
def wloop(tag,p1,wend):
    e(f"""
    L_w{tag}:
    s_mov_b32 m0, s{sT+4}
    s_add_u32 s{sT+4}, s{sT+4}, 4096
    """)
    for i in range(4): e(f"global_load_lds_dwordx4 v{12+i}, {sr(sT+6,2)} offset:{1024*i}")
    e(f"""
    s_add_u32 s{sT+6}, s{sT+6}, 16384
    s_addc_u32 s{sT+7}, s{sT+7}, 0
    s_cmp_eq_u32 s{sT+4}, {wend-8192}
    s_cselect_b64 {sr(sT+6,2)}, {sr(p1,2)}, {sr(sT+6,2)}
    s_cmp_lt_u32 s{sT+4}, {wend}
    s_cbranch_scc1 L_w{tag}
    """)
e(f"""
L_l0:
s_lshl_b32 s{sT}, s{sQ}, 6
v_lshrrev_b32 v9, 2, v1
v_and_b32 v12, 2, v11
v_xor_b32 v12, v12, v1
v_and_b32 v12, 3, v12
v_lshlrev_b32 v12, 4, v12
v_lshl_add_u32 v12, v9, 8, v12
v_add_u32 v12, s{sT}, v12
s_cmp_eq_u32 s{sW}, 4
s_cbranch_scc1 L_l4
s_waitcnt lgkmcnt(0)
s_barrier
s_branch L_warm
L_l4:
s_setprio 3
s_bfe_u32 s{sT+1}, s2, 0x40003
s_lshl_b32 s{sT+1}, s{sT+1}, 12
s_add_u32 s{sT+1}, s{sT+1}, s{sT}
v_lshlrev_b32 v10, 8, v1
v_add_u32 v10, s{sT+1}, v10
s_bitcmp1_b32 s2, 7
s_cselect_b32 s{sT+2}, 0x7fff, -1
v_and_b32 v10, s{sT+2}, v10
v_and_b32 v19, 7, v1
v_lshlrev_b32 v16, 3, v19
s_add_u32 s{sT+1}, s{sT}, 65536
v_add_u32 v16, s{sT+1}, v16
s_mov_b32 s{sT+4}, {WS}
s_waitcnt lgkmcnt(0)
s_bitcmp1_b32 s2, 6
s_cselect_b64 {sr(sT+6,2)}, {sr(pU,2)}, {sr(pV,2)}
s_bitcmp1_b32 s2, 7
s_cselect_b64 {sr(sT+6,2)}, {sr(sT+6,2)}, {sr(pG,2)}
s_mov_b64 exec, 0xffff
global_load_dword v{vPF}, v10, {sr(sT+6,2)}
s_mov_b64 exec, -1
global_load_dwordx2 v[16:17], v16, {sr(pG,2)}
s_add_u32 s{sT+6}, s{pG}, 32768
s_addc_u32 s{sT+7}, s{pG+1}, 0
s_barrier
""")
waddr()
if 'w1pf' in OPT: e("s_waitcnt vmcnt(0)")
else: spin(CSTI,8,vt=8,sleep=1)
wloop('a',pV,WS+16384)
if 'w1first' in OPT: post(CSTI)
e(f"""
s_mov_b32 s{sT}, {f2u(-LOG2E):#x}
s_waitcnt vmcnt(16)
v_lshlrev_b32 v8, 16, v16
v_and_b32 v9, 0xffff0000, v16
v_lshlrev_b32 v10, 16, v17
v_and_b32 v11, 0xffff0000, v17
""")
for i in range(4): e(f"v_mul_f32 v{8+i}, s{sT}, v{8+i}")
e(f"""
v_lshlrev_b32 v19, 4, v19
ds_write_b128 v19, v[8:11] offset:{CVEC}
s_waitcnt vmcnt(0)
ds_write_b32 v{vZ}, v{vOne} offset:{W1RDY}
s_setprio 0
""")
e(f"""
L_common:
s_mov_b32 s{SRDX}, s{pX}
s_mov_b32 s{SRDX+1}, s{pX+1}
s_mov_b32 s{SRDX+2}, {N*256}
s_mov_b32 s{SRDX+3}, 0x20000
s_add_u32 s{sNEND}, s{sN0}, {NB}
s_min_u32 s{sNEND}, s{sNEND}, {N}
s_mov_b32 s{SRDO}, s{pOUT}
s_mov_b32 s{SRDO+1}, s{pOUT+1}
s_lshl_b32 s{SRDO+2}, s{sNEND}, 8
s_mov_b32 s{SRDO+3}, 0x20000
s_mul_i32 s{sT+8}, s{sQ}, {TABQ}
s_add_u32 s{sT+8}, s{sT+8}, {TAB}
s_add_u32 s{SRDT}, s{SRDW}, s{sT+8}
s_addc_u32 s{SRDT+1}, s{SRDW+1}, 0
s_lshl_b32 s{SRDT+2}, s{sNEND}, 7
s_mov_b32 s{SRDT+3}, 0x20000
s_mov_b32 s{SRDG}, s{SRDT}
s_and_b32 s{SRDG+1}, s{SRDT+1}, 0xffff
s_or_b32 s{SRDG+1}, s{SRDG+1}, 0x800000
s_mov_b32 s{SRDG+2}, {0 if 'nogather' in OPT else N}
s_mov_b32 s{SRDG+3}, 0x20000
s_mov_b32 s{sK40}, {f2u(2.0**40):#x}
s_mov_b32 s{sKE}, {f2u(-LOG2E*2.0**-40):#x}
s_mov_b32 s{sRDY}, 0
s_mov_b32 s{sSPIN}, 0
s_and_b32 s{sT+8}, s{sW}, 3
s_lshr_b32 s{sT+9}, s{sW}, 2
s_sub_u32 s{sTASK2}, 19, s{sT+8}
s_sub_u32 s{sI}, 15, s{sT+8}
s_cmp_eq_u32 s{sT+9}, 0
s_cselect_b32 s{sTASK2}, s{sTASK2}, 0
s_cmp_eq_u32 s{sT+9}, 1
s_cselect_b32 s{sI}, s{sT+8}, s{sI}
s_sub_u32 s{sREM}, 7, s{sT+8}
s_cmp_eq_u32 s{sT+9}, 2
s_cselect_b32 s{sI}, s{sREM}, s{sI}
s_add_u32 s{sREM}, 8, s{sT+8}
s_cmp_eq_u32 s{sT+9}, 3
s_cselect_b32 s{sI}, s{sREM}, s{sI}
""")
def lane_consts():
    e(f"""
    v_bfe_u32 v20, v1, 2, 2
    v_lshrrev_b32 v21, 4, v1
    v_cmp_eq_u32 vcc, v20, v21
    v_and_b32 v22, 3, v1
    v_mov_b32 v23, 0x3f80
    v_cndmask_b32 v2, 4, v22, vcc
    """)
    fill=[f"v_and_b32 v{vJ}, 7, v1", f"v_lshlrev_b32 v{IA+1}, 4, v{vJ}", f"v_lshrrev_b32 v{vOrd}, 3, v1", f"v_lshlrev_b32 v{vOrd}, 2, v{vOrd}"]
    for i in range(4):
        e(f"v_cmp_eq_u32 vcc, {i}, v2")
        e(f"v_mov_b32 v{vE+i}, 0")
        e(fill[i])
        e(f"v_cndmask_b32 v{vA+i}, 0, v23, vcc")
    for r in (IA+3,IA+5,IA+7,IB+1,IB+3,IB+5,IB+7): e(f"v_mov_b32 v{r}, v{IA+1}")
lane_consts()
e(f"""
s_lshl_b32 s{sT+8}, s{sN0}, 8
s_lshl_b32 s{sT+9}, s{sQ}, 6
s_add_u32 s{sT+8}, s{sT+8}, s{sT+9}
v_lshlrev_b32 v{vOB}, 3, v{vJ}
v_add_u32 v{vOB}, s{sT+8}, v{vOB}
v_add_u32 v{vNB}, {NS}, v{IA+1}
s_cmp_ge_u32 s{sW}, 6
s_cbranch_scc1 L_e1
""")
WR=52; XO=8; ACC=[116-16,116-8]
WR=44+8
vW0,vW1=2,3
KG=2.0**40*(1-0.00135)
ACC=[24,32]; PK=[40,44]; vSa,vNa,vMin,vTm=48,49,50,51
e(f"""
L_t0:
s_and_b32 s{sT+8}, s{sW}, 3
v_bfe_u32 v20, v1, 2, 2
v_lshrrev_b32 v21, 4, v1
v_and_b32 v22, 3, v1
v_and_b32 v23, 15, v1
v_xor_b32 v122, v23, v21
v_lshlrev_b32 v122, 4, v122
v_lshl_add_u32 v122, v23, 8, v122
s_lshl_b32 s{sT}, s{sT+8}, 12
s_add_u32 s{sT}, s{sT}, {XS}
v_add_u32 v122, s{sT}, v122
v_lshl_add_u32 v{vW0}, v21, 3, v20
v_lshlrev_b32 v{vW0}, 6, v{vW0}
v_lshl_add_u32 v{vW0}, v22, 3, v{vW0}
v_and_b32 v20, 1, v21
v_lshl_add_u32 v{vW0}, v20, 5, v{vW0}
v_add_u32 v{vW0}, {WS}, v{vW0}
v_xor_b32 v{vW1}, 32, v{vW0}
v_lshlrev_b32 v21, 4, v21
s_lshl_b32 s{sT+1}, s{sW}, 4
s_add_u32 s{sT+1}, s{sT+1}, s{sN0}
s_lshl_b32 s{sT+1}, s{sT+1}, 7
v_lshl_add_u32 v{vSa}, v23, 7, v21
v_add_u32 v{vSa}, s{sT+1}, v{vSa}
v_lshlrev_b32 v123, 7, v23
v_lshl_add_u32 v123, v21, 9, v123
v_add_u32 v123, s{sT+1}, v123
s_mul_i32 s{sT+2}, s{sT+8}, {16*NSTR}
s_add_u32 s{sT+2}, s{sT+2}, {NS}
v_mul_u32_u24 v{vNa}, {NSTR}, v23
v_add3_u32 v{vNa}, v{vNa}, v21, s{sT+2}
s_mov_b32 s{sT+4}, {f2u(LOG2E):#x}
s_mov_b32 s{sT+5}, {f2u(KG):#x}
s_cmp_ge_u32 s{sW}, 4
s_cbranch_scc1 L_pu
""")
xnext()
spin(CSTI,9 if 'w1first' in OPT else 8,vt=vTm,sleep=1)
xtile()
e(f"""
s_cmp_ge_u32 s{sW}, 2
s_cbranch_scc1 L_two
""")
xnext()
e("s_nop 0")
xtile()
e("""
s_waitcnt vmcnt(8)
s_branch L_three
L_two:
s_waitcnt vmcnt(4)
L_three:
""")
def gemm(tag,moff,flag,need0,posts,perTileWait):
    e(f"""
    v_mov_b32 v4, v122
    v_xor_b32 v5, 64, v122
    v_xor_b32 v6, 128, v122
    v_xor_b32 v7, 192, v122
    s_mov_b32 s{sT+3}, s{sT+8}
    """)
    spin(flag,need0,sleep=1,vt=vTm)
    stamp("w"+tag)
    for f in range(2):
        for s_ in range(4):
            for m in range(2):
                for u in range(2):
                    e(f"ds_read_b64_tr_b16 {vr(WR+32*f+8*s_+4*m+2*u,2)}, v{vW0+f} offset:{moff+m*8192+s_*2048+u*256}")
    e(f"L_tile{tag}:")
    for s_ in range(4): e(f"ds_read_b128 {vr(XO+4*s_,4)}, v{4+s_}")
    for s_ in range(4): e(f"v_add_u32 v{4+s_}, 16384, v{4+s_}")
    for f in range(2):
        for s_ in range(4):
            if f==0: e(f"s_waitcnt lgkmcnt({3-s_})")
            for m in range(2):
                c="0" if s_==0 else vr(ACC[f]+4*m,4)
                e(f"v_mfma_f32_16x16x32_bf16 {vr(ACC[f]+4*m,4)}, {vr(WR+32*f+8*s_+4*m,4)}, {vr(XO+4*s_,4)}, {c}")
    posts()
    e(f"s_add_u32 s{sT+3}, s{sT+3}, 4")
    if perTileWait:
        e(f"""
        s_cmp_ge_u32 s{sT+3}, 10
        s_cbranch_scc1 L_tiles{tag}
        s_waitcnt vmcnt(6)
        s_cmp_lt_u32 s{sT+3}, 6
        s_cbranch_scc1 L_tile{tag}
        s_waitcnt vmcnt(4)
        s_cmp_ge_u32 s{sT+3}, 8
        s_cbranch_scc1 L_xdone
        s_waitcnt vmcnt(2)
        L_xdone:
        """)
        if not 0<=args.thr<=2:
            post(XRDY)
            stamp("x")
        e(f"s_branch L_tile{tag}")
        e(f"L_tiles{tag}:")
    else:
        e(f"""
        s_cmp_lt_u32 s{sT+3}, 10
        s_cbranch_scc1 L_tile{tag}
        """)
def post_qh():
    for f in range(2):
        a=ACC[f]; p=PK[f]
        for i in range(4): e(f"v_mul_f32 v{a+i}, s{sT+4}, v{a+i}")
        for i in range(4): e(f"v_exp_f32 v{a+i}, v{a+i}")
        for i in range(4): e(f"v_mul_f32 v{a+4+i}, s{sT+5}, v{a+4+i}")
        for i in range(4): e(f"v_mul_f32 v{a+4+i}, v{a+i}, v{a+4+i}")
        for i in range(4): e(f"v_cvt_pk_bf16_f32 v{p+i}, v{a+i}, v{a+4+i}")
        if args.thr>=0:
            e(f"""
            s_cmp_lt_u32 s{sT+3}, 4
            s_cbranch_scc1 L_nothr{f}
            s_waitcnt vmcnt({args.thr})
            """)
            if f==0 and args.thr<=2:
                e(f"""
                s_cmp_ge_u32 s{sT+3}, 8
                s_cbranch_scc1 L_nothr{f}
                """)
                post(XRDY); stamp("x")
            e(f"L_nothr{f}:")
        e(f"buffer_store_dwordx4 {vr(p,4)}, v{vSa}, {sr(SRDT,4)}, 0 offen offset:{64*f} sc1")
    a0,a1=ACC
    e(f"""
    v_min3_f32 v{vMin}, v{a0}, v{a0+1}, v{a0+2}
    v_min3_f32 v{vMin}, v{vMin}, v{a0+3}, v{a1}
    v_min3_f32 v{vMin}, v{vMin}, v{a1+1}, v{a1+2}
    v_min_f32 v{vMin}, v{vMin}, v{a1+3}
    v_cmp_gt_f32 vcc, {f2u(2.0**-80):#x}, v{vMin}
    s_cbranch_vccnz L_mark
    L_markback:
    v_add_u32 v{vSa}, 8192, v{vSa}
    """)
gemm('1',0,W1RDY,1,post_qh,True)
stamp("qh")
spin(ECNT,10,vt=vTm)
e(f"""
ds_read_b64 v[8:9], v{vZ} offset:{NON}
ds_read_b64 v[10:11], v{vZ} offset:{NON}
v_lshlrev_b32 v12, 4, v1
s_lshl_b32 s{sT}, s{sQ}, 6
s_add_u32 s{sT}, s{sT}, s{sB}
s_lshl_b32 s{sT}, s{sT}, 6
s_add_u32 s{sT}, s{sT}, {FLG}
s_mov_b64 exec, 1
s_waitcnt vmcnt(0)
ds_add_rtn_u32 v13, v{vZ}, v{vOne} offset:{DONE}
""")
stamp("drain")
e(f"""
s_waitcnt lgkmcnt(0)
v_cmp_eq_u32 vcc, 3, v13
s_cbranch_vccz L_nosig
s_mov_b64 exec, 15
buffer_store_dwordx4 v[8:11], v12, {sr(SRDW,4)}, s{sT} offen sc1
""")
stamp("sig")
e(f"""
s_mov_b64 exec, -1
s_setprio 3
v_lshlrev_b32 v12, 6, v1
s_lshl_b32 s{sT}, s{sQ}, 12
s_add_u32 s{sT}, s{sT}, {FLG}
""")
if 'nopf' not in OPT: e(f"buffer_load_dword v{vPF}, v123, {sr(SRDT,4)}, 0 offen sc1")
if 'pollwait' in OPT: e("s_waitcnt vmcnt(0)")
e(f"""
L_poll:
{f"s_sleep {args.psleep}" if args.psleep else ""}
buffer_load_dwordx2 v[10:11], v12, {sr(SRDW,4)}, s{sT} offen sc1
s_add_u32 s{sSPIN}, s{sSPIN}, 1
s_cmp_ge_u32 s{sSPIN}, {SPINMAX}
s_cbranch_scc1 L_pollok
s_waitcnt vmcnt(0)
v_cmp_ne_u64 vcc, v[8:9], v[10:11]
s_cbranch_vccnz L_poll
L_pollok:
ds_write_b32 v{vZ}, v{vOne} offset:{TRDY}
s_setprio 0
""")
stamp("trdy")
e("s_branch L_tdone")
e("L_nosig:")
e("s_mov_b64 exec, -1")
if 'nopf' not in OPT: e(f"buffer_load_dword v{vPF}, v123, {sr(SRDT,4)}, 0 offen sc1")
e("s_branch L_tdone")
e(f"""
L_pu:
s_cmp_eq_u32 s{sW}, 5
s_cbranch_scc0 L_now2
s_mov_b64 {sr(sT+6,2)}, {sr(pG,2)}
s_mov_b32 s{sT+4}, {WS+16384}
""")
waddr()
spin(W1RDY,1,sleep=1,vt=vTm)
wloop('b',pU,WS+32768)
e("s_waitcnt vmcnt(0)")
post(XRDY)
stamp("load")
e("L_now2:")
e(f"s_mov_b32 s{sT+4}, {f2u(-LOG2E):#x}")
def post_pu():
    for f in range(2):
        a=ACC[f]
        for i in range(4): e(f"v_mul_f32 v{a+i}, s{sT+4}, v{a+i}")
        if f==0: e("s_nop 1")
        e(f"ds_write_b128 v{vNa}, {vr(a,4)} offset:{64*f}")
        e(f"ds_write_b128 v{vNa}, {vr(a+4,4)} offset:{64*f+128}")
    e(f"v_add_u32 v{vNa}, {64*NSTR}, v{vNa}")
gemm('2',16384,XRDY,5,post_pu,False)
e('s_waitcnt lgkmcnt(0)')
post(RDY2)
stamp("pu")
e("L_tdone:")
lane_consts()
e("s_branch L_join")
e(f"""
L_e1:
s_waitcnt lgkmcnt(0)
s_add_u32 s{NONCE}, s{NONCE}, 0x7f4a7c15
s_addc_u32 s{NONCE+1}, s{NONCE+1}, 0x9e3779b9
s_lshr_b32 s{sT2}, s{NONCE}, 14
s_and_b32 s{sT2}, s{sT2}, 0xc000
v_mul_u32_u24 v22, 7, v22
v_lshrrev_b32 v22, v22, s{NONCE}
v_lshlrev_b32 v22, 25, v22
s_mov_b32 s{sR}, 0
v_mov_b32 v8, s{NONCE}
v_mov_b32 v9, s{NONCE+1}
ds_write_b64 v{vZ}, v[8:9] offset:{NON}
s_mov_b32 s{sT+8}, 10
s_movk_i32 s{sT}, 683
v_subrev_u32 v23, 512, v0
v_bfe_u32 v8, v23, 2, 6
v_and_b32 v10, 3, v23
v_lshlrev_b32 v10, 4, v10
v_lshl_add_u32 v11, v8, 7, v10
v_lshl_add_u32 v21, v8, 14, v10
v_lshlrev_b32 v62, 2, v8
v_lshlrev_b32 v63, 2, v1
s_bfe_u32 s{sT+4}, s{sW}, 0x10002
s_lshl_b32 s{sT+5}, s{sT+4}, 6
v_add_u32 v11, s{sT+5}, v11
s_lshl_b32 s{sT+1}, s{sT+4}, 20
s_lshl_b32 s{sT+2}, s2, 6
s_add_u32 s{sT+1}, s{sT+1}, s{sT+2}
s_add_u32 s{sT+1}, s{sT+1}, {CELLS}
s_mul_i32 s{sT+5}, s{sT+4}, 12
s_sub_u32 s{sT+3}, s{sT+4}, 1
v_or_b32 v7, 0x1000000, v22
v_mov_b32 v60, -1
s_mov_b64 exec, {sr(sM+10,2)}
s_waitcnt vmcnt(2)
""")
stamp("edge")
e(f"""
v_mul_u32_u24 v58, 6679, v52
v_lshrrev_b32 v58, 20, v58
v_lshlrev_b32 v60, 2, v58
ds_add_rtn_u32 v60, v60, v{vOne} offset:{BCNT}
v_mul_u32_u24 v8, {NB}, v58
v_sub_u32 v52, v52, v8
v_lshlrev_b32 v58, 7, v58
s_mov_b64 exec, -1
s_waitcnt lgkmcnt(0)
L_round:
v_subrev_u32 v8, s{sR}, v60
v_cmp_gt_u32 vcc, 24, v8
v_mul_u32_u24 v9, s{sT}, v8
v_lshrrev_b32 v9, 11, v9
v_add_u32 v10, v8, v9
v_lshl_add_u32 v10, v10, 2, v58
v_mad_u32_u24 v9, v9, 13, v8
v_add_u32 v9, v9, v58
s_mov_b64 exec, vcc
ds_write_b8 v9, v52 offset:{IMG+12}
s_waitcnt vmcnt(0)
v_lshl_or_b32 v8, v56, 16, v54
ds_write_b32 v10, v8 offset:{IMG}
s_mov_b64 exec, 1
s_waitcnt lgkmcnt(0)
ds_add_u32 v{vZ}, v{vOne} offset:{ECNT}
s_mov_b64 exec, -1
""")
spin(ECNT,f"s{sT+8}")
stamp("img")
e(f"""
ds_read_b32 v5, v63 offset:{BCNT}
s_cmp_lt_u32 s{sW}, 8
s_cbranch_scc1 L_nocopy
ds_read_b32 v6, v62 offset:{BCNT}
ds_read_b128 v[12:15], v11 offset:{IMG}
s_waitcnt lgkmcnt(1)
v_subrev_u32 v6, s{sT+5}, v6
v_cmp_lt_i32 vcc, 12, v6
v_cmp_lt_i32 {sr(sM,2)}, s{sT+3}, v6
s_waitcnt lgkmcnt(0)
v_cndmask_b32 v20, v22, v7, vcc
v_xor_b32 v12, s{sT2}, v12
v_xor_b32 v13, s{sT2}, v13
v_xor_b32 v14, s{sT2}, v14
v_or_b32 v15, v20, v15
s_mov_b64 exec, {sr(sM,2)}
buffer_store_dwordx4 v[12:15], v21, {sr(SRDW,4)}, s{sT+1} offen sc1
s_mov_b64 exec, 1
ds_add_u32 v{vZ}, v{vOne} offset:{CSTI}
s_mov_b64 exec, -1
L_nocopy:
s_add_u32 s{sR}, s{sR}, 24
s_waitcnt lgkmcnt(0)
v_cmp_lt_u32 vcc, s{sR}, v5
s_cbranch_vccnz L_again
s_cmp_ge_u32 s{sW}, 8
s_cbranch_scc1 L_c0
s_setprio 0
s_branch L_t0
""")
D=52; Cc=68; sO=sT+1; mk=sA; cur=sA+4; bad=sA+8; NJ=2
def cloads(m):
    for j in range(NJ):
        e(f"s_mov_b64 exec, {sr(m+2*j,2)}")
        e(f"buffer_load_dwordx4 {vr(D+4*j,4)}, v23, {sr(SRDW,4)}, s{sO+j} offen sc1")
    e("s_mov_b64 exec, -1")
e(f"""
L_c0:
v_lshlrev_b32 v23, 4, v23
v_lshlrev_b32 v21, 2, v{vJ}
v_mov_b32 v20, 4
v_mov_b32 v6, 0xff
v_mov_b32 v7, 0xc000
s_lshl_b32 s{sO}, s{sB}, 14
s_add_u32 s{sO}, s{sO}, {CELLS}
s_add_u32 s{sO+1}, s{sO}, 8192
""")
for j in range(NJ): e(f"s_mov_b64 {sr(mk+2*j,2)}, -1")
e("s_waitcnt vmcnt(0)")
stamp("cst")
spin(XRDY,args.ctrig,sleep=1) if args.ctrig>0 else spin(W1RDY,1,sleep=1)
cloads(mk)
e("L_cwait:")
for j in range(NJ):
    d=D+4*j; c=Cc+4*j
    e(f"""
    s_waitcnt vmcnt({NJ-1-j})
    v_xor_b32 v{c}, s{sT2}, v{d}
    v_xor_b32 v{c+1}, s{sT2}, v{d+1}
    v_xor_b32 v{c+2}, s{sT2}, v{d+2}
    v_xor_b32 v{c+3}, v22, v{d+3}
    v_or3_b32 v8, v{c}, v{c+1}, v{c+2}
    v_lshrrev_b32 v9, 25, v{c+3}
    v_and_or_b32 v8, v8, v7, v9
    v_cmp_ne_u32 vcc, 0, v8
    s_and_b64 {sr(bad+2*j,2)}, vcc, {sr(mk+2*j,2)}
    """)
e(f"s_or_b64 {sr(sM,2)}, {sr(bad,2)}, {sr(bad+2,2)}")
e("s_cbranch_scc1 L_cretry")
stamp("cell")
for j in range(NJ):
    e(f"""
    v_cmp_lt_u32 vcc, 0xffffff, v{Cc+4*j+3}
    s_mov_b64 {sr(cur+2*j,2)}, {sr(mk+2*j,2)}
    s_add_u32 s{sO+j}, s{sO+j}, {LVL}
    s_and_b64 {sr(mk+2*j,2)}, {sr(mk+2*j,2)}, vcc
    """)
e(f"""
s_or_b64 {sr(sM,2)}, {sr(mk,2)}, {sr(mk+2,2)}
s_cselect_b32 s{sR}, 1, 0
s_cbranch_scc0 L_cnomore
""")
cloads(mk)
e("L_cnomore:")
for half in range(1):
    recs=[(j,i) for j in (2*half,2*half+1) for i in range(3)]
    for k,(j,i) in enumerate(recs):
        if i==0: e(f"s_mov_b64 exec, {sr(cur+2*j,2)}")
        e(f"v_cmp_ne_u32_sdwa {sr(sM+2*k,2)}, v{Cc+4*j+3}, v6 src0_sel:BYTE_{i} src1_sel:DWORD")
        e(f"v_lshlrev_b32_sdwa v{8+k}, 2, v{Cc+4*j+3} dst_sel:DWORD dst_unused:UNUSED_PAD src0_sel:DWORD src1_sel:BYTE_{i}")
    for k,(j,i) in enumerate(recs):
        e(f"s_mov_b64 exec, {sr(sM+2*k,2)}")
        e(f"ds_add_rtn_u32 v{14+k}, v{8+k}, v20 offset:{NCNT}")
    for k,(j,i) in enumerate(recs):
        e(f"""
        s_mov_b64 exec, {sr(sM+2*k,2)}
        s_waitcnt lgkmcnt({5+k})
        v_min_u32 v{14+k}, {4*(CAP-1)}, v{14+k}
        v_mad_u32_u24 v{8+k}, v{8+k}, {LSTR}, v{14+k}
        v_lshl_add_u32 v{14+k}, v{14+k}, 3, v21
        ds_write_b32 v{8+k}, v{Cc+4*j+i} offset:{LISTS}
        ds_add_u32 v{14+k}, v20 offset:{GE}
        """)
e(f"""
s_mov_b64 exec, -1
s_cmp_eq_u32 s{sR}, 1
s_cbranch_scc1 L_cwait
L_cdone:
s_waitcnt lgkmcnt(0)
""")
post(CCNT)
stamp("ins")
e(f"""
s_cmp_ge_u32 s{sW}, 11
s_cbranch_scc1 L_join0
v_lshrrev_b32 v23, 4, v23
v_cmp_gt_u32 vcc, 160, v23
v_lshlrev_b32 v8, 2, v23
""")
spin(CCNT,8)
e(f"""
s_mov_b64 exec, vcc
ds_read_b32 v9, v8 offset:{NCNT}
s_waitcnt lgkmcnt(0)
v_cmp_lt_u32 vcc, {4*CAP}, v9
v_min_u32 v9, {4*CAP}, v9
ds_add_rtn_u32 v10, v9, v20 offset:{TIE}
v_lshlrev_b32 v8, 3, v9
ds_read_b128 v[12:15], v8 offset:{GE}
ds_read_b128 v[16:19], v8 offset:{GE+16}
v_lshl_or_b32 v11, v9, 14, v23
s_cbranch_vccnz L_overflow
L_ovback:
s_waitcnt lgkmcnt(1)
v_add3_u32 v10, v10, v12, v13
v_add3_u32 v10, v10, v14, v15
s_waitcnt lgkmcnt(0)
v_add3_u32 v10, v10, v16, v17
v_add3_u32 v10, v10, v18, v19
v_min_u32 v10, 636, v10
ds_write_b32 v10, v11 offset:{ORDER}
s_mov_b64 exec, 1
s_waitcnt lgkmcnt(0)
ds_add_u32 v{vZ}, v{vOne} offset:{RDY2}
s_mov_b64 exec, -1
s_xor_b32 s{sT}, s{sW}, 8
s_or_b32 s{sT}, s{sT}, s2
s_cbranch_scc1 L_join0
s_mov_b64 exec, 1
v_mov_b32 v8, s{NONCE}
v_mov_b32 v9, s{NONCE+1}
buffer_store_dwordx2 v[8:9], v{vZ}, {sr(SRDW,4)}, 0 offen sc1
s_mov_b64 exec, -1
L_join0:
s_setprio 0
L_join:
""")
spin(RDY2,7,sleep=1)
stamp("B2")
e(f"ds_read_b128 {vr(vC,4)}, v{IA+1} offset:{CVEC}")
def idxreads(I,off):
    for k in (3,2,1,0): e(f"ds_read_u16 v{I+2*k}, v{vLA} offset:{off+4*k}")
def ereads(off):
    for k in range(4): e(f"ds_read_u16_d16_hi v{vE+k}, v{vLA} offset:{off+4*k+2}")
def apk(x):
    for k in (3,2,1,0):
        sel = "op_sel_hi:[0,1,1]" if k%2==0 else "op_sel:[1,0,0] op_sel_hi:[1,1,1]"
        for h in range(2):
            e(f"v_pk_fma_f32 {vr(x+4*k+2*h,2)}, {vr(vE+(k&2),2)}, {vr(vC+2*h,2)}, {vr(vP+2*h,2)} {sel}")
def exps(x,k):
    if 'novalu' in OPT: return
    for i in range(4): e(f"v_exp_f32 v{x+4*k+i}, v{x+4*k+i}")
def gath1(B,I,k): e(f"buffer_load_dwordx4 {vr(B+4*k,4)}, {vr(I+2*k,2)}, {sr(SRDG,4)}, 0 idxen offen sc1")
def gath(B,I):
    for k in (3,2,1,0): gath1(B,I,k)
def mext(B,x,k): e(f"v_mfma_f32_16x16x32_bf16 {vr(x+4*k,4)}, {vr(vA,4)}, {vr(B+4*k,4)}, {vr(x+4*k,4)}")
def frac(B,x,k):
    if 'novalu' in OPT: e("s_nop 7"); return
    for h in range(2): e(f"v_pk_mul_f32 {vr(vU+2*h,2)}, {vr(B+4*k+2*h,2)}, {vr(vM+2*h,2)}")
    for h in range(2):
        e(f"v_pk_fma_f32 {vr(vN+2*h,2)}, {vr(vN+2*h,2)}, {vr(x+4*k+2*h,2)}, {vr(vU+2*h,2)}")
        e(f"v_pk_mul_f32 {vr(vM+2*h,2)}, {vr(vM+2*h,2)}, {vr(x+4*k+2*h,2)}")
def ladder(lab):
    for r in (1,2,3):
        e(f"s_cmp_eq_u32 s{sPART}, {r}")
        e(f"s_cbranch_scc1 {lab}{r-1}")
def gfirst(tag):
    ladder(f"L_g{tag}")
    for k in (3,2,1,0):
        e(f"L_g{tag}{k}:"); gath1(X,IA,k)
    gath(Y,IB); idxreads(IA,0)
e(f"""
L_task:
s_lshl_b32 s{sT}, s{sI}, 5
v_add_u32 v4, s{sT}, v{vOrd}
ds_read_b32 v4, v4 offset:{ORDER}
v_mov_b32 v{vM}, 1.0
v_mov_b32 v{vM+1}, 1.0
v_mov_b32 v{vM+2}, 1.0
v_mov_b32 v{vM+3}, 1.0
s_movk_i32 s{sT+2}, {NSTR}
s_waitcnt lgkmcnt(0)
v_readfirstlane_b32 s{sT}, v4
v_and_b32 v4, 0xff, v4
v_mul_u32_u24 v{vLA}, {4*LSTR}, v4
v_mad_u32_u24 v5, v4, s{sT+2}, v{vNB}
s_lshr_b32 s{sT}, s{sT}, 16
s_add_u32 s{sREM}, s{sT}, 3
s_lshr_b32 s{sREM}, s{sREM}, 2
s_lshl_b32 s{sT+1}, s{sREM}, 4
s_add_u32 s{sT+1}, s{sT+1}, {LISTS-48}
v_add_u32 v{vLA}, s{sT+1}, v{vLA}
""")
idxreads(IA,32); idxreads(IB,16)
e(f"ds_read_b32 v7, v{vZ} offset:{TRDY}")
e(f"ds_read_b128 {vr(vP,4)}, v5")
ereads(32)
e(f"""
ds_read_b128 {vr(vN,4)}, v5 offset:128
v_lshl_add_u32 v{vOA}, v4, 8, v{vOB}
s_and_b32 s{sPART}, s{sT}, 3
s_waitcnt lgkmcnt(6)
v_readfirstlane_b32 s{sRDY}, v7
s_cmp_eq_u32 s{sRDY}, 0
s_cbranch_scc1 L_notyet
L_rdy:
""")
stamp("go")
gfirst('a')
e("s_waitcnt lgkmcnt(4)")
e("s_branch L_astage")
e("L_notyet:")
e("s_waitcnt lgkmcnt(0)")
e("L_astage:")
apk(xX)
ereads(16)
for h in range(2): e(f"v_pk_mul_f32 {vr(vN+2*h,2)}, {vr(vN+2*h,2)}, {sr(sK40,2)} op_sel_hi:[1,0]")
for k in (3,2,1,0): exps(xX,k)
e("s_waitcnt lgkmcnt(0)")
apk(xY)
ereads(0)
e(f"""
s_cmp_eq_u32 s{sRDY}, 0
s_cbranch_scc1 L_late
s_waitcnt vmcnt(4)
""")
for k in (3,2,1,0): mext(X,xX,k); exps(xY,k)
e(f"""
L_enter:
s_cmp_eq_u32 s{sREM}, 0
s_cbranch_scc1 L_fin
""")
ladder("L_fx")
def half(tag,B,x,B2,x2,tag2,last):
    for k in (3,2,1,0):
        e(f"L_f{tag}{k}:")
        frac(B,x,k)
    e(f"""
    s_sub_u32 s{sREM}, s{sREM}, 1
    s_cmp_le_u32 s{sREM}, 1
    s_cbranch_scc1 L_tail{tag}
    s_waitcnt lgkmcnt(0)
    """)
    gath(B,IA)
    apk(x)
    e(f"v_subrev_u32 v{vLA}, 16, v{vLA}")
    idxreads(IA,0); ereads(0)
    e("s_waitcnt vmcnt(4)")
    for k in (3,2,1,0):
        mext(B2,x2,k); exps(x,k)
    if last: e(f"s_branch L_f{tag2}3")
def tail(tag,B2,x2,tag2):
    e(f"""
    L_tail{tag}:
    s_cmp_eq_u32 s{sREM}, 0
    s_cbranch_scc1 L_fin
    s_waitcnt vmcnt(0)
    """)
    for k in (3,2,1,0): mext(B2,x2,k)
    e("s_nop 1")
    e(f"s_branch L_f{tag2}3")
half('x',X,xX,Y,xY,'y',False)
half('y',Y,xY,X,xX,'x',True)
tail('x',Y,xY,'y')
tail('y',X,xX,'x')
e("L_late:")
for k in (3,2,1,0): exps(xY,k)
spin(TRDY,1,vt=7)
stamp("go")
gfirst('b')
e("s_waitcnt vmcnt(4)")
for k in (3,2,1,0): mext(X,xX,k)
e("s_nop 1")
e("s_branch L_enter")
e("L_fin:")
e("s_waitcnt lgkmcnt(0)")
for i in range(4): e(f"v_rcp_f32 v{vM+i}, v{vM+i}")
for h in range(2): e(f"v_pk_mul_f32 {vr(vN+2*h,2)}, {vr(vN+2*h,2)}, {vr(vM+2*h,2)}")
for h in range(2): e(f"v_pk_mul_f32 {vr(vM+2*h,2)}, {vr(vN+2*h,2)}, {sr(sKE,2)} op_sel_hi:[1,0]")
for i in range(4): e(f"v_exp_f32 v{vM+i}, v{vM+i}")
for h in range(2): e(f"v_pk_fma_f32 {vr(vM+2*h,2)}, {vr(vM+2*h,2)}, {sr(sK40,2)}, {sr(sK40,2)} op_sel_hi:[1,0,0]")
for i in range(4): e(f"v_rcp_f32 v{vM+i}, v{vM+i}")
for h in range(2): e(f"v_pk_mul_f32 {vr(vU+2*h,2)}, {vr(vN+2*h,2)}, {vr(vM+2*h,2)}")
e(f"""
v_cvt_pk_bf16_f32 v{vU}, v{vU}, v{vU+1}
v_cvt_pk_bf16_f32 v{vU+1}, v{vU+2}, v{vU+3}
buffer_store_dwordx2 {vr(vU,2)}, v{vOA}, {sr(SRDO,4)}, 0 offen sc1
s_mov_b32 s{sI}, s{sTASK2}
s_mov_b32 s{sTASK2}, 0
s_cmp_lg_u32 s{sI}, 0
s_cbranch_scc1 L_task
""")
stamp("end")
if stampnames and not args.probe:
    e(f"""
    s_waitcnt vmcnt(0) lgkmcnt(0)
    s_lshl_b32 s{sT}, s2, 4
    s_add_u32 s{sT}, s{sT}, s{sW}
    s_lshl_b32 s{sT}, s{sT}, 6
    s_add_u32 s{sT}, s{sT}, {DBG}
    v_mov_b32 v4, 0
    """)
    for i in range(len(stampnames)): e(f"v_writelane_b32 v4, s{sST+2*i}, {i}")
    e(f"""
    v_writelane_b32 v4, s{sSPIN}, 15
    v_lshlrev_b32 v5, 2, v1
    s_mov_b64 exec, 0xffff
    buffer_store_dword v4, v5, {sr(SRDW,4)}, s{sT} offen
    """)
if args.probe:
    pn,pwg,pw=args.probe.split(',')
    e(f"""
    s_cmp_eq_u32 s2, {pwg}
    s_cbranch_scc0 L_end
    s_cmp_eq_u32 s{sW}, {pw}
    s_cbranch_scc0 L_end
    s_waitcnt lgkmcnt(0)
    s_add_u32 s{sT}, s{sST}, 4000
    L_probe:
    s_memrealtime {sr(sT+2,2)}
    s_waitcnt lgkmcnt(0)
    s_sub_u32 s{sT+1}, s{sT+2}, s{sT}
    s_cmp_lt_i32 s{sT+1}, 0
    s_cbranch_scc1 L_probe
    """)
e("L_end:")
e("s_endpgm")
e("; COLD")
e(f"""
L_cretry:
s_add_u32 s{sSPIN}, s{sSPIN}, 1
s_cmp_ge_u32 s{sSPIN}, {SPINMAX}
s_cbranch_scc1 L_cdone
s_sleep 4
""")
cloads(bad)
e(f"""
s_branch L_cwait
L_overflow:
ds_write_b32 v{vZ}, v{vOne} offset:{FAIL}
s_branch L_ovback
L_again:
s_cmp_lt_u32 s{sW}, 8
s_cbranch_scc1 L_again1
ds_write_b128 v11, v[16:19] offset:{IMG}
s_waitcnt lgkmcnt(0)
L_again1:
""")
post(ECNT)
e(f"s_add_u32 s{sT+8}, s{sT+8}, 10")
spin(ECNT,f"s{sT+8}")
e(f"""
s_add_u32 s{sT+8}, s{sT+8}, 10
s_add_u32 s{sT+1}, s{sT+1}, {2*LVL}
s_add_u32 s{sT+5}, s{sT+5}, 24
s_mov_b32 s{sT+3}, 0
s_branch L_round
L_mark:
s_waitcnt vmcnt(0)
s_mov_b64 exec, vcc
v_mov_b32 v{vMin}, -1
buffer_store_dword v{vMin}, v{vSa}, {sr(SRDT,4)}, 0 offen sc1
s_mov_b64 exec, -1
s_branch L_markback
""")
out.append('.section .rodata,"a"')
out.append('.p2align 6')
out.append(f""".amdhsa_kernel {NAME}_kernel
  .amdhsa_next_free_vgpr 128
  .amdhsa_next_free_sgpr 102
  .amdhsa_accum_offset 128
  .amdhsa_group_segment_fixed_size 0
  .amdhsa_kernarg_size 80
  .amdhsa_user_sgpr_count 2
  .amdhsa_user_sgpr_kernarg_segment_ptr 1
  .amdhsa_system_sgpr_workgroup_id_x 1
.end_amdhsa_kernel""")
def offsets(lines):
    import subprocess,re,tempfile
    d=tempfile.mkdtemp()
    txt=[]
    for i,l in enumerate(lines):
        t=l.strip()
        if l.startswith('    ') and not t.startswith(';'): txt.append(f"Z_{i}:")
        txt.append(l)
    open(d+"/a.s","w").write("\n".join(txt)+"\n")
    subprocess.check_call(["clang","-x","assembler","-target","amdgcn-amd-amdhsa","-mcpu=gfx950","-c",d+"/a.s","-o",d+"/a.o"])
    o=subprocess.check_output(["llvm-readelf","-s",d+"/a.o"]).decode()
    return {int(m.group(2)):int(m.group(1),16) for m in re.finditer(r"^\s*\d+: ([0-9a-f]+) .* Z_(\d+)$",o,re.M)}
if 'nowarm' not in OPT:
    off=offsets(out); iw=out.index('    ; WARM'); ic=out.index('    ; COLD')
    idx=sorted(off); end=off[max(i for i in idx if i<ic)]
    nat=[i for i in idx if out[i].split()[0] in ('s_branch','s_endpgm') and i>iw+1]
    spots=[]; cur=args.wfirst
    while cur<end-64:
        cand=[i for i in nat if cur-200<=off[i]<=cur and i not in [x for x,_ in spots]]
        if cand: i=max(cand,key=lambda i:off[i]); spots.append((i,True))
        else:
            i=max([i for i in idx if off[i]<=cur],key=lambda i:off[i]); spots.append((i,False))
        cur=off[i]+args.wstep
    assert len(spots)<=10, len(spots)
    for k,(i,isnat) in reversed(list(enumerate(spots))):
        ins=[f"L_stub{k}:",f"    s_branch L_stub{k+5}" if k+5<len(spots) else "    s_branch L_common"]
        if not isnat: ins=[f"    s_branch L_skip{k}"]+ins+[f"L_skip{k}:"]
        out[i+1:i+1]=ins
    lad=[]
    for k in range(min(5,len(spots))): lad+=[f"    s_cmp_eq_u32 s{sW}, {[0,1,2,3,5][k]}",f"    s_cbranch_scc1 L_stub{k}"]
    out[iw+1:iw+1]=lad
if stampnames: out.insert(0,"; stamps: "+",".join(stampnames))
print("\n".join(out))
```

```python
import sys, struct, argparse
ap=argparse.ArgumentParser()
ap.add_argument('--stamps',default='')
ap.add_argument('--probe',default='')
ap.add_argument('--opt',default='')
ap.add_argument('--cap',type=int,default=3)
ap.add_argument('--nx0',type=int,default=3)
ap.add_argument('--ctrig',type=int,default=4)
ap.add_argument('--thr',type=int,default=-1)
ap.add_argument('--psleep',type=int,default=0)
ap.add_argument('--prio',default='')
ap.add_argument('--rows',default='2301')
ap.add_argument('--wstep',type=int,default=900)
ap.add_argument('--wfirst',type=int,default=1000)
args=ap.parse_args()
OPT=set(args.opt.split(','))
stampnames=[s for s in args.stamps.split(',') if s]
if args.probe: stampnames=[args.probe.split(',')[0]]
assert len(stampnames)<=10
NAME="gather_scatter__edge_featured_mpnn_egc__graph"
out=[]
def e(s):
    for l in s.strip('\n').split('\n'):
        l=l.strip()
        if not l: continue
        out.append(l if l.endswith(':') and not l.startswith(';') else '    '+l)
def f2u(x): return struct.unpack('<I',struct.pack('<f',x))[0]
def vr(a,n=1): return f"v{a}" if n==1 else f"v[{a}:{a+n-1}]"
def sr(a,n=1): return f"s{a}" if n==1 else f"s[{a}:{a+n-1}]"

N=10000; E=160000; NB=157; CAP=48; LSTR=CAP+1; EPW=625
LOG2E=1.4426950408889634
BCNT=0; NCNT=256; TIE=896; DONE=1152; FAIL=1156; W1RDY=1160; CSTI=1164; XRDY=1180; RDY2=1192; ECNT=1168; CCNT=1172; TRDY=1176; NON=1184
ORDER=1280; CVEC=1920; GE=2048; PAD=3648; LISTS=PAD+64; IMG=LISTS+160*LSTR*4
WS=IMG+8192; XS=WS+32768; NS=XS+40960; NSTR=272; LDS_TOTAL=NS+160*NSTR
assert GE+(CAP+1)*32<=PAD and WS%256==0 and XS%256==0 and LDS_TOTAL<=163840
TAB=1<<20; TABQ=N*128; FLG=7<<20; CELLS=8<<20; LVL=1<<20; DBG=200<<20
DUMMY=0x3fff
SPINMAX=0x8000
sW=3; pX,pE,pSRC,pDST,pU,pV,pG,pOUT=4,6,8,10,12,14,16,18
SRDX=20; SRDO=24; SRDW=28; SRDT=32; SRDG=36; NONCE=40
sQ=42; sB=43; sN0=44; sNEND=45; sT=46
sREM=56; sTASK2=57; sI=58; sSPIN=59
sM=60
sK40=72; sKE=74; sRDY=76; sT2=77; sR=78; sPART=79
sST=82
sA=4
def stamp(name):
    if name in stampnames:
        e(f"{'s_memtime' if 'cyc' in OPT else 's_memrealtime'} {sr(sST+2*stampnames.index(name),2)}")
nl=[0]
def spin(off,target,sleep=0,vt=4):
    nl[0]+=1
    e(f"L_spin{nl[0]}:")
    if sleep: e(f"s_sleep {sleep}")
    e(f"""
    ds_read_b32 v{vt}, v{vZ} offset:{off}
    s_waitcnt lgkmcnt(0)
    v_readfirstlane_b32 s{sT+9}, v{vt}
    s_cmp_ge_i32 s{sT+9}, {target}
    s_cbranch_scc0 L_spin{nl[0]}
    """)
def post(off):
    e(f"""
    s_mov_b64 exec, 1
    ds_add_u32 v{vZ}, v{vOne} offset:{off}
    s_mov_b64 exec, -1
    """)
ASG=[[0,8,13,14,19],[1,6,10,15,16],[2,5,9,12,17],[3,4,7,11,18]]
if 'oldasg' in OPT: ASG=[[s_,7-s_,8+s_,15-s_,19-s_] for s_ in range(4)]
ROWS=[int(c) for c in args.rows]
T1=sum(ASG[w&3][ROWS[w>>2]]<<(4*w) for w in range(16)); T2c=sum(ASG[w][4]<<(8*w) for w in range(4))
vLA,vOA=2,3
vN,vM,vU,vP,vE,vC,vA,IA,IB,X,Y,xX,xY=8,12,16,20,24,28,32,36,44,52,68,84,100
vOrd,vOB,vNB,vZ,vOne,vJ,vPF=116,117,118,119,120,121,127
vE2=122; vD=126

out.append(f"; @launch grid=(256,1,1) block=(1024,1,1) lds={LDS_TOTAL}")
out.append('.amdgcn_target "amdgcn-amd-amdhsa--gfx950"')
out.append('.text')
out.append(f'.globl {NAME}_kernel')
out.append('.p2align 8')
out.append(f'.type {NAME}_kernel,@function')
out.append(f'{NAME}_kernel:')
e(f"""
s_load_dwordx16 s[4:19], s[0:1], 0
s_load_dwordx2 {sr(SRDW,2)}, s[0:1], 72
s_cmp_ge_u32 s2, 256
s_cbranch_scc1 L_end
""")
for i in range(len(stampnames)): e(f"s_mov_b32 s{sST+2*i}, 0")
stamp("start")
e(f"""
v_lshrrev_b32 v2, 6, v0
v_and_b32 v1, 63, v0
v_readfirstlane_b32 s{sW}, v2
v_lshlrev_b32 v8, 2, v0
v_mov_b32 v12, {DUMMY}
v_cmp_le_u32 vcc, {PAD}, v8
s_and_b32 s{sQ}, s2, 3
s_lshr_b32 s{sB}, s2, 2
s_mul_i32 s{sN0}, s{sB}, {NB}
v_cndmask_b32 v9, 0, v12, vcc
ds_write_b32 v8, v9
v_mov_b32 v{vZ}, 0
v_mov_b32 v{vOne}, 1
s_mov_b32 s{SRDW+2}, 0x10000000
s_mov_b32 s{SRDW+3}, 0x20000
s_cmp_ge_u32 s{sW}, 6
s_cbranch_scc1 L_e0
v_lshrrev_b32 v11, 4, v1
s_cmp_ge_u32 s{sW}, 4
s_cbranch_scc1 L_l0
v_xor_b32 v4, v11, v1
v_and_b32 v4, 15, v4
v_lshlrev_b32 v4, 4, v4
v_lshl_add_u32 v4, v11, 8, v4
s_lshl_b32 s{sT}, s{sW}, 12
s_lshl_b32 s{sT+2}, s{sN0}, 8
s_add_u32 s{sT+2}, s{sT+2}, s{sT}
v_add_u32 v4, s{sT+2}, v4
v_xor_b32 v5, 64, v4
v_xor_b32 v6, 128, v4
v_xor_b32 v7, 192, v4
s_add_u32 m0, s{sT}, {XS}
s_mov_b32 s{SRDX+2}, {N*256}
s_mov_b32 s{SRDX+3}, 0x20000
s_waitcnt lgkmcnt(0)
s_mov_b32 s{SRDX}, s{pX}
s_mov_b32 s{SRDX+1}, s{pX+1}
s_barrier
""")
def xtile():
    for i in range(4): e(f"buffer_load_dwordx4 v{4+i}, {sr(SRDX,4)}, 0 offen offset:{1024*i} lds")
def xnext():
    for i in range(4): e(f"v_add_u32 v{4+i}, 16384, v{4+i}")
    e("s_add_u32 m0, m0, 16384")
xtile()
e("""
L_warm:
; WARM
s_branch L_common
""")
e(f"""
L_e0:
s_setprio 2
s_mul_i32 s{sT}, s2, {EPW*4}
s_sub_u32 s{sT}, s{sT}, {384*4}
v_add_u32 v3, s{sT}, v8
v_lshrrev_b32 v4, 1, v3
v_cmp_gt_u32 vcc, {384+EPW}, v0
s_mov_b64 {sr(sM+10,2)}, vcc
v_mov_b32 v16, 0
v_mov_b32 v17, 0
v_mov_b32 v18, 0
v_mov_b32 v19, 0xffffff
v_lshlrev_b32 v9, 4, v0
v_subrev_u32 v9, {384*16}, v9
v_min_u32 v10, 8176, v9
ds_write_b128 v10, v[16:19] offset:{IMG}
v_mov_b32 v13, v12
v_mov_b32 v14, v12
v_mov_b32 v15, v12
s_mov_b64 exec, vcc
s_waitcnt lgkmcnt(0)
global_load_dword v52, v3, {sr(pDST,2)}
global_load_dword v54, v3, {sr(pSRC,2)}
global_load_ushort v56, v4, {sr(pE,2)}
s_load_dwordx2 {sr(NONCE,2)}, {sr(SRDW,2)}, 0
s_mov_b64 exec, -1
s_barrier
""")
for i in range(3): e(f"ds_write_b128 v9, v[12:15] offset:{4096+10240*i}")
e(f"""
v_lshrrev_b32 v9, 2, v9
ds_write_b32 v9, v12 offset:{IMG-2560}
s_branch L_common
""")
def waddr():
    e("""
    v_add_u32 v13, 3072, v12
    v_add_u32 v14, 6144, v12
    v_add_u32 v15, 9216, v12
    """)
def wloop(tag,p1,wend):
    e(f"""
    L_w{tag}:
    s_mov_b32 m0, s{sT+4}
    s_add_u32 s{sT+4}, s{sT+4}, 4096
    """)
    for i in range(4): e(f"global_load_lds_dwordx4 v{12+i}, {sr(sT+6,2)} offset:{1024*i}")
    e(f"""
    s_add_u32 s{sT+6}, s{sT+6}, 16384
    s_addc_u32 s{sT+7}, s{sT+7}, 0
    s_cmp_eq_u32 s{sT+4}, {wend-8192}
    s_cselect_b64 {sr(sT+6,2)}, {sr(p1,2)}, {sr(sT+6,2)}
    s_cmp_lt_u32 s{sT+4}, {wend}
    s_cbranch_scc1 L_w{tag}
    """)
e(f"""
L_l0:
s_lshl_b32 s{sT}, s{sQ}, 6
v_lshrrev_b32 v9, 2, v1
v_and_b32 v12, 2, v11
v_xor_b32 v12, v12, v1
v_and_b32 v12, 3, v12
v_lshlrev_b32 v12, 4, v12
v_lshl_add_u32 v12, v9, 8, v12
v_add_u32 v12, s{sT}, v12
s_cmp_eq_u32 s{sW}, 4
s_cbranch_scc1 L_l4
s_waitcnt lgkmcnt(0)
s_barrier
s_branch L_warm
L_l4:
s_setprio 3
s_bfe_u32 s{sT+1}, s2, 0x40003
s_lshl_b32 s{sT+1}, s{sT+1}, 12
s_add_u32 s{sT+1}, s{sT+1}, s{sT}
v_lshlrev_b32 v10, 8, v1
v_add_u32 v10, s{sT+1}, v10
s_bitcmp1_b32 s2, 7
s_cselect_b32 s{sT+2}, 0x7fff, -1
v_and_b32 v10, s{sT+2}, v10
v_and_b32 v19, 7, v1
v_lshlrev_b32 v16, 3, v19
s_add_u32 s{sT+1}, s{sT}, 65536
v_add_u32 v16, s{sT+1}, v16
s_mov_b32 s{sT+4}, {WS}
s_waitcnt lgkmcnt(0)
s_bitcmp1_b32 s2, 6
s_cselect_b64 {sr(sT+6,2)}, {sr(pU,2)}, {sr(pV,2)}
s_bitcmp1_b32 s2, 7
s_cselect_b64 {sr(sT+6,2)}, {sr(sT+6,2)}, {sr(pG,2)}
s_mov_b64 exec, 0xffff
global_load_dword v{vPF}, v10, {sr(sT+6,2)}
s_mov_b64 exec, -1
global_load_dwordx2 v[16:17], v16, {sr(pG,2)}
s_add_u32 s{sT+6}, s{pG}, 32768
s_addc_u32 s{sT+7}, s{pG+1}, 0
s_barrier
""")
waddr()
if 'w1pf' in OPT: e("s_waitcnt vmcnt(0)")
else: spin(CSTI,8,vt=8,sleep=1)
wloop('a',pV,WS+16384)
if 'w1first' in OPT: post(CSTI)
e(f"""
s_mov_b32 s{sT}, {f2u(-LOG2E):#x}
s_waitcnt vmcnt(16)
v_lshlrev_b32 v8, 16, v16
v_and_b32 v9, 0xffff0000, v16
v_lshlrev_b32 v10, 16, v17
v_and_b32 v11, 0xffff0000, v17
""")
for i in range(4): e(f"v_mul_f32 v{8+i}, s{sT}, v{8+i}")
e(f"""
v_lshlrev_b32 v19, 4, v19
ds_write_b128 v19, v[8:11] offset:{CVEC}
s_waitcnt vmcnt(0)
ds_write_b32 v{vZ}, v{vOne} offset:{W1RDY}
s_setprio 0
""")
e(f"""
L_common:
s_mov_b32 s{SRDX}, s{pX}
s_mov_b32 s{SRDX+1}, s{pX+1}
s_mov_b32 s{SRDX+2}, {N*256}
s_mov_b32 s{SRDX+3}, 0x20000
s_add_u32 s{sNEND}, s{sN0}, {NB}
s_min_u32 s{sNEND}, s{sNEND}, {N}
s_mov_b32 s{SRDO}, s{pOUT}
s_mov_b32 s{SRDO+1}, s{pOUT+1}
s_lshl_b32 s{SRDO+2}, s{sNEND}, 8
s_mov_b32 s{SRDO+3}, 0x20000
s_mul_i32 s{sT+8}, s{sQ}, {TABQ}
s_add_u32 s{sT+8}, s{sT+8}, {TAB}
s_add_u32 s{SRDT}, s{SRDW}, s{sT+8}
s_addc_u32 s{SRDT+1}, s{SRDW+1}, 0
s_lshl_b32 s{SRDT+2}, s{sNEND}, 7
s_mov_b32 s{SRDT+3}, 0x20000
s_mov_b32 s{SRDG}, s{SRDT}
s_and_b32 s{SRDG+1}, s{SRDT+1}, 0xffff
s_or_b32 s{SRDG+1}, s{SRDG+1}, 0x800000
s_mov_b32 s{SRDG+2}, {0 if 'nogather' in OPT else N}
s_mov_b32 s{SRDG+3}, 0x20000
s_mov_b32 s{sK40}, {f2u(2.0**40):#x}
s_mov_b32 s{sKE}, {f2u(-LOG2E*2.0**-40):#x}
s_mov_b32 s{sRDY}, 0
s_mov_b32 s{sSPIN}, 0
s_mov_b32 s{sT+8}, {T1&0xffffffff:#x}
s_mov_b32 s{sT+9}, {T1>>32:#x}
s_lshl_b32 s{sI}, s{sW}, 2
s_lshr_b64 {sr(sT+8,2)}, {sr(sT+8,2)}, s{sI}
s_and_b32 s{sI}, s{sT+8}, 15
s_lshl_b32 s{sT+8}, s{sW}, 3
s_lshr_b32 s{sT+8}, {T2c:#x}, s{sT+8}
s_and_b32 s{sT+8}, s{sT+8}, 31
s_lshr_b32 s{sT+9}, s{sW}, 2
s_cmp_eq_u32 s{sT+9}, {ROWS.index(3)}
s_cselect_b32 s{sTASK2}, s{sT+8}, 0
""")
def lane_consts():
    e(f"""
    v_bfe_u32 v20, v1, 2, 2
    v_lshrrev_b32 v21, 4, v1
    v_cmp_eq_u32 vcc, v20, v21
    v_and_b32 v22, 3, v1
    v_mov_b32 v23, 0x3f80
    v_cndmask_b32 v2, 4, v22, vcc
    """)
    fill=[f"v_and_b32 v{vJ}, 7, v1", f"v_lshlrev_b32 v{IA+1}, 4, v{vJ}", f"v_lshrrev_b32 v{vOrd}, 3, v1", f"v_lshlrev_b32 v{vOrd}, 2, v{vOrd}"]
    for i in range(4):
        e(f"v_cmp_eq_u32 vcc, {i}, v2")
        e(f"v_mov_b32 v{vE+i}, 0")
        e(fill[i])
        e(f"v_cndmask_b32 v{vA+i}, 0, v23, vcc")
    for r in (IA+3,IA+5,IA+7,IB+1,IB+3,IB+5,IB+7): e(f"v_mov_b32 v{r}, v{IA+1}")
    for i in range(4): e(f"v_mov_b32 v{vE2+i}, 0")
    if 'taildot' in OPT: e(f"v_mov_b32 v{vD}, v23")
lane_consts()
e(f"""
s_lshl_b32 s{sT+8}, s{sN0}, 8
s_lshl_b32 s{sT+9}, s{sQ}, 6
s_add_u32 s{sT+8}, s{sT+8}, s{sT+9}
v_lshlrev_b32 v{vOB}, 3, v{vJ}
v_add_u32 v{vOB}, s{sT+8}, v{vOB}
v_add_u32 v{vNB}, {NS}, v{IA+1}
s_cmp_ge_u32 s{sW}, 6
s_cbranch_scc1 L_e1
""")
WR=52; XO=8; ACC=[116-16,116-8]
WR=44+8
vW0,vW1=2,3
KG=2.0**40*(1-0.00135)
ACC=[24,32]; PK=[40,44]; vSa,vNa,vMin,vTm=48,49,50,51
e(f"""
L_t0:
s_and_b32 s{sT+8}, s{sW}, 3
v_bfe_u32 v20, v1, 2, 2
v_lshrrev_b32 v21, 4, v1
v_and_b32 v22, 3, v1
v_and_b32 v23, 15, v1
v_xor_b32 v122, v23, v21
v_lshlrev_b32 v122, 4, v122
v_lshl_add_u32 v122, v23, 8, v122
s_lshl_b32 s{sT}, s{sT+8}, 12
s_add_u32 s{sT}, s{sT}, {XS}
v_add_u32 v122, s{sT}, v122
v_lshl_add_u32 v{vW0}, v21, 3, v20
v_lshlrev_b32 v{vW0}, 6, v{vW0}
v_lshl_add_u32 v{vW0}, v22, 3, v{vW0}
v_and_b32 v20, 1, v21
v_lshl_add_u32 v{vW0}, v20, 5, v{vW0}
v_add_u32 v{vW0}, {WS}, v{vW0}
v_xor_b32 v{vW1}, 32, v{vW0}
v_lshlrev_b32 v21, 4, v21
s_lshl_b32 s{sT+1}, s{sW}, 4
s_add_u32 s{sT+1}, s{sT+1}, s{sN0}
s_lshl_b32 s{sT+1}, s{sT+1}, 7
v_lshl_add_u32 v{vSa}, v23, 7, v21
v_add_u32 v{vSa}, s{sT+1}, v{vSa}
v_lshlrev_b32 v123, 7, v23
v_lshl_add_u32 v123, v21, 9, v123
v_add_u32 v123, s{sT+1}, v123
s_mul_i32 s{sT+2}, s{sT+8}, {16*NSTR}
s_add_u32 s{sT+2}, s{sT+2}, {NS}
v_mul_u32_u24 v{vNa}, {NSTR}, v23
v_add3_u32 v{vNa}, v{vNa}, v21, s{sT+2}
s_mov_b32 s{sT+4}, {f2u(LOG2E):#x}
s_mov_b32 s{sT+5}, {f2u(KG):#x}
s_cmp_ge_u32 s{sW}, 4
s_cbranch_scc1 L_pu
""")
xnext()
spin(CSTI,9 if 'w1first' in OPT else 8,vt=vTm,sleep=1)
xtile()
e(f"""
s_cmp_ge_u32 s{sW}, 2
s_cbranch_scc1 L_two
""")
xnext()
e("s_nop 0")
xtile()
e("""
s_waitcnt vmcnt(8)
s_branch L_three
L_two:
s_waitcnt vmcnt(4)
L_three:
""")
def gemm(tag,moff,flag,need0,posts,perTileWait):
    e(f"""
    v_mov_b32 v4, v122
    v_xor_b32 v5, 64, v122
    v_xor_b32 v6, 128, v122
    v_xor_b32 v7, 192, v122
    s_mov_b32 s{sT+3}, s{sT+8}
    """)
    spin(flag,need0,sleep=1,vt=vTm)
    stamp("w"+tag)
    for f in range(2):
        for s_ in range(4):
            for m in range(2):
                for u in range(2):
                    e(f"ds_read_b64_tr_b16 {vr(WR+32*f+8*s_+4*m+2*u,2)}, v{vW0+f} offset:{moff+m*8192+s_*2048+u*256}")
    e(f"L_tile{tag}:")
    for s_ in range(4): e(f"ds_read_b128 {vr(XO+4*s_,4)}, v{4+s_}")
    for s_ in range(4): e(f"v_add_u32 v{4+s_}, 16384, v{4+s_}")
    for f in range(2):
        for s_ in range(4):
            if f==0: e(f"s_waitcnt lgkmcnt({3-s_})")
            for m in range(2):
                c="0" if s_==0 else vr(ACC[f]+4*m,4)
                e(f"v_mfma_f32_16x16x32_bf16 {vr(ACC[f]+4*m,4)}, {vr(WR+32*f+8*s_+4*m,4)}, {vr(XO+4*s_,4)}, {c}")
    posts()
    e(f"s_add_u32 s{sT+3}, s{sT+3}, 4")
    if perTileWait:
        e(f"""
        s_cmp_ge_u32 s{sT+3}, 10
        s_cbranch_scc1 L_tiles{tag}
        s_waitcnt vmcnt(6)
        s_cmp_lt_u32 s{sT+3}, 6
        s_cbranch_scc1 L_tile{tag}
        s_waitcnt vmcnt(4)
        s_cmp_ge_u32 s{sT+3}, 8
        s_cbranch_scc1 L_xdone
        s_waitcnt vmcnt(2)
        L_xdone:
        """)
        if not 0<=args.thr<=2:
            post(XRDY)
            stamp("x")
        e(f"s_branch L_tile{tag}")
        e(f"L_tiles{tag}:")
    else:
        e(f"""
        s_cmp_lt_u32 s{sT+3}, 10
        s_cbranch_scc1 L_tile{tag}
        """)
def post_qh():
    for f in range(2):
        a=ACC[f]; p=PK[f]
        for i in range(4): e(f"v_mul_f32 v{a+i}, s{sT+4}, v{a+i}")
        for i in range(4): e(f"v_exp_f32 v{a+i}, v{a+i}")
        for i in range(4): e(f"v_mul_f32 v{a+4+i}, s{sT+5}, v{a+4+i}")
        for i in range(4): e(f"v_mul_f32 v{a+4+i}, v{a+i}, v{a+4+i}")
        for i in range(4): e(f"v_cvt_pk_bf16_f32 v{p+i}, v{a+i}, v{a+4+i}")
        if args.thr>=0:
            e(f"""
            s_cmp_lt_u32 s{sT+3}, 4
            s_cbranch_scc1 L_nothr{f}
            s_waitcnt vmcnt({args.thr})
            """)
            if f==0 and args.thr<=2:
                e(f"""
                s_cmp_ge_u32 s{sT+3}, 8
                s_cbranch_scc1 L_nothr{f}
                """)
                post(XRDY); stamp("x")
            e(f"L_nothr{f}:")
        e(f"buffer_store_dwordx4 {vr(p,4)}, v{vSa}, {sr(SRDT,4)}, 0 offen offset:{64*f} sc1")
    a0,a1=ACC
    e(f"""
    v_min3_f32 v{vMin}, v{a0}, v{a0+1}, v{a0+2}
    v_min3_f32 v{vMin}, v{vMin}, v{a0+3}, v{a1}
    v_min3_f32 v{vMin}, v{vMin}, v{a1+1}, v{a1+2}
    v_min_f32 v{vMin}, v{vMin}, v{a1+3}
    v_cmp_gt_f32 vcc, {f2u(2.0**-80):#x}, v{vMin}
    s_cbranch_vccnz L_mark
    L_markback:
    v_add_u32 v{vSa}, 8192, v{vSa}
    """)
gemm('1',0,W1RDY,1,post_qh,True)
stamp("qh")
spin(ECNT,10,vt=vTm)
e(f"""
ds_read_b64 v[8:9], v{vZ} offset:{NON}
ds_read_b64 v[10:11], v{vZ} offset:{NON}
v_lshlrev_b32 v12, 4, v1
s_lshl_b32 s{sT}, s{sQ}, 6
s_add_u32 s{sT}, s{sT}, s{sB}
s_lshl_b32 s{sT}, s{sT}, 6
s_add_u32 s{sT}, s{sT}, {FLG}
s_mov_b64 exec, 1
s_waitcnt vmcnt(0)
ds_add_rtn_u32 v13, v{vZ}, v{vOne} offset:{DONE}
""")
stamp("drain")
e(f"""
s_waitcnt lgkmcnt(0)
v_cmp_eq_u32 vcc, 3, v13
s_cbranch_vccz L_nosig
s_mov_b64 exec, 15
buffer_store_dwordx4 v[8:11], v12, {sr(SRDW,4)}, s{sT} offen sc1
""")
stamp("sig")
e(f"""
s_mov_b64 exec, -1
s_setprio 3
v_lshlrev_b32 v12, 6, v1
s_lshl_b32 s{sT}, s{sQ}, 12
s_add_u32 s{sT}, s{sT}, {FLG}
""")
if 'nopf' not in OPT: e(f"buffer_load_dword v{vPF}, v123, {sr(SRDT,4)}, 0 offen sc1")
if 'pollwait' in OPT: e("s_waitcnt vmcnt(0)")
e(f"""
L_poll:
{f"s_sleep {args.psleep}" if args.psleep else ""}
buffer_load_dwordx2 v[10:11], v12, {sr(SRDW,4)}, s{sT} offen sc1
s_add_u32 s{sSPIN}, s{sSPIN}, 1
s_cmp_ge_u32 s{sSPIN}, {SPINMAX}
s_cbranch_scc1 L_pollok
s_waitcnt vmcnt(0)
v_cmp_ne_u64 vcc, v[8:9], v[10:11]
s_cbranch_vccnz L_poll
L_pollok:
ds_write_b32 v{vZ}, v{vOne} offset:{TRDY}
s_setprio 0
""")
stamp("trdy")
e("s_branch L_tdone")
e("L_nosig:")
e("s_mov_b64 exec, -1")
if 'nopf' not in OPT: e(f"buffer_load_dword v{vPF}, v123, {sr(SRDT,4)}, 0 offen sc1")
e("s_branch L_tdone")
e(f"""
L_pu:
s_cmp_eq_u32 s{sW}, 5
s_cbranch_scc0 L_now2
s_mov_b64 {sr(sT+6,2)}, {sr(pG,2)}
s_mov_b32 s{sT+4}, {WS+16384}
""")
waddr()
spin(W1RDY,1,sleep=1,vt=vTm)
wloop('b',pU,WS+32768)
e("s_waitcnt vmcnt(0)")
post(XRDY)
stamp("load")
e("L_now2:")
e(f"s_mov_b32 s{sT+4}, {f2u(-LOG2E):#x}")
def post_pu():
    for f in range(2):
        a=ACC[f]
        for i in range(4): e(f"v_mul_f32 v{a+i}, s{sT+4}, v{a+i}")
        if f==0: e("s_nop 1")
        e(f"ds_write_b128 v{vNa}, {vr(a,4)} offset:{64*f}")
        e(f"ds_write_b128 v{vNa}, {vr(a+4,4)} offset:{64*f+128}")
    e(f"v_add_u32 v{vNa}, {64*NSTR}, v{vNa}")
gemm('2',16384,XRDY,5,post_pu,False)
e('s_waitcnt lgkmcnt(0)')
post(RDY2)
stamp("pu")
e("L_tdone:")
lane_consts()
e("s_branch L_join")
e(f"""
L_e1:
s_waitcnt lgkmcnt(0)
s_add_u32 s{NONCE}, s{NONCE}, 0x7f4a7c15
s_addc_u32 s{NONCE+1}, s{NONCE+1}, 0x9e3779b9
s_lshr_b32 s{sT2}, s{NONCE}, 14
s_and_b32 s{sT2}, s{sT2}, 0xc000
v_mul_u32_u24 v22, 7, v22
v_lshrrev_b32 v22, v22, s{NONCE}
v_lshlrev_b32 v22, 25, v22
s_mov_b32 s{sR}, 0
v_mov_b32 v8, s{NONCE}
v_mov_b32 v9, s{NONCE+1}
ds_write_b64 v{vZ}, v[8:9] offset:{NON}
s_mov_b32 s{sT+8}, 10
s_movk_i32 s{sT}, 683
v_subrev_u32 v23, 512, v0
v_bfe_u32 v8, v23, 2, 6
v_and_b32 v10, 3, v23
v_lshlrev_b32 v10, 4, v10
v_lshl_add_u32 v11, v8, 7, v10
v_lshl_add_u32 v21, v8, 14, v10
v_lshlrev_b32 v62, 2, v8
v_lshlrev_b32 v63, 2, v1
s_bfe_u32 s{sT+4}, s{sW}, 0x10002
s_lshl_b32 s{sT+5}, s{sT+4}, 6
v_add_u32 v11, s{sT+5}, v11
s_lshl_b32 s{sT+1}, s{sT+4}, 20
s_lshl_b32 s{sT+2}, s2, 6
s_add_u32 s{sT+1}, s{sT+1}, s{sT+2}
s_add_u32 s{sT+1}, s{sT+1}, {CELLS}
s_mul_i32 s{sT+5}, s{sT+4}, 12
s_sub_u32 s{sT+3}, s{sT+4}, 1
v_or_b32 v7, 0x1000000, v22
v_mov_b32 v60, -1
s_mov_b64 exec, {sr(sM+10,2)}
s_waitcnt vmcnt(2)
""")
stamp("edge")
e(f"""
v_mul_u32_u24 v58, 6679, v52
v_lshrrev_b32 v58, 20, v58
v_lshlrev_b32 v60, 2, v58
ds_add_rtn_u32 v60, v60, v{vOne} offset:{BCNT}
v_mul_u32_u24 v8, {NB}, v58
v_sub_u32 v52, v52, v8
v_lshlrev_b32 v58, 7, v58
s_mov_b64 exec, -1
s_waitcnt lgkmcnt(0)
L_round:
v_subrev_u32 v8, s{sR}, v60
v_cmp_gt_u32 vcc, 24, v8
v_mul_u32_u24 v9, s{sT}, v8
v_lshrrev_b32 v9, 11, v9
v_add_u32 v10, v8, v9
v_lshl_add_u32 v10, v10, 2, v58
v_mad_u32_u24 v9, v9, 13, v8
v_add_u32 v9, v9, v58
s_mov_b64 exec, vcc
ds_write_b8 v9, v52 offset:{IMG+12}
s_waitcnt vmcnt(0)
v_lshl_or_b32 v8, v56, 16, v54
ds_write_b32 v10, v8 offset:{IMG}
s_mov_b64 exec, 1
s_waitcnt lgkmcnt(0)
ds_add_u32 v{vZ}, v{vOne} offset:{ECNT}
s_mov_b64 exec, -1
""")
spin(ECNT,f"s{sT+8}")
stamp("img")
e(f"""
ds_read_b32 v5, v63 offset:{BCNT}
s_cmp_lt_u32 s{sW}, 8
s_cbranch_scc1 L_nocopy
ds_read_b32 v6, v62 offset:{BCNT}
ds_read_b128 v[12:15], v11 offset:{IMG}
s_waitcnt lgkmcnt(1)
v_subrev_u32 v6, s{sT+5}, v6
v_cmp_lt_i32 vcc, 12, v6
v_cmp_lt_i32 {sr(sM,2)}, s{sT+3}, v6
s_waitcnt lgkmcnt(0)
v_cndmask_b32 v20, v22, v7, vcc
v_xor_b32 v12, s{sT2}, v12
v_xor_b32 v13, s{sT2}, v13
v_xor_b32 v14, s{sT2}, v14
v_or_b32 v15, v20, v15
s_mov_b64 exec, {sr(sM,2)}
buffer_store_dwordx4 v[12:15], v21, {sr(SRDW,4)}, s{sT+1} offen sc1
s_mov_b64 exec, 1
ds_add_u32 v{vZ}, v{vOne} offset:{CSTI}
s_mov_b64 exec, -1
L_nocopy:
s_add_u32 s{sR}, s{sR}, 24
s_waitcnt lgkmcnt(0)
v_cmp_lt_u32 vcc, s{sR}, v5
s_cbranch_vccnz L_again
s_cmp_ge_u32 s{sW}, 8
s_cbranch_scc1 L_c0
s_setprio 0
s_branch L_t0
""")
D=52; Cc=68; sO=sT+1; mk=sA; cur=sA+4; bad=sA+8; NJ=2
def cloads(m):
    for j in range(NJ):
        e(f"s_mov_b64 exec, {sr(m+2*j,2)}")
        e(f"buffer_load_dwordx4 {vr(D+4*j,4)}, v23, {sr(SRDW,4)}, s{sO+j} offen sc1")
    e("s_mov_b64 exec, -1")
e(f"""
L_c0:
v_lshlrev_b32 v23, 4, v23
v_lshlrev_b32 v21, 2, v{vJ}
v_mov_b32 v20, 4
v_mov_b32 v6, 0xff
v_mov_b32 v7, 0xc000
s_lshl_b32 s{sO}, s{sB}, 14
s_add_u32 s{sO}, s{sO}, {CELLS}
s_add_u32 s{sO+1}, s{sO}, 8192
""")
for j in range(NJ): e(f"s_mov_b64 {sr(mk+2*j,2)}, -1")
e("s_waitcnt vmcnt(0)")
stamp("cst")
spin(XRDY,args.ctrig,sleep=1) if args.ctrig>0 else spin(W1RDY,1,sleep=1)
cloads(mk)
e("L_cwait:")
for j in range(NJ):
    d=D+4*j; c=Cc+4*j
    e(f"""
    s_waitcnt vmcnt({NJ-1-j})
    v_xor_b32 v{c}, s{sT2}, v{d}
    v_xor_b32 v{c+1}, s{sT2}, v{d+1}
    v_xor_b32 v{c+2}, s{sT2}, v{d+2}
    v_xor_b32 v{c+3}, v22, v{d+3}
    v_or3_b32 v8, v{c}, v{c+1}, v{c+2}
    v_lshrrev_b32 v9, 25, v{c+3}
    v_and_or_b32 v8, v8, v7, v9
    v_cmp_ne_u32 vcc, 0, v8
    s_and_b64 {sr(bad+2*j,2)}, vcc, {sr(mk+2*j,2)}
    """)
e(f"s_or_b64 {sr(sM,2)}, {sr(bad,2)}, {sr(bad+2,2)}")
e("s_cbranch_scc1 L_cretry")
stamp("cell")
for j in range(NJ):
    e(f"""
    v_cmp_lt_u32 vcc, 0xffffff, v{Cc+4*j+3}
    s_mov_b64 {sr(cur+2*j,2)}, {sr(mk+2*j,2)}
    s_add_u32 s{sO+j}, s{sO+j}, {LVL}
    s_and_b64 {sr(mk+2*j,2)}, {sr(mk+2*j,2)}, vcc
    """)
e(f"""
s_or_b64 {sr(sM,2)}, {sr(mk,2)}, {sr(mk+2,2)}
s_cselect_b32 s{sR}, 1, 0
s_cbranch_scc0 L_cnomore
""")
cloads(mk)
e("L_cnomore:")
for half in range(1):
    recs=[(j,i) for j in (2*half,2*half+1) for i in range(3)]
    for k,(j,i) in enumerate(recs):
        if i==0: e(f"s_mov_b64 exec, {sr(cur+2*j,2)}")
        e(f"v_cmp_ne_u32_sdwa {sr(sM+2*k,2)}, v{Cc+4*j+3}, v6 src0_sel:BYTE_{i} src1_sel:DWORD")
        e(f"v_lshlrev_b32_sdwa v{8+k}, 2, v{Cc+4*j+3} dst_sel:DWORD dst_unused:UNUSED_PAD src0_sel:DWORD src1_sel:BYTE_{i}")
    for k,(j,i) in enumerate(recs):
        e(f"s_mov_b64 exec, {sr(sM+2*k,2)}")
        e(f"ds_add_rtn_u32 v{14+k}, v{8+k}, v20 offset:{NCNT}")
    for k,(j,i) in enumerate(recs):
        e(f"""
        s_mov_b64 exec, {sr(sM+2*k,2)}
        s_waitcnt lgkmcnt({5+k})
        v_min_u32 v{14+k}, {4*(CAP-1)}, v{14+k}
        v_mad_u32_u24 v{8+k}, v{8+k}, {LSTR}, v{14+k}
        v_lshl_add_u32 v{14+k}, v{14+k}, 3, v21
        ds_write_b32 v{8+k}, v{Cc+4*j+i} offset:{LISTS}
        ds_add_u32 v{14+k}, v20 offset:{GE}
        """)
e(f"""
s_mov_b64 exec, -1
s_cmp_eq_u32 s{sR}, 1
s_cbranch_scc1 L_cwait
L_cdone:
s_waitcnt lgkmcnt(0)
""")
post(CCNT)
stamp("ins")
e(f"""
s_cmp_ge_u32 s{sW}, 11
s_cbranch_scc1 L_join0
v_lshrrev_b32 v23, 4, v23
v_cmp_gt_u32 vcc, 160, v23
v_lshlrev_b32 v8, 2, v23
""")
spin(CCNT,8)
e(f"""
s_mov_b64 exec, vcc
ds_read_b32 v9, v8 offset:{NCNT}
s_waitcnt lgkmcnt(0)
v_cmp_lt_u32 vcc, {4*CAP}, v9
v_min_u32 v9, {4*CAP}, v9
ds_add_rtn_u32 v10, v9, v20 offset:{TIE}
v_lshlrev_b32 v8, 3, v9
ds_read_b128 v[12:15], v8 offset:{GE}
ds_read_b128 v[16:19], v8 offset:{GE+16}
v_lshl_or_b32 v11, v9, 14, v23
s_cbranch_vccnz L_overflow
L_ovback:
s_waitcnt lgkmcnt(1)
v_add3_u32 v10, v10, v12, v13
v_add3_u32 v10, v10, v14, v15
s_waitcnt lgkmcnt(0)
v_add3_u32 v10, v10, v16, v17
v_add3_u32 v10, v10, v18, v19
v_min_u32 v10, 636, v10
ds_write_b32 v10, v11 offset:{ORDER}
s_mov_b64 exec, 1
s_waitcnt lgkmcnt(0)
ds_add_u32 v{vZ}, v{vOne} offset:{RDY2}
s_mov_b64 exec, -1
s_xor_b32 s{sT}, s{sW}, 8
s_or_b32 s{sT}, s{sT}, s2
s_cbranch_scc1 L_join0
s_mov_b64 exec, 1
v_mov_b32 v8, s{NONCE}
v_mov_b32 v9, s{NONCE+1}
buffer_store_dwordx2 v[8:9], v{vZ}, {sr(SRDW,4)}, 0 offen sc1
s_mov_b64 exec, -1
L_join0:
s_setprio 0
L_join:
""")
spin(RDY2,7,sleep=1)
stamp("B2")
e(f"ds_read_b128 {vr(vC,4)}, v{IA+1} offset:{CVEC}")
def idxreads(I,off):
    for k in (3,2,1,0): e(f"ds_read_u16 v{I+2*k}, v{vLA} offset:{off+4*k}")
def ereads(off,E=vE):
    for k in range(4): e(f"ds_read_u16_d16_hi v{E+k}, v{vLA} offset:{off+4*k+2}")
def apk(x,E=vE,ks=(3,2,1,0)):
    for k in ks:
        sel = "op_sel_hi:[0,1,1]" if k%2==0 else "op_sel:[1,0,0] op_sel_hi:[1,1,1]"
        for h in range(2):
            e(f"v_pk_fma_f32 {vr(x+4*k+2*h,2)}, {vr(E+(k&2),2)}, {vr(vC+2*h,2)}, {vr(vP+2*h,2)} {sel}")
def exps(x,k):
    if 'novalu' in OPT: return
    for i in range(4): e(f"v_exp_f32 v{x+4*k+i}, v{x+4*k+i}")
def gath1(B,I,k): e(f"buffer_load_dwordx4 {vr(B+4*k,4)}, {vr(I+2*k,2)}, {sr(SRDG,4)}, 0 idxen offen sc1")
def gath(B,I):
    for k in (3,2,1,0): gath1(B,I,k)
def mext(B,x,k): e(f"v_mfma_f32_16x16x32_bf16 {vr(x+4*k,4)}, {vr(vA,4)}, {vr(B+4*k,4)}, {vr(x+4*k,4)}")
def burst(B,x):
    if 'taildot' in OPT:
        for k in (3,2,1,0):
            for i in range(4): e(f"v_dot2c_f32_bf16 v{x+4*k+i}, v{vD}, v{B+4*k+i}")
    else:
        for k in (3,2,1,0): mext(B,x,k)
        e("s_nop 1")
def frac(B,x,k):
    if 'novalu' in OPT: e("s_nop 7"); return
    for h in range(2): e(f"v_pk_mul_f32 {vr(vU+2*h,2)}, {vr(B+4*k+2*h,2)}, {vr(vM+2*h,2)}")
    for h in range(2):
        e(f"v_pk_fma_f32 {vr(vN+2*h,2)}, {vr(vN+2*h,2)}, {vr(x+4*k+2*h,2)}, {vr(vU+2*h,2)}")
        e(f"v_pk_mul_f32 {vr(vM+2*h,2)}, {vr(vM+2*h,2)}, {vr(x+4*k+2*h,2)}")
np_=[0]
def setprio(first=False):
    if not args.prio: return
    th=[int(x) for x in args.prio.split(',')]
    np_[0]+=1; L=f"L_pr{np_[0]}"
    if first:
        e(f"""
        s_cmp_lg_u32 s{sTASK2}, 0
        s_cselect_b32 s{sR}, {th[3]}, 0
        s_setprio 3
        """)
    e(f"s_add_u32 s{sT+8}, s{sREM}, s{sR}")
    for p in range(3):
        e(f"""
        s_cmp_ge_u32 s{sT+8}, {th[p]}
        s_cbranch_scc1 {L}
        s_setprio {2-p}
        """)
    e(f"{L}:")
def ladder(lab):
    for r in (1,2,3):
        e(f"s_cmp_eq_u32 s{sPART}, {r}")
        e(f"s_cbranch_scc1 {lab}{r-1}")
def gfirst(tag):
    ladder(f"L_g{tag}")
    for k in (3,2,1,0):
        e(f"L_g{tag}{k}:"); gath1(X,IA,k)
    gath(Y,IB); idxreads(IA,0)
e(f"""
L_task:
s_lshl_b32 s{sT}, s{sI}, 5
v_add_u32 v4, s{sT}, v{vOrd}
ds_read_b32 v4, v4 offset:{ORDER}
v_mov_b32 v{vM}, 1.0
v_mov_b32 v{vM+1}, 1.0
v_mov_b32 v{vM+2}, 1.0
v_mov_b32 v{vM+3}, 1.0
s_movk_i32 s{sT+2}, {NSTR}
s_waitcnt lgkmcnt(0)
v_readfirstlane_b32 s{sT}, v4
v_and_b32 v4, 0xff, v4
v_mul_u32_u24 v{vLA}, {4*LSTR}, v4
v_mad_u32_u24 v5, v4, s{sT+2}, v{vNB}
s_lshr_b32 s{sT}, s{sT}, 16
s_add_u32 s{sREM}, s{sT}, 3
s_lshr_b32 s{sREM}, s{sREM}, 2
s_lshl_b32 s{sT+1}, s{sREM}, 4
s_add_u32 s{sT+1}, s{sT+1}, {LISTS-48}
v_add_u32 v{vLA}, s{sT+1}, v{vLA}
""")
idxreads(IA,32); idxreads(IB,16)
setprio(True)
e(f"ds_read_b32 v7, v{vZ} offset:{TRDY}")
e(f"ds_read_b128 {vr(vP,4)}, v5")
ereads(16)
ereads(32,vE2)
e(f"""
ds_read_b128 {vr(vN,4)}, v5 offset:128
v_lshl_add_u32 v{vOA}, v4, 8, v{vOB}
s_and_b32 s{sPART}, s{sT}, 3
s_waitcnt lgkmcnt(10)
v_readfirstlane_b32 s{sRDY}, v7
s_cmp_eq_u32 s{sRDY}, 0
s_cbranch_scc1 L_notyet
L_rdy:
""")
stamp("go")
gfirst('a')
e("s_waitcnt lgkmcnt(4)")
e("s_branch L_astage")
e("L_notyet:")
e("s_waitcnt lgkmcnt(0)")
e("L_astage:")
apk(xY)
ereads(0)
for h in range(2): e(f"v_pk_mul_f32 {vr(vN+2*h,2)}, {vr(vN+2*h,2)}, {sr(sK40,2)} op_sel_hi:[1,0]")
ladder("L_ax")
for k in (3,2,1,0):
    e(f"L_ax{k}:")
    apk(xX,vE2,(k,)); exps(xX,k)
e(f"""
s_cmp_eq_u32 s{sRDY}, 0
s_cbranch_scc1 L_late
s_waitcnt vmcnt(4)
""")
for k in (3,2,1,0): mext(X,xX,k); exps(xY,k)
e(f"""
L_enter:
s_cmp_eq_u32 s{sREM}, 0
s_cbranch_scc1 L_fin
""")
ladder("L_fx")
def half(tag,B,x,B2,x2,tag2,last):
    for k in (3,2,1,0):
        e(f"L_f{tag}{k}:")
        frac(B,x,k)
    e(f"s_sub_u32 s{sREM}, s{sREM}, 1")
    setprio()
    e(f"""
    s_cmp_le_u32 s{sREM}, 1
    s_cbranch_scc1 L_tail{tag}
    s_waitcnt lgkmcnt(0)
    """)
    gath(B,IA)
    apk(x)
    e(f"v_subrev_u32 v{vLA}, 16, v{vLA}")
    idxreads(IA,0); ereads(0)
    e("s_waitcnt vmcnt(4)")
    for k in (3,2,1,0):
        mext(B2,x2,k); exps(x,k)
    if last: e(f"s_branch L_f{tag2}3")
def tail(tag,B2,x2,tag2):
    e(f"""
    L_tail{tag}:
    s_cmp_eq_u32 s{sREM}, 0
    s_cbranch_scc1 L_fin
    s_waitcnt vmcnt(0)
    """)
    burst(B2,x2)
    e(f"s_branch L_f{tag2}3")
half('x',X,xX,Y,xY,'y',False)
half('y',Y,xY,X,xX,'x',True)
tail('x',Y,xY,'y')
tail('y',X,xX,'x')
e("L_late:")
for k in (3,2,1,0): exps(xY,k)
spin(TRDY,1,vt=7)
stamp("go")
gfirst('b')
e("s_waitcnt vmcnt(4)")
burst(X,xX)
e("s_branch L_enter")
e("L_fin:")
e("s_waitcnt lgkmcnt(0)")
for i in range(4): e(f"v_rcp_f32 v{vM+i}, v{vM+i}")
for h in range(2): e(f"v_pk_mul_f32 {vr(vN+2*h,2)}, {vr(vN+2*h,2)}, {vr(vM+2*h,2)}")
for h in range(2): e(f"v_pk_mul_f32 {vr(vM+2*h,2)}, {vr(vN+2*h,2)}, {sr(sKE,2)} op_sel_hi:[1,0]")
for i in range(4): e(f"v_exp_f32 v{vM+i}, v{vM+i}")
for h in range(2): e(f"v_pk_fma_f32 {vr(vM+2*h,2)}, {vr(vM+2*h,2)}, {sr(sK40,2)}, {sr(sK40,2)} op_sel_hi:[1,0,0]")
for i in range(4): e(f"v_rcp_f32 v{vM+i}, v{vM+i}")
for h in range(2): e(f"v_pk_mul_f32 {vr(vU+2*h,2)}, {vr(vN+2*h,2)}, {vr(vM+2*h,2)}")
e(f"""
v_cvt_pk_bf16_f32 v{vU}, v{vU}, v{vU+1}
v_cvt_pk_bf16_f32 v{vU+1}, v{vU+2}, v{vU+3}
buffer_store_dwordx2 {vr(vU,2)}, v{vOA}, {sr(SRDO,4)}, 0 offen sc1
s_mov_b32 s{sI}, s{sTASK2}
s_mov_b32 s{sTASK2}, 0
s_cmp_lg_u32 s{sI}, 0
s_cbranch_scc1 L_task
""")
stamp("end")
if stampnames and not args.probe:
    e(f"""
    s_waitcnt vmcnt(0) lgkmcnt(0)
    s_lshl_b32 s{sT}, s2, 4
    s_add_u32 s{sT}, s{sT}, s{sW}
    s_lshl_b32 s{sT}, s{sT}, 6
    s_add_u32 s{sT}, s{sT}, {DBG}
    v_mov_b32 v4, 0
    """)
    for i in range(len(stampnames)): e(f"v_writelane_b32 v4, s{sST+2*i}, {i}")
    e(f"""
    v_writelane_b32 v4, s{sSPIN}, 15
    v_lshlrev_b32 v5, 2, v1
    s_mov_b64 exec, 0xffff
    buffer_store_dword v4, v5, {sr(SRDW,4)}, s{sT} offen
    """)
if args.probe:
    pn,pwg,pw=args.probe.split(',')
    if pwg!='a': e(f"s_cmp_eq_u32 s2, {pwg}\ns_cbranch_scc0 L_end")
    if pw!='a': e(f"s_cmp_eq_u32 s{sW}, {pw}\ns_cbranch_scc0 L_end")
    e(f"""
    s_waitcnt lgkmcnt(0)
    s_cmp_eq_u32 s{sST}, 0
    s_cbranch_scc1 L_end
    s_add_u32 s{sT}, s{sST}, 4000
    L_probe:
    s_sleep 2
    s_memrealtime {sr(sT+2,2)}
    s_waitcnt lgkmcnt(0)
    s_sub_u32 s{sT+1}, s{sT+2}, s{sT}
    s_cmp_lt_i32 s{sT+1}, 0
    s_cbranch_scc1 L_probe
    """)
e("L_end:")
e("s_endpgm")
e("; COLD")
e(f"""
L_cretry:
s_add_u32 s{sSPIN}, s{sSPIN}, 1
s_cmp_ge_u32 s{sSPIN}, {SPINMAX}
s_cbranch_scc1 L_cdone
s_sleep 4
""")
cloads(bad)
e(f"""
s_branch L_cwait
L_overflow:
ds_write_b32 v{vZ}, v{vOne} offset:{FAIL}
s_branch L_ovback
L_again:
s_cmp_lt_u32 s{sW}, 8
s_cbranch_scc1 L_again1
ds_write_b128 v11, v[16:19] offset:{IMG}
s_waitcnt lgkmcnt(0)
L_again1:
""")
post(ECNT)
e(f"s_add_u32 s{sT+8}, s{sT+8}, 10")
spin(ECNT,f"s{sT+8}")
e(f"""
s_add_u32 s{sT+8}, s{sT+8}, 10
s_add_u32 s{sT+1}, s{sT+1}, {2*LVL}
s_add_u32 s{sT+5}, s{sT+5}, 24
s_mov_b32 s{sT+3}, 0
s_branch L_round
L_mark:
s_waitcnt vmcnt(0)
s_mov_b64 exec, vcc
v_mov_b32 v{vMin}, -1
buffer_store_dword v{vMin}, v{vSa}, {sr(SRDT,4)}, 0 offen sc1
s_mov_b64 exec, -1
s_branch L_markback
""")
out.append('.section .rodata,"a"')
out.append('.p2align 6')
out.append(f""".amdhsa_kernel {NAME}_kernel
  .amdhsa_next_free_vgpr 128
  .amdhsa_next_free_sgpr 102
  .amdhsa_accum_offset 128
  .amdhsa_group_segment_fixed_size 0
  .amdhsa_kernarg_size 80
  .amdhsa_user_sgpr_count 2
  .amdhsa_user_sgpr_kernarg_segment_ptr 1
  .amdhsa_system_sgpr_workgroup_id_x 1
.end_amdhsa_kernel""")
def offsets(lines):
    import subprocess,re,tempfile
    d=tempfile.mkdtemp()
    txt=[]
    for i,l in enumerate(lines):
        t=l.strip()
        if l.startswith('    ') and not t.startswith(';'): txt.append(f"Z_{i}:")
        txt.append(l)
    open(d+"/a.s","w").write("\n".join(txt)+"\n")
    subprocess.check_call(["clang","-x","assembler","-target","amdgcn-amd-amdhsa","-mcpu=gfx950","-c",d+"/a.s","-o",d+"/a.o"])
    o=subprocess.check_output(["llvm-readelf","-s",d+"/a.o"]).decode()
    return {int(m.group(2)):int(m.group(1),16) for m in re.finditer(r"^\s*\d+: ([0-9a-f]+) .* Z_(\d+)$",o,re.M)}
if 'nowarm' not in OPT:
    off=offsets(out); iw=out.index('    ; WARM'); ic=out.index('    ; COLD')
    idx=sorted(off); end=off[max(i for i in idx if i<ic)]
    nat=[i for i in idx if out[i].split()[0] in ('s_branch','s_endpgm') and i>iw+1]
    spots=[]; cur=args.wfirst
    while cur<end-64:
        cand=[i for i in nat if cur-200<=off[i]<=cur and i not in [x for x,_ in spots]]
        if cand: i=max(cand,key=lambda i:off[i]); spots.append((i,True))
        else:
            i=max([i for i in idx if off[i]<=cur],key=lambda i:off[i]); spots.append((i,False))
        cur=off[i]+args.wstep
    assert len(spots)<=10, len(spots)
    for k,(i,isnat) in reversed(list(enumerate(spots))):
        ins=[f"L_stub{k}:",f"    s_branch L_stub{k+5}" if k+5<len(spots) else "    s_branch L_common"]
        if not isnat: ins=[f"    s_branch L_skip{k}"]+ins+[f"L_skip{k}:"]
        out[i+1:i+1]=ins
    lad=[]
    for k in range(min(5,len(spots))): lad+=[f"    s_cmp_eq_u32 s{sW}, {[0,1,2,3,5][k]}",f"    s_cbranch_scc1 L_stub{k}"]
    out[iw+1:iw+1]=lad
if stampnames: out.insert(0,"; stamps: "+",".join(stampnames))
print("\n".join(out))
```

```python
import sys, struct, argparse
ap=argparse.ArgumentParser()
ap.add_argument('--stamps',default='')
ap.add_argument('--probe',default='')
ap.add_argument('--opt',default='')
ap.add_argument('--cap',type=int,default=3)
ap.add_argument('--nx0',type=int,default=3)
ap.add_argument('--ctrig',type=int,default=4)
ap.add_argument('--thr',type=int,default=-1)
ap.add_argument('--psleep',type=int,default=0)
ap.add_argument('--prio',default='')
ap.add_argument('--rows',default='2301')
ap.add_argument('--fs',type=int,default=6)
ap.add_argument('--own',type=int,default=0)
ap.add_argument('--wstep',type=int,default=900)
ap.add_argument('--wfirst',type=int,default=1000)
args=ap.parse_args()
OPT=set(args.opt.split(','))
stampnames=[s for s in args.stamps.split(',') if s]
if args.probe: stampnames=[args.probe.split(',')[0]]
assert len(stampnames)<=10
NAME="gather_scatter__edge_featured_mpnn_egc__graph"
out=[]
def e(s):
    for l in s.strip('\n').split('\n'):
        l=l.strip()
        if not l: continue
        out.append(l if l.endswith(':') and not l.startswith(';') else '    '+l)
def f2u(x): return struct.unpack('<I',struct.pack('<f',x))[0]
def vr(a,n=1): return f"v{a}" if n==1 else f"v[{a}:{a+n-1}]"
def sr(a,n=1): return f"s{a}" if n==1 else f"s[{a}:{a+n-1}]"

N=10000; E=160000; NB=157; CAP=48; LSTR=CAP+1; EPW=625
LOG2E=1.4426950408889634
BCNT=0; NCNT=256; TIE=896; DONE=1152; FAIL=1156; W1RDY=1160; CSTI=1164; XRDY=1180; RDY2=1192; GDONE=1196; ECNT=1168; CCNT=1172; TRDY=1176; NON=1184
ORDER=1280; CVEC=1920; GE=2048; PAD=3648; LISTS=PAD+64; IMG=LISTS+160*LSTR*4
WS=IMG+8192; XS=WS+32768; NS=XS+40960; NSTR=272; LDS_TOTAL=NS+160*NSTR
assert GE+(CAP+1)*32<=PAD and WS%256==0 and XS%256==0 and LDS_TOTAL<=163840
TAB=1<<20; TABQ=N*128; FLG=7<<20; CELLS=8<<20; LVL=1<<20; DBG=200<<20
DUMMY=0x3fff
SPINMAX=0x8000
sW=3; pX,pE,pSRC,pDST,pU,pV,pG,pOUT=4,6,8,10,12,14,16,18
SRDX=20; SRDO=24; SRDW=28; SRDT=32; SRDG=36; NONCE=40
sQ=42; sB=43; sN0=44; sNEND=45; sT=46
sREM=56; sTASK2=57; sI=58; sSPIN=59
sM=60
sK40=72; sKE=74; sRDY=76; sT2=77; sR=78; sPART=79
sP0=73; sP=75; sD=sT+7; sST=82; sINF=80; sGD=81
sA=4
def stamp(name):
    if name in stampnames:
        e(f"{'s_memtime' if 'cyc' in OPT else 's_memrealtime'} {sr(sST+2*stampnames.index(name),2)}")
nl=[0]
def spin(off,target,sleep=0,vt=4):
    nl[0]+=1
    if sleep:
        e(f"""
        s_branch L_spun{nl[0]}
        L_spin{nl[0]}:
        s_sleep {sleep}
        L_spun{nl[0]}:
        """)
    else: e(f"L_spin{nl[0]}:")
    e(f"""
    ds_read_b32 v{vt}, v{vZ} offset:{off}
    s_waitcnt lgkmcnt(0)
    v_readfirstlane_b32 s{sT+9}, v{vt}
    s_cmp_ge_i32 s{sT+9}, {target}
    s_cbranch_scc0 L_spin{nl[0]}
    """)
def post(off):
    e(f"""
    s_mov_b64 exec, 1
    ds_add_u32 v{vZ}, v{vOne} offset:{off}
    s_mov_b64 exec, -1
    """)
ASG=[[0,8,13,14,19],[1,6,10,15,16],[2,5,9,12,17],[3,4,7,11,18]]
if 'oldasg' in OPT: ASG=[[s_,7-s_,8+s_,15-s_,19-s_] for s_ in range(4)]
ROWS=[int(c) for c in args.rows]
T1=sum(ASG[w&3][ROWS[w>>2]]<<(4*w) for w in range(16)); T2c=sum(ASG[w][4]<<(8*w) for w in range(4))
vLA,vOA=2,3
vN,vM,vU,vP,vE,vC,vA,IA,IB,X,Y,xX,xY=8,12,16,20,24,28,32,36,44,52,68,84,100
vOrd,vOB,vNB,vZ,vOne,vJ,vPF=116,117,118,119,120,121,127
vE2=122; vD=6; vH=126; vHA=vJ

out.append(f"; @launch grid=(256,1,1) block=(1024,1,1) lds={LDS_TOTAL}")
out.append('.amdgcn_target "amdgcn-amd-amdhsa--gfx950"')
out.append('.text')
out.append(f'.globl {NAME}_kernel')
out.append('.p2align 8')
out.append(f'.type {NAME}_kernel,@function')
out.append(f'{NAME}_kernel:')
e(f"""
s_load_dwordx16 s[4:19], s[0:1], 0
s_load_dwordx2 {sr(SRDW,2)}, s[0:1], 72
s_cmp_ge_u32 s2, 256
s_cbranch_scc1 L_end
""")
for i in range(len(stampnames)): e(f"s_mov_b32 s{sST+2*i}, 0")
stamp("start")
e(f"""
v_lshrrev_b32 v2, 6, v0
v_and_b32 v1, 63, v0
v_readfirstlane_b32 s{sW}, v2
v_lshlrev_b32 v8, 2, v0
v_mov_b32 v12, {DUMMY}
v_cmp_le_u32 vcc, {PAD}, v8
s_and_b32 s{sQ}, s2, 3
s_lshr_b32 s{sB}, s2, 2
s_mul_i32 s{sN0}, s{sB}, {NB}
v_cndmask_b32 v9, 0, v12, vcc
ds_write_b32 v8, v9
v_mov_b32 v{vZ}, 0
v_mov_b32 v{vOne}, 1
s_mov_b32 s{SRDW+2}, 0x10000000
s_mov_b32 s{SRDW+3}, 0x20000
s_cmp_ge_u32 s{sW}, 6
s_cbranch_scc1 L_e0
v_lshrrev_b32 v11, 4, v1
s_cmp_ge_u32 s{sW}, 4
s_cbranch_scc1 L_l0
v_xor_b32 v4, v11, v1
v_and_b32 v4, 15, v4
v_lshlrev_b32 v4, 4, v4
v_lshl_add_u32 v4, v11, 8, v4
s_mul_i32 s{sP0}, s{sQ}, {0 if 'norot' in OPT else 5}
s_add_u32 s{sP0}, s{sP0}, 1
s_lshr_b32 s{sP0}, s{sP0}, 1
s_add_u32 s{sP0}, s{sP0}, s{sW}
s_cmp_ge_u32 s{sP0}, 10
s_cselect_b32 s{sT}, 10, 0
s_sub_u32 s{sP0}, s{sP0}, s{sT}
s_mov_b32 s{sP}, s{sP0}
s_lshl_b32 s{sT}, s{sP0}, 12
s_lshl_b32 s{sT+2}, s{sN0}, 8
s_add_u32 s{sT+2}, s{sT+2}, s{sT}
v_add_u32 v4, s{sT+2}, v4
v_xor_b32 v5, 64, v4
v_xor_b32 v6, 128, v4
v_xor_b32 v7, 192, v4
s_add_u32 m0, s{sT}, {XS}
s_mov_b32 s{SRDX+2}, {N*256}
s_mov_b32 s{SRDX+3}, 0x20000
s_waitcnt lgkmcnt(0)
s_mov_b32 s{SRDX}, s{pX}
s_mov_b32 s{SRDX+1}, s{pX+1}
s_barrier
""")
def xtile():
    for i in range(4): e(f"buffer_load_dwordx4 v{4+i}, {sr(SRDX,4)}, 0 offen offset:{1024*i} lds")
def pstep():
    e(f"""
    s_cmp_ge_u32 s{sP}, 6
    s_cselect_b32 s{sD}, -6, 4
    s_add_u32 s{sP}, s{sP}, s{sD}
    s_lshl_b32 s{sD}, s{sD}, 12
    """)
    for i in range(4): e(f"v_add_u32 v{4+i}, s{sD}, v{4+i}")
def xnext():
    pstep()
    e(f"s_add_u32 m0, m0, s{sD}")
xtile()
if args.own:
    e(f"""
    s_add_u32 s{sNEND}, s{sN0}, {NB}
    s_min_u32 s{sNEND}, s{sNEND}, {N}
    s_mul_i32 s{sT+8}, s{sQ}, {TABQ}
    s_add_u32 s{sT+8}, s{sT+8}, {TAB}
    s_add_u32 s{SRDT}, s{SRDW}, s{sT+8}
    s_addc_u32 s{SRDT+1}, s{SRDW+1}, 0
    s_lshl_b32 s{SRDT+2}, s{sNEND}, 7
    s_mov_b32 s{SRDT+3}, 0x20000
    s_lshr_b32 s{sT+2}, s{sT+2}, 1
    v_lshlrev_b32 v13, 4, v1
    v_add_u32 v13, s{sT+2}, v13
    v_add_u32 v14, 8192, v13
    """)
    for i in range(args.own): e(f"buffer_store_dwordx4 v[8:11], v{13+(i>>1)}, {sr(SRDT,4)}, 0 offen offset:{1024*(i&1)} sc1")
e("""
L_warm:
; WARM
s_branch L_common
""")
e(f"""
L_e0:
s_setprio 2
s_mul_i32 s{sT}, s2, {EPW*4}
s_sub_u32 s{sT}, s{sT}, {384*4}
v_add_u32 v3, s{sT}, v8
v_lshrrev_b32 v4, 1, v3
v_cmp_gt_u32 vcc, {384+EPW}, v0
s_mov_b64 {sr(sM+10,2)}, vcc
v_mov_b32 v16, 0
v_mov_b32 v17, 0
v_mov_b32 v18, 0
v_mov_b32 v19, 0xffffff
v_lshlrev_b32 v9, 4, v0
v_subrev_u32 v9, {384*16}, v9
v_min_u32 v10, 8176, v9
ds_write_b128 v10, v[16:19] offset:{IMG}
v_mov_b32 v13, v12
v_mov_b32 v14, v12
v_mov_b32 v15, v12
s_mov_b64 exec, vcc
s_waitcnt lgkmcnt(0)
global_load_dword v52, v3, {sr(pDST,2)}
global_load_dword v54, v3, {sr(pSRC,2)}
global_load_ushort v56, v4, {sr(pE,2)}
s_load_dwordx2 {sr(NONCE,2)}, {sr(SRDW,2)}, 0
s_mov_b64 exec, -1
s_barrier
""")
for i in range(3): e(f"ds_write_b128 v9, v[12:15] offset:{4096+10240*i}")
e(f"""
v_lshrrev_b32 v9, 2, v9
ds_write_b32 v9, v12 offset:{IMG-2560}
s_branch L_common
""")
def waddr():
    e("""
    v_add_u32 v13, 3072, v12
    v_add_u32 v14, 6144, v12
    v_add_u32 v15, 9216, v12
    """)
def wloop(tag,p1,wend):
    e(f"""
    L_w{tag}:
    s_mov_b32 m0, s{sT+4}
    s_add_u32 s{sT+4}, s{sT+4}, 4096
    """)
    for i in range(4): e(f"global_load_lds_dwordx4 v{12+i}, {sr(sT+6,2)} offset:{1024*i}")
    e(f"""
    s_add_u32 s{sT+6}, s{sT+6}, 16384
    s_addc_u32 s{sT+7}, s{sT+7}, 0
    s_cmp_eq_u32 s{sT+4}, {wend-8192}
    s_cselect_b64 {sr(sT+6,2)}, {sr(p1,2)}, {sr(sT+6,2)}
    s_cmp_lt_u32 s{sT+4}, {wend}
    s_cbranch_scc1 L_w{tag}
    """)
e(f"""
L_l0:
s_lshl_b32 s{sT}, s{sQ}, 6
v_lshrrev_b32 v9, 2, v1
v_and_b32 v12, 2, v11
v_xor_b32 v12, v12, v1
v_and_b32 v12, 3, v12
v_lshlrev_b32 v12, 4, v12
v_lshl_add_u32 v12, v9, 8, v12
v_add_u32 v12, s{sT}, v12
s_cmp_eq_u32 s{sW}, 4
s_cbranch_scc1 L_l4
s_waitcnt lgkmcnt(0)
s_barrier
s_branch L_warm
L_l4:
s_setprio 3
s_bfe_u32 s{sT+1}, s2, 0x40003
s_lshl_b32 s{sT+1}, s{sT+1}, 12
s_add_u32 s{sT+1}, s{sT+1}, s{sT}
v_lshlrev_b32 v10, 8, v1
v_add_u32 v10, s{sT+1}, v10
s_bitcmp1_b32 s2, 7
s_cselect_b32 s{sT+2}, 0x7fff, -1
v_and_b32 v10, s{sT+2}, v10
v_and_b32 v19, 7, v1
v_lshlrev_b32 v16, 3, v19
s_add_u32 s{sT+1}, s{sT}, 65536
v_add_u32 v16, s{sT+1}, v16
s_mov_b32 s{sT+4}, {WS}
s_waitcnt lgkmcnt(0)
s_bitcmp1_b32 s2, 6
s_cselect_b64 {sr(sT+6,2)}, {sr(pU,2)}, {sr(pV,2)}
s_bitcmp1_b32 s2, 7
s_cselect_b64 {sr(sT+6,2)}, {sr(sT+6,2)}, {sr(pG,2)}
s_mov_b64 exec, 0xffff
global_load_dword v{vPF}, v10, {sr(sT+6,2)}
s_mov_b64 exec, -1
global_load_dwordx2 v[16:17], v16, {sr(pG,2)}
s_add_u32 s{sT+6}, s{pG}, 32768
s_addc_u32 s{sT+7}, s{pG+1}, 0
s_barrier
""")
waddr()
if 'w1now' in OPT: e("s_nop 15"); e("s_nop 15")
elif 'w1pf' in OPT: e("s_waitcnt vmcnt(0)")
else: spin(CSTI,8,vt=8,sleep=1)
wloop('a',pV,WS+16384)
if 'w1first' in OPT: post(CSTI)
e(f"""
s_mov_b32 s{sT}, {f2u(-LOG2E):#x}
s_waitcnt vmcnt(16)
v_lshlrev_b32 v8, 16, v16
v_and_b32 v9, 0xffff0000, v16
v_lshlrev_b32 v10, 16, v17
v_and_b32 v11, 0xffff0000, v17
""")
for i in range(4): e(f"v_mul_f32 v{8+i}, s{sT}, v{8+i}")
e(f"""
v_lshlrev_b32 v19, 4, v19
ds_write_b128 v19, v[8:11] offset:{CVEC}
s_waitcnt vmcnt(0)
ds_write_b32 v{vZ}, v{vOne} offset:{W1RDY}
s_setprio 0
""")
e(f"""
L_common:
s_mov_b32 s{SRDX}, s{pX}
s_mov_b32 s{SRDX+1}, s{pX+1}
s_mov_b32 s{SRDX+2}, {N*256}
s_mov_b32 s{SRDX+3}, 0x20000
s_add_u32 s{sNEND}, s{sN0}, {NB}
s_min_u32 s{sNEND}, s{sNEND}, {N}
s_mov_b32 s{SRDO}, s{pOUT}
s_mov_b32 s{SRDO+1}, s{pOUT+1}
s_lshl_b32 s{SRDO+2}, s{sNEND}, 8
s_mov_b32 s{SRDO+3}, 0x20000
s_mul_i32 s{sT+8}, s{sQ}, {TABQ}
s_add_u32 s{sT+8}, s{sT+8}, {TAB}
s_add_u32 s{SRDT}, s{SRDW}, s{sT+8}
s_addc_u32 s{SRDT+1}, s{SRDW+1}, 0
s_lshl_b32 s{SRDT+2}, s{sNEND}, 7
s_mov_b32 s{SRDT+3}, 0x20000
s_mov_b32 s{SRDG}, s{SRDT}
s_and_b32 s{SRDG+1}, s{SRDT+1}, 0xffff
s_or_b32 s{SRDG+1}, s{SRDG+1}, 0x800000
s_mov_b32 s{SRDG+2}, {0 if 'nogather' in OPT else N}
s_mov_b32 s{SRDG+3}, 0x20000
s_mov_b32 s{sK40}, {f2u(2.0**40):#x}
s_mov_b32 s{sKE}, {f2u(-LOG2E*2.0**-40):#x}
s_mov_b32 s{sRDY}, 0
s_mov_b32 s{sINF}, 0x7f800000
s_mov_b32 s{sGD}, 0
s_mov_b32 s{sSPIN}, 0
s_mov_b32 s{sT+8}, {T1&0xffffffff:#x}
s_mov_b32 s{sT+9}, {T1>>32:#x}
s_lshl_b32 s{sI}, s{sW}, 2
s_lshr_b64 {sr(sT+8,2)}, {sr(sT+8,2)}, s{sI}
s_and_b32 s{sI}, s{sT+8}, 15
s_lshl_b32 s{sT+8}, s{sW}, 3
s_lshr_b32 s{sT+8}, {T2c:#x}, s{sT+8}
s_and_b32 s{sT+8}, s{sT+8}, 31
s_lshr_b32 s{sT+9}, s{sW}, 2
s_cmp_eq_u32 s{sT+9}, {ROWS.index(3)}
s_cselect_b32 s{sTASK2}, s{sT+8}, 0
""")
def lane_consts():
    e(f"""
    v_bfe_u32 v20, v1, 2, 2
    v_lshrrev_b32 v21, 4, v1
    v_cmp_eq_u32 vcc, v20, v21
    v_and_b32 v22, 3, v1
    v_mov_b32 v23, 0x3f80
    v_cndmask_b32 v2, 4, v22, vcc
    """)
    fill=[f"v_and_b32 v{vJ}, 7, v1", f"v_lshlrev_b32 v{IA+1}, 4, v{vJ}", f"v_lshrrev_b32 v{vOrd}, 3, v1", f"v_lshlrev_b32 v{vOrd}, 2, v{vOrd}"]
    for i in range(4):
        e(f"v_cmp_eq_u32 vcc, {i}, v2")
        e(f"v_mov_b32 v{vE+i}, 0")
        e(fill[i])
        e(f"v_cndmask_b32 v{vA+i}, 0, v23, vcc")
    for r in (IA+3,IA+5,IA+7,IB+1,IB+3,IB+5,IB+7): e(f"v_mov_b32 v{r}, v{IA+1}")
    for i in range(4): e(f"v_mov_b32 v{vE2+i}, 0")
    if 'taildot' in OPT: e(f"v_mov_b32 v{vD}, v23")
lane_consts()
e(f"""
s_lshl_b32 s{sT+8}, s{sN0}, 8
s_lshl_b32 s{sT+9}, s{sQ}, 6
s_add_u32 s{sT+8}, s{sT+8}, s{sT+9}
v_lshlrev_b32 v{vOB}, 3, v{vJ}
v_add_u32 v{vOB}, s{sT+8}, v{vOB}
v_add_u32 v{vNB}, {NS}, v{IA+1}
s_cmp_ge_u32 s{sW}, 6
s_cbranch_scc1 L_e1
""")
WR=52; XO=8; ACC=[116-16,116-8]
WR=44+8
vW0,vW1=2,3
KG=2.0**40*(1-0.00135)
ACC=[24,32]; PK=[40,44]; vSa,vNa,vMin,vTm=48,49,50,51
e(f"""
L_t0:
s_and_b32 s{sT+8}, s{sW}, 3
s_cmp_ge_u32 s{sW}, 4
s_cselect_b32 s{sP0}, s{sT+8}, s{sP0}
v_bfe_u32 v20, v1, 2, 2
v_lshrrev_b32 v21, 4, v1
v_and_b32 v22, 3, v1
v_and_b32 v23, 15, v1
v_xor_b32 v122, v23, v21
v_lshlrev_b32 v122, 4, v122
v_lshl_add_u32 v122, v23, 8, v122
s_lshl_b32 s{sT}, s{sP0}, 12
s_add_u32 s{sT}, s{sT}, {XS}
v_add_u32 v122, s{sT}, v122
v_lshl_add_u32 v{vW0}, v21, 3, v20
v_lshlrev_b32 v{vW0}, 6, v{vW0}
v_lshl_add_u32 v{vW0}, v22, 3, v{vW0}
v_and_b32 v20, 1, v21
v_lshl_add_u32 v{vW0}, v20, 5, v{vW0}
v_add_u32 v{vW0}, {WS}, v{vW0}
v_xor_b32 v{vW1}, 32, v{vW0}
v_lshlrev_b32 v21, 4, v21
s_lshl_b32 s{sT+1}, s{sP0}, 4
s_add_u32 s{sT+1}, s{sT+1}, s{sN0}
s_lshl_b32 s{sT+1}, s{sT+1}, 7
v_lshl_add_u32 v{vSa}, v23, 7, v21
v_add_u32 v{vSa}, s{sT+1}, v{vSa}
v_lshrrev_b32 v20, 2, v21
v_add_u32 v22, s{sP0}, v20
v_cmp_le_u32 vcc, 10, v22
v_lshlrev_b32 v123, 7, v23
v_lshl_add_u32 v123, v21, 9, v123
v_add_u32 v123, s{sT+1}, v123
v_subrev_u32 v22, 20480, v123
v_cndmask_b32 v123, v123, v22, vcc
v_add_u32 v22, s{sW}, v20
v_cmp_gt_u32 vcc, 10, v22
s_nop 1
v_cndmask_b32 v123, -16, v123, vcc
s_mul_i32 s{sT+2}, s{sT+8}, {16*NSTR}
s_add_u32 s{sT+2}, s{sT+2}, {NS}
v_mul_u32_u24 v{vNa}, {NSTR}, v23
v_add3_u32 v{vNa}, v{vNa}, v21, s{sT+2}
s_mov_b32 s{sT+4}, {f2u(LOG2E):#x}
s_mov_b32 s{sT+5}, {f2u(KG):#x}
s_cmp_ge_u32 s{sW}, 4
s_cbranch_scc1 L_pu
""")
xnext()
spin(CSTI,1 if 'nocsti' in OPT else 9 if 'w1first' in OPT else 8,vt=vTm,sleep=1)
xtile()
e(f"""
s_cmp_ge_u32 s{sW}, 2
s_cbranch_scc1 L_two
""")
xnext()
e("s_nop 0")
xtile()
e("""
s_waitcnt vmcnt(8)
s_branch L_three
L_two:
s_waitcnt vmcnt(4)
L_three:
""")
def gemm(tag,moff,flag,need0,posts,perTileWait):
    e(f"""
    v_mov_b32 v4, v122
    v_xor_b32 v5, 64, v122
    v_xor_b32 v6, 128, v122
    v_xor_b32 v7, 192, v122
    s_mov_b32 s{sT+3}, s{sT+8}
    s_mov_b32 s{sP}, s{sP0}
    """)
    spin(flag,need0,sleep=1,vt=vTm)
    stamp("w"+tag)
    for f in range(2):
        for s_ in range(4):
            for m in range(2):
                for u in range(2):
                    e(f"ds_read_b64_tr_b16 {vr(WR+32*f+8*s_+4*m+2*u,2)}, v{vW0+f} offset:{moff+m*8192+s_*2048+u*256}")
    e(f"L_tile{tag}:")
    for s_ in range(4): e(f"ds_read_b128 {vr(XO+4*s_,4)}, v{4+s_}")
    pstep()
    for f in range(2):
        for s_ in range(4):
            if f==0: e(f"s_waitcnt lgkmcnt({3-s_})")
            for m in range(2):
                c="0" if s_==0 else vr(ACC[f]+4*m,4)
                e(f"v_mfma_f32_16x16x32_bf16 {vr(ACC[f]+4*m,4)}, {vr(WR+32*f+8*s_+4*m,4)}, {vr(XO+4*s_,4)}, {c}")
    posts()
    e(f"s_add_u32 s{sT+3}, s{sT+3}, 4")
    if perTileWait:
        e(f"""
        s_cmp_ge_u32 s{sT+3}, 10
        s_cbranch_scc1 L_tiles{tag}
        s_waitcnt vmcnt(6)
        s_cmp_lt_u32 s{sT+3}, 6
        s_cbranch_scc1 L_tile{tag}
        s_waitcnt vmcnt(4)
        s_cmp_ge_u32 s{sT+3}, 8
        s_cbranch_scc1 L_xdone
        s_waitcnt vmcnt(2)
        L_xdone:
        """)
        if not 0<=args.thr<=2:
            post(XRDY)
            stamp("x")
        e(f"s_branch L_tile{tag}")
        e(f"L_tiles{tag}:")
    else:
        e(f"""
        s_cmp_lt_u32 s{sT+3}, 10
        s_cbranch_scc1 L_tile{tag}
        """)
def post_qh():
    for f in range(2):
        a=ACC[f]; p=PK[f]
        for i in range(4): e(f"v_mul_f32 v{a+i}, s{sT+4}, v{a+i}")
        for i in range(4): e(f"v_exp_f32 v{a+i}, v{a+i}")
        for i in range(4): e(f"v_mul_f32 v{a+4+i}, s{sT+5}, v{a+4+i}")
        for i in range(4): e(f"v_mul_f32 v{a+4+i}, v{a+i}, v{a+4+i}")
        for i in range(4): e(f"v_cvt_pk_bf16_f32 v{p+i}, v{a+i}, v{a+4+i}")
        if args.thr>=0:
            e(f"""
            s_cmp_lt_u32 s{sT+3}, 4
            s_cbranch_scc1 L_nothr{f}
            s_waitcnt vmcnt({args.thr})
            """)
            if f==0 and args.thr<=2:
                e(f"""
                s_cmp_ge_u32 s{sT+3}, 8
                s_cbranch_scc1 L_nothr{f}
                """)
                post(XRDY); stamp("x")
            e(f"L_nothr{f}:")
        e(f"buffer_store_dwordx4 {vr(p,4)}, v{vSa}, {sr(SRDT,4)}, 0 offen offset:{64*f} sc1")
    a0,a1=ACC
    e(f"""
    v_min3_f32 v{vMin}, v{a0}, v{a0+1}, v{a0+2}
    v_min3_f32 v{vMin}, v{vMin}, v{a0+3}, v{a1}
    v_min3_f32 v{vMin}, v{vMin}, v{a1+1}, v{a1+2}
    v_min_f32 v{vMin}, v{vMin}, v{a1+3}
    v_cmp_gt_f32 vcc, {f2u(2.0**-80):#x}, v{vMin}
    s_cbranch_vccnz L_mark
    L_markback:
    s_ashr_i32 s{sD}, s{sD}, 1
    v_add_u32 v{vSa}, s{sD}, v{vSa}
    """)
gemm('1',0,W1RDY,1,post_qh,True)
stamp("qh")
spin(ECNT,10,vt=vTm)
e(f"""
ds_read_b64 v[8:9], v{vZ} offset:{NON}
ds_read_b64 v[10:11], v{vZ} offset:{NON}
v_lshlrev_b32 v12, 4, v1
s_lshl_b32 s{sT}, s{sQ}, 6
s_add_u32 s{sT}, s{sT}, s{sB}
s_lshl_b32 s{sT}, s{sT}, {args.fs}
s_add_u32 s{sT}, s{sT}, {FLG}
s_mov_b64 exec, 1
s_waitcnt vmcnt(0)
ds_add_rtn_u32 v13, v{vZ}, v{vOne} offset:{DONE}
""")
stamp("drain")
e(f"""
s_waitcnt lgkmcnt(0)
v_cmp_eq_u32 vcc, 3, v13
s_cbranch_vccz L_nosig
s_mov_b64 exec, 15
buffer_store_dwordx4 v[8:11], v12, {sr(SRDW,4)}, s{sT} offen sc1
""")
stamp("sig")
e(f"""
s_mov_b64 exec, -1
s_setprio 3
v_lshlrev_b32 v12, {args.fs}, v1
s_lshl_b32 s{sT}, s{sQ}, {6+args.fs}
s_add_u32 s{sT}, s{sT}, {FLG}
""")
if 'nopf' not in OPT: e(f"buffer_load_dword v{vPF}, v123, {sr(SRDT,4)}, 0 offen sc1")
def ppf():
    e(f"""
    buffer_load_dword v{vPF}, v14, {sr(SRDG,4)}, 0 idxen sc1
    buffer_load_dword v{vPF}, v15, {sr(SRDG,4)}, 0 idxen sc1
    s_mov_b64 exec, 0x1fffffff
    buffer_load_dword v{vPF}, v16, {sr(SRDG,4)}, 0 idxen sc1
    s_mov_b64 exec, -1
    """)
if OPT&{'ppf','ppfend'}:
    e(f"""
    s_xor_b32 s{sT+1}, s{sB}, 1
    s_mul_i32 s{sT+2}, s{sT+1}, {NB}
    v_add_u32 v14, s{sT+2}, v1
    v_add_u32 v15, 64, v14
    v_add_u32 v16, 128, v14
    s_lshl_b64 {sr(sT+2,2)}, 1, s{sT+1}
    """)
if 'pollwait' in OPT: e("s_waitcnt vmcnt(0)")
e(f"""
L_poll:
{f"s_sleep {args.psleep}" if args.psleep else ""}
buffer_load_dwordx2 v[10:11], v12, {sr(SRDW,4)}, s{sT} offen sc1
s_add_u32 s{sSPIN}, s{sSPIN}, 1
s_cmp_ge_u32 s{sSPIN}, {SPINMAX}
s_cbranch_scc1 L_pollok
s_waitcnt vmcnt(0)
v_cmp_ne_u64 vcc, v[8:9], v[10:11]
""")
if 'ppf' in OPT:
    e(f"""
    s_andn2_b64 {sr(sT+4,2)}, {sr(sT+2,2)}, vcc
    s_cbranch_scc0 L_noppf
    s_mov_b64 {sr(sT+2,2)}, 0
    """)
    ppf()
    e("L_noppf:")
if 'pmask' in OPT: e("s_mov_b64 exec, vcc")
e(f"""
s_cbranch_vccnz L_poll
L_pollok:
s_mov_b64 exec, -1
""")
if 'ppfend' in OPT: ppf()
e(f"""
ds_write_b32 v{vZ}, v{vOne} offset:{TRDY}
s_setprio 0
""")
stamp("trdy")
e("s_branch L_tdone")
e("L_nosig:")
e("s_mov_b64 exec, -1")
if 'nopf' not in OPT: e(f"buffer_load_dword v{vPF}, v123, {sr(SRDT,4)}, 0 offen sc1")
e("s_branch L_tdone")
e(f"""
L_pu:
s_cmp_eq_u32 s{sW}, 5
s_cbranch_scc0 L_now2
s_mov_b64 {sr(sT+6,2)}, {sr(pG,2)}
s_mov_b32 s{sT+4}, {WS+16384}
""")
waddr()
spin(W1RDY,1,sleep=1,vt=vTm)
wloop('b',pU,WS+32768)
e("s_waitcnt vmcnt(0)")
post(XRDY)
stamp("load")
e("L_now2:")
e(f"s_mov_b32 s{sT+4}, {f2u(-LOG2E):#x}")
def post_pu():
    for f in range(2):
        a=ACC[f]
        for i in range(4): e(f"v_mul_f32 v{a+i}, s{sT+4}, v{a+i}")
        if f==0: e("s_nop 1")
        e(f"ds_write_b128 v{vNa}, {vr(a,4)} offset:{64*f}")
        e(f"ds_write_b128 v{vNa}, {vr(a+4,4)} offset:{64*f+128}")
    e(f"v_add_u32 v{vNa}, {64*NSTR}, v{vNa}")
gemm('2',16384,XRDY,5,post_pu,False)
e('s_waitcnt lgkmcnt(0)')
post(RDY2)
stamp("pu")
e("L_tdone:")
lane_consts()
e("s_branch L_join")
e(f"""
L_e1:
s_waitcnt lgkmcnt(0)
s_add_u32 s{NONCE}, s{NONCE}, 0x7f4a7c15
s_addc_u32 s{NONCE+1}, s{NONCE+1}, 0x9e3779b9
s_lshr_b32 s{sT2}, s{NONCE}, 14
s_and_b32 s{sT2}, s{sT2}, 0xc000
v_mul_u32_u24 v22, 7, v22
v_lshrrev_b32 v22, v22, s{NONCE}
v_lshlrev_b32 v22, 25, v22
s_mov_b32 s{sR}, 0
v_mov_b32 v8, s{NONCE}
v_mov_b32 v9, s{NONCE+1}
ds_write_b64 v{vZ}, v[8:9] offset:{NON}
s_mov_b32 s{sT+8}, 10
s_movk_i32 s{sT}, 683
v_subrev_u32 v23, 512, v0
v_bfe_u32 v8, v23, 2, 6
v_and_b32 v10, 3, v23
v_lshlrev_b32 v10, 4, v10
v_lshl_add_u32 v11, v8, 7, v10
v_lshl_add_u32 v21, v8, 14, v10
v_lshlrev_b32 v62, 2, v8
v_lshlrev_b32 v63, 2, v1
s_bfe_u32 s{sT+4}, s{sW}, 0x10002
s_lshl_b32 s{sT+5}, s{sT+4}, 6
v_add_u32 v11, s{sT+5}, v11
s_lshl_b32 s{sT+1}, s{sT+4}, 20
s_lshl_b32 s{sT+2}, s2, 6
s_add_u32 s{sT+1}, s{sT+1}, s{sT+2}
s_add_u32 s{sT+1}, s{sT+1}, {CELLS}
s_mul_i32 s{sT+5}, s{sT+4}, 12
s_sub_u32 s{sT+3}, s{sT+4}, 1
v_or_b32 v7, 0x1000000, v22
v_mov_b32 v60, -1
s_mov_b64 exec, {sr(sM+10,2)}
s_waitcnt vmcnt(2)
""")
stamp("edge")
e(f"""
v_mul_u32_u24 v58, 6679, v52
v_lshrrev_b32 v58, 20, v58
v_lshlrev_b32 v60, 2, v58
ds_add_rtn_u32 v60, v60, v{vOne} offset:{BCNT}
v_mul_u32_u24 v8, {NB}, v58
v_sub_u32 v52, v52, v8
v_lshlrev_b32 v58, 7, v58
s_mov_b64 exec, -1
s_waitcnt lgkmcnt(0)
L_round:
v_subrev_u32 v8, s{sR}, v60
v_cmp_gt_u32 vcc, 24, v8
v_mul_u32_u24 v9, s{sT}, v8
v_lshrrev_b32 v9, 11, v9
v_add_u32 v10, v8, v9
v_lshl_add_u32 v10, v10, 2, v58
v_mad_u32_u24 v9, v9, 13, v8
v_add_u32 v9, v9, v58
s_mov_b64 exec, vcc
ds_write_b8 v9, v52 offset:{IMG+12}
s_waitcnt vmcnt(0)
v_lshl_or_b32 v8, v56, 16, v54
ds_write_b32 v10, v8 offset:{IMG}
s_mov_b64 exec, 1
s_waitcnt lgkmcnt(0)
ds_add_u32 v{vZ}, v{vOne} offset:{ECNT}
s_mov_b64 exec, -1
""")
spin(ECNT,f"s{sT+8}")
stamp("img")
e(f"""
ds_read_b32 v5, v63 offset:{BCNT}
s_cmp_lt_u32 s{sW}, 8
s_cbranch_scc1 L_nocopy
ds_read_b32 v6, v62 offset:{BCNT}
ds_read_b128 v[12:15], v11 offset:{IMG}
s_waitcnt lgkmcnt(1)
v_subrev_u32 v6, s{sT+5}, v6
v_cmp_lt_i32 vcc, 12, v6
v_cmp_lt_i32 {sr(sM,2)}, s{sT+3}, v6
s_waitcnt lgkmcnt(0)
v_cndmask_b32 v20, v22, v7, vcc
v_xor_b32 v12, s{sT2}, v12
v_xor_b32 v13, s{sT2}, v13
v_xor_b32 v14, s{sT2}, v14
v_or_b32 v15, v20, v15
s_mov_b64 exec, {sr(sM,2)}
buffer_store_dwordx4 v[12:15], v21, {sr(SRDW,4)}, s{sT+1} offen sc1
s_mov_b64 exec, 1
{'' if 'nocsti' in OPT else f'ds_add_u32 v{vZ}, v{vOne} offset:{CSTI}'}
s_mov_b64 exec, -1
L_nocopy:
s_add_u32 s{sR}, s{sR}, 24
s_waitcnt lgkmcnt(0)
v_cmp_lt_u32 vcc, s{sR}, v5
s_cbranch_vccnz L_again
s_cmp_ge_u32 s{sW}, 8
s_cbranch_scc1 L_c0
s_setprio 0
s_branch L_t0
""")
D=52; Cc=68; sO=sT+1; mk=sA; cur=sA+4; bad=sA+8; NJ=2
def cloads(m):
    for j in range(NJ):
        e(f"s_mov_b64 exec, {sr(m+2*j,2)}")
        e(f"buffer_load_dwordx4 {vr(D+4*j,4)}, v23, {sr(SRDW,4)}, s{sO+j} offen sc1")
    e("s_mov_b64 exec, -1")
e(f"""
L_c0:
v_lshlrev_b32 v23, 4, v23
v_lshlrev_b32 v21, 2, v{vJ}
v_mov_b32 v20, 4
v_mov_b32 v6, 0xff
v_mov_b32 v7, 0xc000
s_lshl_b32 s{sO}, s{sB}, 14
s_add_u32 s{sO}, s{sO}, {CELLS}
s_add_u32 s{sO+1}, s{sO}, 8192
""")
for j in range(NJ): e(f"s_mov_b64 {sr(mk+2*j,2)}, -1")
e("s_waitcnt vmcnt(0)")
stamp("cst")
spin(TRDY,1,sleep=1) if args.ctrig==9 else spin(DONE,args.ctrig-10,sleep=1) if args.ctrig>10 else spin(XRDY,args.ctrig,sleep=1) if args.ctrig>0 else spin(W1RDY,1,sleep=1)
stamp('cgo')
cloads(mk)
e("L_cwait:")
for j in range(NJ):
    d=D+4*j; c=Cc+4*j
    e(f"""
    s_waitcnt vmcnt({NJ-1-j})
    v_xor_b32 v{c}, s{sT2}, v{d}
    v_xor_b32 v{c+1}, s{sT2}, v{d+1}
    v_xor_b32 v{c+2}, s{sT2}, v{d+2}
    v_xor_b32 v{c+3}, v22, v{d+3}
    v_or3_b32 v8, v{c}, v{c+1}, v{c+2}
    v_lshrrev_b32 v9, 25, v{c+3}
    v_and_or_b32 v8, v8, v7, v9
    v_cmp_ne_u32 vcc, 0, v8
    s_and_b64 {sr(bad+2*j,2)}, vcc, {sr(mk+2*j,2)}
    """)
e(f"s_or_b64 {sr(sM,2)}, {sr(bad,2)}, {sr(bad+2,2)}")
e("s_cbranch_scc1 L_cretry")
if "cell0" in stampnames:
    i0=sST+2*stampnames.index("cell0")
    e(f"s_cmp_lg_u32 s{i0}, 0\ns_cbranch_scc1 L_c0s"); stamp("cell0"); e("L_c0s:")
stamp("cell")
for j in range(NJ):
    e(f"""
    v_cmp_lt_u32 vcc, 0xffffff, v{Cc+4*j+3}
    s_mov_b64 {sr(cur+2*j,2)}, {sr(mk+2*j,2)}
    s_add_u32 s{sO+j}, s{sO+j}, {LVL}
    s_and_b64 {sr(mk+2*j,2)}, {sr(mk+2*j,2)}, vcc
    """)
e(f"""
s_or_b64 {sr(sM,2)}, {sr(mk,2)}, {sr(mk+2,2)}
s_cselect_b32 s{sR}, 1, 0
s_cbranch_scc0 L_cnomore
""")
cloads(mk)
e("L_cnomore:")
for half in range(1):
    recs=[(j,i) for j in (2*half,2*half+1) for i in range(3)]
    for k,(j,i) in enumerate(recs):
        if i==0: e(f"s_mov_b64 exec, {sr(cur+2*j,2)}")
        e(f"v_cmp_ne_u32_sdwa {sr(sM+2*k,2)}, v{Cc+4*j+3}, v6 src0_sel:BYTE_{i} src1_sel:DWORD")
        e(f"v_lshlrev_b32_sdwa v{8+k}, 2, v{Cc+4*j+3} dst_sel:DWORD dst_unused:UNUSED_PAD src0_sel:DWORD src1_sel:BYTE_{i}")
    for k,(j,i) in enumerate(recs):
        e(f"s_mov_b64 exec, {sr(sM+2*k,2)}")
        e(f"ds_add_rtn_u32 v{14+k}, v{8+k}, v20 offset:{NCNT}")
    for k,(j,i) in enumerate(recs):
        e(f"""
        s_mov_b64 exec, {sr(sM+2*k,2)}
        s_waitcnt lgkmcnt({5+k})
        v_min_u32 v{14+k}, {4*(CAP-1)}, v{14+k}
        v_mad_u32_u24 v{8+k}, v{8+k}, {LSTR}, v{14+k}
        v_lshl_add_u32 v{14+k}, v{14+k}, 3, v21
        ds_write_b32 v{8+k}, v{Cc+4*j+i} offset:{LISTS}
        ds_add_u32 v{14+k}, v20 offset:{GE}
        """)
e(f"""
s_mov_b64 exec, -1
s_cmp_eq_u32 s{sR}, 1
s_cbranch_scc1 L_cwait
L_cdone:
s_waitcnt lgkmcnt(0)
""")
post(CCNT)
stamp("ins")
e(f"""
s_cmp_ge_u32 s{sW}, 11
s_cbranch_scc1 L_join0
v_lshrrev_b32 v23, 4, v23
v_cmp_gt_u32 vcc, 160, v23
v_lshlrev_b32 v8, 2, v23
""")
spin(CCNT,8)
e(f"""
s_mov_b64 exec, vcc
ds_read_b32 v9, v8 offset:{NCNT}
s_waitcnt lgkmcnt(0)
v_cmp_lt_u32 vcc, {4*CAP}, v9
v_min_u32 v9, {4*CAP}, v9
ds_add_rtn_u32 v10, v9, v20 offset:{TIE}
v_lshlrev_b32 v8, 3, v9
ds_read_b128 v[12:15], v8 offset:{GE}
ds_read_b128 v[16:19], v8 offset:{GE+16}
v_lshl_or_b32 v11, v9, 14, v23
s_cbranch_vccnz L_overflow
L_ovback:
s_waitcnt lgkmcnt(1)
v_add3_u32 v10, v10, v12, v13
v_add3_u32 v10, v10, v14, v15
s_waitcnt lgkmcnt(0)
v_add3_u32 v10, v10, v16, v17
v_add3_u32 v10, v10, v18, v19
v_min_u32 v10, 636, v10
ds_write_b32 v10, v11 offset:{ORDER}
s_mov_b64 exec, 1
s_waitcnt lgkmcnt(0)
ds_add_u32 v{vZ}, v{vOne} offset:{RDY2}
s_mov_b64 exec, -1
s_xor_b32 s{sT}, s{sW}, 8
s_or_b32 s{sT}, s{sT}, s2
s_cbranch_scc1 L_join0
s_mov_b64 exec, 1
v_mov_b32 v8, s{NONCE}
v_mov_b32 v9, s{NONCE+1}
buffer_store_dwordx2 v[8:9], v{vZ}, {sr(SRDW,4)}, 0 offen sc1
s_mov_b64 exec, -1
L_join0:
s_setprio 0
L_join:
""")
spin(RDY2,7,sleep=1)
stamp("B2")
e(f"ds_read_b128 {vr(vC,4)}, v{IA+1} offset:{CVEC}")
def idxreads(I,off):
    for k in (3,2,1,0): e(f"ds_read_u16 v{I+2*k}, v{vLA} offset:{off+4*k}")
def ereads(off,E=vE):
    for k in range(4): e(f"ds_read_u16_d16_hi v{E+k}, v{vLA} offset:{off+4*k+2}")
def apk(x,E=vE,ks=(3,2,1,0)):
    for k in ks:
        sel = "op_sel_hi:[0,1,1]" if k%2==0 else "op_sel:[1,0,0] op_sel_hi:[1,1,1]"
        for h in range(2):
            e(f"v_pk_fma_f32 {vr(x+4*k+2*h,2)}, {vr(E+(k&2),2)}, {vr(vC+2*h,2)}, {vr(vP+2*h,2)} {sel}")
def exps(x,k):
    if 'novalu' in OPT: return
    for i in range(4): e(f"v_exp_f32 v{x+4*k+i}, v{x+4*k+i}")
def gath1(B,I,k): e(f"buffer_load_dwordx4 {vr(B+4*k,4)}, {vr(I+2*k,2)}, {sr(SRDG,4)}, 0 idxen offen sc1")
def gath(B,I):
    for k in (3,2,1,0): gath1(B,I,k)
def mext(B,x,k): e(f"v_mfma_f32_16x16x32_bf16 {vr(x+4*k,4)}, {vr(vA,4)}, {vr(B+4*k,4)}, {vr(x+4*k,4)}")
def burst(B,x):
    if 'taildot' in OPT:
        for k in (3,2,1,0):
            for i in range(4): e(f"v_dot2c_f32_bf16 v{x+4*k+i}, v{vD}, v{B+4*k+i}")
    else:
        for k in (3,2,1,0): mext(B,x,k)
        e("s_nop 1")
def frac(B,x,k):
    if 'novalu' in OPT: e("s_nop 7"); return
    for h in range(2): e(f"v_pk_mul_f32 {vr(vU+2*h,2)}, {vr(B+4*k+2*h,2)}, {vr(vM+2*h,2)}")
    for h in range(2):
        e(f"v_pk_fma_f32 {vr(vN+2*h,2)}, {vr(vN+2*h,2)}, {vr(x+4*k+2*h,2)}, {vr(vU+2*h,2)}")
        e(f"v_pk_mul_f32 {vr(vM+2*h,2)}, {vr(vM+2*h,2)}, {vr(x+4*k+2*h,2)}")
np_=[0]
def setprio(first=False):
    if not args.prio: return
    th=[int(x) for x in args.prio.split(',')]
    np_[0]+=1; L=f"L_pr{np_[0]}"
    if first:
        e(f"""
        s_cmp_lg_u32 s{sTASK2}, 0
        s_cselect_b32 s{sR}, {th[3]}, 0
        s_setprio 3
        """)
    e(f"s_add_u32 s{sT+8}, s{sREM}, s{sR}")
    for p in range(3):
        e(f"""
        s_cmp_ge_u32 s{sT+8}, {th[p]}
        s_cbranch_scc1 {L}
        s_setprio {2-p}
        """)
    e(f"{L}:")
def ladder(lab):
    for r in (1,2,3):
        e(f"s_cmp_eq_u32 s{sPART}, {r}")
        e(f"s_cbranch_scc1 {lab}{r-1}")
def gfirst(tag):
    ladder(f"L_g{tag}")
    for k in (3,2,1,0):
        e(f"L_g{tag}{k}:"); gath1(X,IA,k)
    gath(Y,IB); idxreads(IA,0)
e(f"""
L_task:
s_lshl_b32 s{sT}, s{sI}, 5
v_add_u32 v4, s{sT}, v{vOrd}
ds_read_b32 v4, v4 offset:{ORDER}
v_mov_b32 v{vM}, 1.0
v_mov_b32 v{vM+1}, 1.0
v_mov_b32 v{vM+2}, 1.0
v_mov_b32 v{vM+3}, 1.0
s_movk_i32 s{sT+2}, {NSTR}
s_waitcnt lgkmcnt(0)
v_readfirstlane_b32 s{sT}, v4
v_and_b32 v4, 0xff, v4
v_mul_u32_u24 v{vLA}, {4*LSTR}, v4
v_mad_u32_u24 v5, v4, s{sT+2}, v{vNB}
s_lshr_b32 s{sT}, s{sT}, 16
s_add_u32 s{sREM}, s{sT}, 3
s_lshr_b32 s{sREM}, s{sREM}, 2
s_lshl_b32 s{sT+1}, s{sREM}, 4
s_add_u32 s{sT+1}, s{sT+1}, {LISTS-48}
v_add_u32 v{vLA}, s{sT+1}, v{vLA}
""")
idxreads(IA,32); idxreads(IB,16)
setprio(True)
e(f"ds_read_b32 v7, v{vZ} offset:{TRDY}")
e(f"ds_read_b128 {vr(vP,4)}, v5")
ereads(16)
ereads(32,vE2)
e(f"""
ds_read_b128 {vr(vN,4)}, v5 offset:128
v_lshl_add_u32 v{vOA}, v4, 8, v{vOB}
s_and_b32 s{sPART}, s{sT}, 3
s_waitcnt lgkmcnt(10)
v_readfirstlane_b32 s{sRDY}, v7
s_cmp_eq_u32 s{sRDY}, 0
s_cbranch_scc1 L_notyet
L_rdy:
""")
stamp("go")
gfirst('a')
e("s_waitcnt lgkmcnt(4)")
e("s_branch L_astage")
e("L_notyet:")
e("s_waitcnt lgkmcnt(0)")
e("L_astage:")
apk(xY)
ereads(0)
for h in range(2): e(f"v_pk_mul_f32 {vr(vN+2*h,2)}, {vr(vN+2*h,2)}, {sr(sK40,2)} op_sel_hi:[1,0]")
ladder("L_ax")
for k in (3,2,1,0):
    e(f"L_ax{k}:")
    apk(xX,vE2,(k,)); exps(xX,k)
e(f"""
s_cmp_eq_u32 s{sRDY}, 0
s_cbranch_scc1 L_late
s_waitcnt vmcnt(4)
""")
for k in (3,2,1,0): mext(X,xX,k); exps(xY,k)
e(f"""
L_enter:
s_cmp_eq_u32 s{sREM}, 0
s_cbranch_scc1 L_fin
""")
ladder("L_fx")
def half(tag,B,x,B2,x2,tag2,last):
    for k in (3,2,1,0):
        e(f"L_f{tag}{k}:")
        frac(B,x,k)
    e(f"s_sub_u32 s{sREM}, s{sREM}, 1")
    setprio()
    e(f"""
    s_cmp_le_u32 s{sREM}, 1
    s_cbranch_scc1 L_tail{tag}
    s_waitcnt lgkmcnt(0)
    """)
    gath(B,IA)
    if 'defer' in OPT:
        e(f"""
        s_add_u32 s{sT+8}, s{sREM}, s{sTASK2}
        s_cmp_eq_u32 s{sT+8}, 2
        s_cbranch_scc0 L_ngd{tag}
        s_mov_b32 s{sGD}, 1
        """)
        post(GDONE)
        e(f"L_ngd{tag}:")
    apk(x)
    e(f"v_subrev_u32 v{vLA}, 16, v{vLA}")
    idxreads(IA,0); ereads(0)
    e("s_waitcnt vmcnt(4)")
    for k in (3,2,1,0):
        mext(B2,x2,k); exps(x,k)
    if last: e(f"s_branch L_f{tag2}3")
def tail(tag,B2,x2,tag2):
    e(f"""
    L_tail{tag}:
    s_cmp_eq_u32 s{sREM}, 0
    s_cbranch_scc1 L_fin
    """)
    e("s_waitcnt vmcnt(0)")
    burst(B2,x2)
    e(f"s_branch L_f{tag2}3")
half('x',X,xX,Y,xY,'y',False)
half('y',Y,xY,X,xX,'x',True)
tail('x',Y,xY,'y')
tail('y',X,xX,'x')
e("L_late:")
for k in (3,2,1,0): exps(xY,k)
spin(TRDY,1,vt=7)
stamp("go")
gfirst('b')
e("s_waitcnt vmcnt(4)")
burst(X,xX)
e("s_branch L_enter")
e("L_fin:")
e("s_waitcnt lgkmcnt(0)")
for i in range(4): e(f"v_rcp_f32 v{vM+i}, v{vM+i}")
for h in range(2): e(f"v_pk_mul_f32 {vr(vN+2*h,2)}, {vr(vN+2*h,2)}, {vr(vM+2*h,2)}")
for h in range(2): e(f"v_pk_mul_f32 {vr(vM+2*h,2)}, {vr(vN+2*h,2)}, {sr(sKE,2)} op_sel_hi:[1,0]")
for i in range(4): e(f"v_exp_f32 v{vM+i}, v{vM+i}")
for h in range(2): e(f"v_pk_fma_f32 {vr(vM+2*h,2)}, {vr(vM+2*h,2)}, {sr(sK40,2)}, {sr(sK40,2)} op_sel_hi:[1,0,0]")
for i in range(4): e(f"v_rcp_f32 v{vM+i}, v{vM+i}")
for h in range(2): e(f"v_pk_mul_f32 {vr(vU+2*h,2)}, {vr(vN+2*h,2)}, {vr(vM+2*h,2)}")
e(f"""
v_cvt_pk_bf16_f32 v{vU}, v{vU}, v{vU+1}
v_cvt_pk_bf16_f32 v{vU+1}, v{vU+2}, v{vU+3}
""")
OF=' sc1' if 'oplain' not in OPT else ''
e(f"""
v_pk_add_f32 {vr(vN,2)}, {vr(vN,2)}, {vr(vN+2,2)}
v_add_f32 v{vN}, v{vN}, v{vN+1}
v_cmp_nlt_f32 vcc, abs(v{vN}), s{sINF}
s_cbranch_vccnz L_nonfin
L_finback:
""")
if 'defer' in OPT:
    e(f"""
    s_cmp_eq_u32 s{sTASK2}, 0
    s_cbranch_scc1 L_last
    s_mov_b32 s{sI}, s{sTASK2}
    s_mov_b32 s{sTASK2}, 0
    v_mov_b32 v{vH}, v{vU}
    v_mov_b32 v{vH+1}, v{vU+1}
    v_mov_b32 v{vHA}, v{vOA}
    s_branch L_task
    L_last:
    s_cmp_eq_u32 s{sGD}, 1
    s_cbranch_scc1 L_posted
    """)
    post(GDONE)
    e("L_posted:")
    spin(GDONE,16,sleep=1)
    e(f"""
    buffer_store_dwordx2 {vr(vU,2)}, v{vOA}, {sr(SRDO,4)}, 0 offen{OF}
    s_cmp_lt_u32 s{sI}, 16
    s_cbranch_scc1 L_nohold
    buffer_store_dwordx2 {vr(vH,2)}, v{vHA}, {sr(SRDO,4)}, 0 offen{OF}
    L_nohold:
    """)
else:
    e(f"""
    buffer_store_dwordx2 {vr(vU,2)}, v{vOA}, {sr(SRDO,4)}, 0 offen{OF}
    s_mov_b32 s{sI}, s{sTASK2}
    s_mov_b32 s{sTASK2}, 0
    s_cmp_lg_u32 s{sI}, 0
    s_cbranch_scc1 L_task
    """)
stamp("end")
e(f"""
s_waitcnt lgkmcnt(0)
s_barrier
ds_read_b32 v4, v{vZ} offset:{FAIL}
s_waitcnt lgkmcnt(0)
v_cmp_ne_u32 vcc, 0, v4
s_cbranch_vccnz L_exact
""")
if "end2" in stampnames: e("s_waitcnt vmcnt(0)"); stamp("end2")
if stampnames and not args.probe:
    e(f"""
    s_waitcnt vmcnt(0) lgkmcnt(0)
    s_lshl_b32 s{sT}, s2, 4
    s_add_u32 s{sT}, s{sT}, s{sW}
    s_lshl_b32 s{sT}, s{sT}, 6
    s_add_u32 s{sT}, s{sT}, {DBG}
    v_mov_b32 v4, 0
    """)
    for i in range(len(stampnames)): e(f"v_writelane_b32 v4, s{sST+2*i}, {i}")
    e(f"""
    v_writelane_b32 v4, s{sSPIN}, 15
    v_lshlrev_b32 v5, 2, v1
    s_mov_b64 exec, 0xffff
    buffer_store_dword v4, v5, {sr(SRDW,4)}, s{sT} offen
    """)
if args.probe:
    pn,pwg,pw=args.probe.split(',')
    if pwg!='a': e(f"s_cmp_eq_u32 s2, {pwg}\ns_cbranch_scc0 L_end")
    if pw!='a': e(f"s_cmp_eq_u32 s{sW}, {pw}\ns_cbranch_scc0 L_end")
    e(f"""
    s_waitcnt lgkmcnt(0)
    s_cmp_eq_u32 s{sST}, 0
    s_cbranch_scc1 L_end
    s_add_u32 s{sT}, s{sST}, 4000
    L_probe:
    s_sleep 2
    s_memrealtime {sr(sT+2,2)}
    s_waitcnt lgkmcnt(0)
    s_sub_u32 s{sT+1}, s{sT+2}, s{sT}
    s_cmp_lt_i32 s{sT+1}, 0
    s_cbranch_scc1 L_probe
    """)
e("L_end:")
e("s_endpgm")
e("; COLD")
e(f"""
L_cretry:
s_add_u32 s{sSPIN}, s{sSPIN}, 1
s_cmp_ge_u32 s{sSPIN}, {SPINMAX}
s_cbranch_scc1 L_cdone
s_sleep 4
""")
cloads(bad)
e(f"""
s_branch L_cwait
L_overflow:
ds_write_b32 v{vZ}, v{vOne} offset:{FAIL}
s_branch L_ovback
L_again:
s_cmp_lt_u32 s{sW}, 8
s_cbranch_scc1 L_again1
ds_write_b128 v11, v[16:19] offset:{IMG}
s_waitcnt lgkmcnt(0)
L_again1:
""")
post(ECNT)
e(f"s_add_u32 s{sT+8}, s{sT+8}, 10")
spin(ECNT,f"s{sT+8}")
e(f"""
s_add_u32 s{sT+8}, s{sT+8}, 10
s_add_u32 s{sT+1}, s{sT+1}, {2*LVL}
s_add_u32 s{sT+5}, s{sT+5}, 24
s_mov_b32 s{sT+3}, 0
s_branch L_round
L_mark:
s_waitcnt vmcnt(0)
s_mov_b64 exec, vcc
v_mov_b32 v{vMin}, -1
buffer_store_dword v{vMin}, v{vSa}, {sr(SRDT,4)}, 0 offen sc1
s_mov_b64 exec, -1
s_branch L_markback
""")
xN0,xNB,xQ,xID,xM,xL,xOFF,xLOC,xE,xK=12,13,14,15,16,18,19,28,29,30
XR=36; WK=52
e(f"""
L_nonfin:
ds_write_b32 v{vZ}, v{vOne} offset:{FAIL}
s_branch L_finback
L_exact:
s_load_dwordx2 {sr(pE,2)}, s[0:1], 8
s_load_dwordx4 {sr(pSRC,4)}, s[0:1], 16
s_mov_b32 s{xN0}, s{sN0}
s_sub_u32 s{xNB}, s{sNEND}, s{sN0}
s_lshl_b32 s{xID}, s{sW}, 6
s_mov_b32 s{xK}, {f2u(-LOG2E):#x}
v_and_b32 v2, 15, v1
v_lshlrev_b32 v2, 1, v2
v_bfe_u32 v3, v1, 4, 1
v_lshl_add_u32 v2, v3, 5, v2
v_lshrrev_b32 v3, 5, v1
v_lshl_add_u32 v2, v3, 13, v2
v_add_u32 v2, {WS}, v2
v_xor_b32 v3, 32, v2
v_and_b32 v4, 31, v1
v_lshlrev_b32 v4, 2, v4
ds_read_b32 v5, v4 offset:{CVEC}
v_add_u32 v4, {NS}, v4
s_waitcnt vmcnt(0) lgkmcnt(0)
""")
for g in range(16):
    for i in range(4):
        kp=4*g+i; a_=2+((kp>>2)&1)
        e(f"ds_read_u16 v{WK+kp}, v{a_} offset:{128*kp}")
        e(f"ds_read_u16 v{8+i}, v{a_} offset:{128*kp+64}")
    e("s_waitcnt lgkmcnt(0)")
    for i in range(4): e(f"v_lshl_or_b32 v{WK+4*g+i}, v{8+i}, 16, v{WK+4*g+i}")
e(f"""
L_xscan:
v_add_u32 v8, s{xID}, v1
v_lshlrev_b32 v9, 1, v8
v_lshlrev_b32 v8, 2, v8
global_load_dword v10, v8, {sr(pDST,2)}
global_load_dword v11, v8, {sr(pSRC,2)}
global_load_ushort v12, v9, {sr(pE,2)}
s_waitcnt vmcnt(0)
v_subrev_u32 v10, s{xN0}, v10
v_cmp_gt_u32 {sr(xM,2)}, s{xNB}, v10
v_mul_u32_u24 v10, {NSTR}, v10
v_lshlrev_b32 v11, 8, v11
v_lshlrev_b32 v12, 16, v12
L_xedge:
s_cmp_eq_u64 {sr(xM,2)}, 0
s_cbranch_scc1 L_xnext
s_ff1_i32_b64 s{xL}, {sr(xM,2)}
s_bitset0_b64 {sr(xM,2)}, s{xL}
v_readlane_b32 s{xOFF}, v11, s{xL}
v_readlane_b32 s{xLOC}, v10, s{xL}
v_readlane_b32 s{xE}, v12, s{xL}
s_nop 3
""")
for i in range(4):
    e(f"s_buffer_load_dwordx16 {sr(XR+16*i,16)}, {sr(SRDX,4)}, s{xOFF}")
    if i<3: e(f"s_add_u32 s{xOFF}, s{xOFF}, 64")
e(f"""
v_add_u32 v13, s{xLOC}, v4
ds_read_b32 v14, v13
v_mov_b32 v15, 0
s_waitcnt lgkmcnt(0)
""")
for kp in range(64): e(f"v_dot2c_f32_bf16 v15, s{XR+kp}, v{WK+kp}")
e(f"""
v_fmac_f32 v14, s{xE}, v5
s_nop 1
v_mov_b32 v16, v15
s_nop 1
v_permlane32_swap_b32 v15, v16
s_nop 1
v_fmac_f32 v14, s{xK}, v15
v_exp_f32 v14, v14
s_nop 0
v_add_f32 v14, 1.0, v14
v_rcp_f32 v14, v14
s_nop 0
v_mul_f32 v14, v14, v16
s_mov_b32 exec_hi, 0
ds_add_f32 v13, v14 offset:128
s_mov_b64 exec, -1
s_branch L_xedge
L_xnext:
s_add_u32 s{xID}, s{xID}, 1024
s_cmp_lt_u32 s{xID}, {E}
s_cbranch_scc1 L_xscan
s_waitcnt lgkmcnt(0)
s_barrier
s_mov_b32 s{xID}, s{sW}
v_lshrrev_b32 v8, 3, v0
L_xout:
v_mul_u32_u24 v9, {NSTR}, v8
v_add_u32 v9, v9, v{vNB}
ds_read_b128 v[12:15], v9 offset:128
v_lshl_add_u32 v10, v8, 8, v{vOB}
s_waitcnt lgkmcnt(0)
""")
for i in range(4): e(f"v_mul_f32 v{16+i}, s{xK}, v{12+i}")
for i in range(4): e(f"v_exp_f32 v{16+i}, v{16+i}")
for i in range(4): e(f"v_add_f32 v{16+i}, 1.0, v{16+i}")
for i in range(4): e(f"v_rcp_f32 v{16+i}, v{16+i}")
for i in range(4): e(f"v_mul_f32 v{16+i}, v{12+i}, v{16+i}")
e(f"""
v_cvt_pk_bf16_f32 v16, v16, v17
v_cvt_pk_bf16_f32 v17, v18, v19
buffer_store_dwordx2 v[16:17], v10, {sr(SRDO,4)}, 0 offen sc1
v_add_u32 v8, 128, v8
s_add_u32 s{xID}, s{xID}, 16
s_cmp_lt_u32 s{xID}, 20
s_cbranch_scc1 L_xout
s_endpgm
""")
out.append('.section .rodata,"a"')
out.append('.p2align 6')
out.append(f""".amdhsa_kernel {NAME}_kernel
  .amdhsa_next_free_vgpr 128
  .amdhsa_next_free_sgpr 102
  .amdhsa_accum_offset 128
  .amdhsa_group_segment_fixed_size 0
  .amdhsa_kernarg_size 80
  .amdhsa_user_sgpr_count 2
  .amdhsa_user_sgpr_kernarg_segment_ptr 1
  .amdhsa_system_sgpr_workgroup_id_x 1
.end_amdhsa_kernel""")
def offsets(lines):
    import subprocess,re,tempfile
    d=tempfile.mkdtemp()
    txt=[]
    for i,l in enumerate(lines):
        t=l.strip()
        if l.startswith('    ') and not t.startswith(';'): txt.append(f"Z_{i}:")
        txt.append(l)
    open(d+"/a.s","w").write("\n".join(txt)+"\n")
    subprocess.check_call(["clang","-x","assembler","-target","amdgcn-amd-amdhsa","-mcpu=gfx950","-c",d+"/a.s","-o",d+"/a.o"])
    o=subprocess.check_output(["llvm-readelf","-s",d+"/a.o"]).decode()
    return {int(m.group(2)):int(m.group(1),16) for m in re.finditer(r"^\s*\d+: ([0-9a-f]+) .* Z_(\d+)$",o,re.M)}
if 'nowarm' not in OPT:
    off=offsets(out); iw=out.index('    ; WARM'); ic=out.index('    ; COLD')
    idx=sorted(off); end=off[max(i for i in idx if i<ic)]
    nat=[i for i in idx if out[i].split()[0] in ('s_branch','s_endpgm') and i>iw+1]
    spots=[]; cur=args.wfirst
    while cur<end-64:
        cand=[i for i in nat if cur-200<=off[i]<=cur and i not in [x for x,_ in spots]]
        if cand: i=max(cand,key=lambda i:off[i]); spots.append((i,True))
        else:
            i=max([i for i in idx if off[i]<=cur],key=lambda i:off[i]); spots.append((i,False))
        cur=off[i]+args.wstep
    assert len(spots)<=10, len(spots)
    for k,(i,isnat) in reversed(list(enumerate(spots))):
        ins=[f"L_stub{k}:",f"    s_branch L_stub{k+5}" if k+5<len(spots) else "    s_branch L_common"]
        if not isnat: ins=[f"    s_branch L_skip{k}"]+ins+[f"L_skip{k}:"]
        out[i+1:i+1]=ins
    lad=[]
    for k in range(min(5,len(spots))): lad+=[f"    s_cmp_eq_u32 s{sW}, {[0,1,2,3,5][k]}",f"    s_cbranch_scc1 L_stub{k}"]
    out[iw+1:iw+1]=lad
if stampnames: out.insert(0,"; stamps: "+",".join(stampnames))
print("\n".join(out))
```
